```python
import torch

def _softmax(x, axis=-1):
    return torch.softmax(x, dim=axis)

def _gelu(x):
    return torch.nn.functional.gelu(x, approximate='tanh')

def _silu(x):
    return torch.nn.functional.silu(x)

def _sigmoid(x):
    return torch.sigmoid(x)

def _layernorm(x, axis=-1, eps=1e-05):
    m = x.mean(dim=axis, keepdim=True)
    v = x.var(dim=axis, keepdim=True, unbiased=False)
    return (x - m) / torch.sqrt(v + eps)

def _scatter_add(tgt, idx, src, axis=0):
    return tgt.clone().index_add_(axis, idx, src)

def _segment_sum(src, seg, n):
    out = torch.zeros((n,) + src.shape[1:], dtype=src.dtype)
    return out.index_add_(0, seg, src)

def _pad(x, pw):
    flat = tuple((v for pair in reversed(pw) for v in pair))
    return torch.nn.functional.pad(x, flat)
kernel_name = 'adaLN_cond__gqa_block_cached__dense_activation_silu__decode'

def setup_inputs():

    _w = lambda a: (lambda t: t.to(torch.bfloat16) if t.is_floating_point() else t)(torch.as_tensor(a))

    def _A_setup():
        B, Sq, D = (1, 1, 576)
        Hq, Hkv, Sk, Dh = (32, 16, 8192, 128)
        assert Hq % Hkv == 0, (Hq, Hkv)
        return {'x': _w((lambda *s: torch.randn(*s, dtype=torch.bfloat16) * 0.1)(B, Sq, D)), 'k_cache': _w((lambda *s: torch.randn(*s, dtype=torch.bfloat16) * 1.6)(B, Hkv, Sk, Dh)), 'v_cache': _w((lambda *s: torch.randn(*s, dtype=torch.bfloat16) * 3.2)(B, Hkv, Sk, Dh)), 'wq': _w((lambda *s: torch.randn(*s, dtype=torch.bfloat16) * 1.6)(D, Hq * Dh) * D ** (-0.5)), 'wo': _w((lambda *s: torch.randn(*s, dtype=torch.bfloat16) * 3.2)(Hq * Dh, D) * (Hq * Dh) ** (-0.5))}
    _A_in = _A_setup()

    def _B_setup():
        B, S, D, F = (1, 1, 576, 4608)
        return {'x': _w((lambda *s: torch.randn(*s, dtype=torch.bfloat16) * 0.1)(B, S, D)), 'w1': _w((lambda *s: torch.randn(*s, dtype=torch.bfloat16) * 3.2)(D, F) * D ** (-0.5)), 'w2': _w((lambda *s: torch.randn(*s, dtype=torch.bfloat16) * 3.2)(F, D) * F ** (-0.5))}
    _B_in = _B_setup()
    return {'A_x': _A_in['x'], 'A_k_cache': _A_in['k_cache'], 'A_v_cache': _A_in['v_cache'], 'A_wq': _A_in['wq'], 'A_wo': _A_in['wo'], 'B_x': _B_in['x'], 'B_w1': _B_in['w1'], 'B_w2': _B_in['w2'], 'c': _w((lambda *s: torch.randn(*s, dtype=torch.bfloat16) * 0.2)(1, 576) * 8.0), 'w_mod': _w((lambda *s: torch.randn(*s, dtype=torch.bfloat16) * 0.2)(576, 6 * 576) * 576 ** (-0.5) * 8.0)}

def reference(A_x, A_k_cache, A_v_cache, A_wq, A_wo, B_x, B_w1, B_w2, c, w_mod):

    def _A_ref(x, k_cache, v_cache, wq, wo):
        B, Sq, D = x.shape
        Hq, Dh = (32, 128)
        Hkv = k_cache.shape[1]
        rep = Hq // Hkv
        q = (lambda x, *d: x.permute(*d))((x @ wq).reshape(B, Sq, Hq, Dh), 0, 2, 1, 3)
        k = (lambda x, n, axis: torch.repeat_interleave(x, n, dim=axis))(k_cache, rep, axis=1)
        v = (lambda x, n, axis: torch.repeat_interleave(x, n, dim=axis))(v_cache, rep, axis=1)
        scores = torch.einsum('bhqd,bhkd->bhqk', q, k) * Dh ** (-0.5)
        p = _softmax(scores, axis=-1)
        o = torch.einsum('bhqk,bhkd->bhqd', p, v)
        return (lambda x, *d: x.permute(*d))(o, 0, 2, 1, 3).reshape(B, Sq, Hq * Dh) @ wo

    def _B_ref(x, w1, w2):
        h = torch.einsum('bsd,df->bsf', x, w1)
        h = _silu(h)
        out = torch.einsum('bsf,fd->bsd', h, w2)
        return out
    x = A_x
    mod = (_silu(c) @ w_mod).reshape(c.shape[0], 6, 1, -1)
    sa, ca, ga, sb, cb, gb = (mod[:, 0].clone(), mod[:, 1].clone(), mod[:, 2].clone(), mod[:, 3].clone(), mod[:, 4].clone(), mod[:, 5].clone())
    h = _layernorm(x, axis=-1) * (1 + ca) + sa
    x = x + ga * _A_ref(h, A_k_cache, A_v_cache, A_wq, A_wo)
    h = _layernorm(x, axis=-1) * (1 + cb) + sb
    x = x + gb * _B_ref(h, B_w1, B_w2)
    return x
```

```python
import re

TRANS = ("v_exp_f32","v_log_f32","v_rcp_f32","v_rsq_f32","v_sqrt_f32","v_sin_f32","v_cos_f32")

def regs_of(tok):
    tok=tok.strip()
    m=re.fullmatch(r"([vs])\[(\d+):(\d+)\]",tok)
    if m: return {(m.group(1),i) for i in range(int(m.group(2)),int(m.group(3))+1)}
    m=re.fullmatch(r"([vs])(\d+)",tok)
    if m: return {(m.group(1),int(m.group(2)))}
    if tok in("vcc",): return {("x","vcc")}
    if tok in("vcc_lo","vcc_hi"): return {("x","vcc")}
    if tok in("exec","exec_lo","exec_hi"): return {("x","exec")}
    if tok=="m0": return {("x","m0")}
    return set()

def split_ops(s):
    out=[];depth=0;cur=""
    for ch in s:
        if ch=="[":depth+=1
        if ch=="]":depth-=1
        if ch=="," and depth==0: out.append(cur.strip());cur=""
        else: cur+=ch
    if cur.strip(): out.append(cur.strip())
    return out

class Ins:
    def __init__(s,text):
        s.text=text
        t=text.split(";")[0].strip()
        parts=t.split(None,1)
        s.mn=parts[0]
        rest=parts[1] if len(parts)>1 else ""
        ops=split_ops(rest)
        s.mods=""
        if ops:
            last=ops[-1].split(None,1)
            ops[-1]=last[0]
            s.mods=last[1] if len(last)>1 else ""
        s.ops=ops
        mn=s.mn
        s.kind="other"; s.dst=set(); s.src=set(); s.srcC=set(); s.dpp=False
        R=[regs_of(o) for o in ops]
        allr=lambda idx: set().union(*[R[i] for i in idx if i<len(R)]) if idx else set()
        if mn.startswith("v_mfma"):
            s.kind="mfma"; s.dst=R[0]; s.src=R[1]|R[2]|R[3]; s.srcAB=R[1]|R[2]; s.srcC=R[3]
        elif mn.startswith("v_"):
            s.kind="valu"
            s.dpp = ("_dpp" in mn) or ("row_" in s.mods) or ("quad_perm" in s.mods)
            if mn.startswith("v_cmp"):
                s.dst=R[0]; s.src=allr(range(1,len(R)))
            elif mn.startswith("v_permlane") and "swap" in mn:
                s.dst=R[0]|R[1]; s.src=R[0]|R[1]; s.kind="valu"; s.perm=True
            elif mn.startswith(("v_add_co","v_sub_co","v_addc_co","v_subb_co")):
                s.dst=R[0]|R[1]; s.src=allr(range(2,len(R)))
            elif mn.startswith(("v_fmac","v_dot2c","v_mac")):
                s.dst=R[0]; s.src=allr(range(0,len(R)))
            elif mn.startswith("v_writelane"):
                s.dst=R[0]; s.src=allr(range(0,len(R)))
            else:
                s.dst=R[0]; s.src=allr(range(1,len(R)))
                if mn.startswith("v_cndmask") and len(ops)==3: s.src|={("x","vcc")}
        elif mn.startswith("ds_"):
            s.kind="ds"
            if mn.startswith(("ds_read","ds_bpermute","ds_permute","ds_swizzle")):
                s.dst=R[0]; s.src=allr(range(1,len(R)))
            else:
                s.src=allr(range(0,len(R)))
        elif mn.startswith(("buffer_","global_")):
            s.kind="vmem"
            if "_load" in mn:
                if " lds" in (" "+s.mods): s.src=allr(range(0,len(R)))
                else: s.dst=R[0]; s.src=allr(range(1,len(R)))
            else:
                s.src=allr(range(0,len(R)))
                s.wide = ("x3" in mn or "x4" in mn) and "store" in mn
                if "store" in mn:
                    s.data = R[0] if mn.startswith("buffer_") else R[1]
        elif mn.startswith("s_"):
            s.kind="salu"
            if mn.startswith(("s_cmp","s_cbranch","s_branch","s_waitcnt","s_barrier","s_nop","s_endpgm","s_sleep","s_setprio","s_bitcmp")):
                s.src=allr(range(0,len(R)))
            else:
                s.dst=R[0] if R else set(); s.src=allr(range(1,len(R)))
    def states(s):
        if s.mn=="s_nop": return int(s.ops[0],0)+1
        return 1

class Asm:
    def __init__(s): s.items=[]
    def I(s,text):
        for ln in text.strip().split("\n"):
            ln=ln.strip()
            if ln: s.items.append(("i",ln))
    def label(s,n): s.items.append(("l",n))
    def raw(s,t): s.items.append(("r",t))
    def C(s,t): s.items.append(("r","; "+t))
    def finish(s):
        out=[]
        hist=[]
        def need(ins):
            n=0
            for (p,age) in hist:
                req=0
                vd={r for r in p.dst if r[0]=="v"}
                sd={r for r in p.dst if r[0]=="s" or r==("x","vcc")}
                if p.kind=="valu":
                    if ins.kind=="mfma" and vd & ins.src: req=max(req,2)
                    if ins.kind=="valu" and vd & ins.src:
                        if ins.dpp: req=max(req,2)
                        if getattr(ins,"perm",False): req=max(req,2)
                        if ins.mn.startswith(("v_readlane","v_readfirstlane")): req=max(req,1)
                        if p.mn.replace("_e32","").replace("_e64","") in TRANS and not ins.mn.replace("_e32","").replace("_e64","") in TRANS: req=max(req,1)
                    if p.mn.replace("_e32","").replace("_e64","") in TRANS and ins.kind in("mfma",) and vd&ins.src: req=max(req,2)
                    if sd:
                        if ins.kind=="valu" and sd & ins.src:
                            req=max(req,4 if ins.mn.startswith(("v_readlane","v_writelane")) else 2)
                        if ins.kind=="vmem" and sd & ins.src: req=max(req,5)
                        if ins.kind=="salu" and sd & ins.src: req=max(req,1)
                    if ("x","exec") in p.dst:
                        if ins.kind=="mfma": req=max(req,4)
                        if ins.kind=="valu" and ins.dpp: req=max(req,5)
                if p.kind=="mfma":
                    big = "32x32" in p.mn
                    W = 12 if big else 8
                    if ins.kind=="mfma":
                        if p.dst & ins.srcAB: req=max(req,W)
                        if p.dst & ins.srcC and p.dst!=ins.srcC: req=max(req,W-2)
                    else:
                        if p.dst & (ins.src|ins.dst): req=max(req,W)
                    if ins.kind=="valu" and p.srcC & ins.dst: req=max(req,7 if big else 3)
                if p.kind=="vmem" and getattr(p,"wide",False):
                    if p.data & ins.dst: req=max(req,2)
                if p.kind=="salu" and ("x","m0") in p.dst:
                    if ins.kind=="vmem" and " lds" in (" "+ins.mods): req=max(req,1)
                    if ins.mn.startswith("global_load_lds"): req=max(req,1)
                n=max(n,req-age)
            return n
        def flush_need():
            n=0
            for (p,age) in hist:
                req=0
                if p.kind=="valu": req=5 if any(r[0]=="s" or r==("x","exec") for r in p.dst) else 2
                if p.kind=="mfma": req=12 if "32x32" in p.mn else 8
                if p.kind=="vmem" and getattr(p,"wide",False): req=2
                n=max(n,req-age)
            return n
        def emit_nop(n):
            nonlocal hist
            while n>0:
                k=min(n,16)
                out.append(f"    s_nop {k-1}")
                hist=[(p,a+k) for p,a in hist]
                n-=k
        for kind,t in s.items:
            if kind=="r": out.append(t); continue
            if kind=="l":
                out.append(f"{t}:"); continue
            ins=Ins(t)
            if ins.mn.startswith(("s_cbranch","s_branch")):
                emit_nop(max(0,flush_need()-1))
            else:
                emit_nop(need(ins))
            out.append("    "+t)
            st=ins.states()
            hist=[(p,a+st) for p,a in hist if a+st<16]
            hist.append((ins,0))
        return "\n".join(out)+"\n"
```

```python
import sys
from asmlib import Asm

NAME="adaLN_cond__gqa_block_cached__dense_activation_silu__decode"
STRIDE=5376
P1,P2,P3,ML,P4,P1B,P5=0,512,1024,2048,2176,2432,3072
QL,TL,WMAX,WSUM,STAT,OBUF,SCR,RED=0,512,1536,1600,1664,2048,10240,12544
LDS_BYTES=16384
SPIN=200000
LOG2E=0x3fb8aa3b
SCALE=0x3db504f3
EPS=0x3727c5ac
INV576=0x3ae38e39
STAMP_OFF=0x400000

HEADER=open("cdna_kernels/"+NAME+".s.ref").read().split("; Override launch")[0]

def gen(W=4, VK=8, ldflag="", wflag="", stamps=False):
    a=Asm(); I=a.I
    uid=[0]
    def L(p):
        uid[0]+=1; return f"L_{p}_{uid[0]}"
    def vr(b,n=4): return f"v[{b}:{b+n-1}]"
    def rnd(d,s): I(f"v_cvt_pk_bf16_f32 v{d}, 0, v{s}")
    def dup(d,s): I(f"v_cvt_pk_bf16_f32 v{d}, v{s}, v{s}")
    def expand(A,val):
        for r in range(4): I(f"v_cndmask_b32 v{A+r}, 0, v{val}, s[{72+2*r}:{73+2*r}]")
    def ror(op,regs,k):
        for v in regs: I(f"{op}_dpp v{v}, v{v}, v{v} row_ror:{k} row_mask:0xf bank_mask:0xf")
    def xswap(op,regs,tmp,which):
        for v,t in zip(regs,tmp): I(f"v_mov_b32 v{t}, v{v}")
        for v,t in zip(regs,tmp): I(f"v_permlane{which}_swap_b32 v{v}, v{t}")
        for v,t in zip(regs,tmp): I(f"{op} v{v}, v{v}, v{t}")
    STV=7
    def stamp(i):
        if stamps:
            I(f"s_memrealtime s[96:97]"); I("s_waitcnt lgkmcnt(0)")
            I(f"v_writelane_b32 v{STV}, s96, {i}")
    def finish():
        if stamps:
            I("s_mov_b64 exec, -1")
            stamp(15)
            I("s_mul_i32 s7, s4, 9"); I("s_add_u32 s7, s7, s3"); I("s_lshl_b32 s7, s7, 8"); I(f"s_add_u32 s7, s7, {STAMP_OFF}")
            I("s_add_u32 s8, s40, s7"); I("s_addc_u32 s9, s41, 0")
            I("v_lshlrev_b32 v4, 2, v1")
            I(f"global_store_dword v4, v{STV}, s[8:9]")
        I("s_endpgm")
    def poll(loads, regs, name, tmp):
        lo=L("poll"+name); dn=L("pd"+name)
        I("s_mov_b32 s80, 0")
        a.label(lo)
        for ld in loads: I(ld)
        I("s_waitcnt vmcnt(0)")
        regs=list(regs); i=0; cur=None
        if len(regs)==1: cur=regs[0]
        else:
            while i<len(regs):
                if cur is None:
                    if len(regs)-i>=3: I(f"v_max3_u32 v{tmp}, v{regs[i]}, v{regs[i+1]}, v{regs[i+2]}"); i+=3
                    else: I(f"v_max_u32 v{tmp}, v{regs[i]}, v{regs[i+1]}"); i+=2
                    cur=tmp
                else:
                    if len(regs)-i>=2: I(f"v_max3_u32 v{tmp}, v{tmp}, v{regs[i]}, v{regs[i+1]}"); i+=2
                    else: I(f"v_max_u32 v{tmp}, v{tmp}, v{regs[i]}"); i+=1
        I(f"v_cmp_eq_u32 vcc, -1, v{cur}")
        I(f"s_cbranch_vccz {dn}")
        I("s_add_u32 s80, s80, 1"); I(f"s_cmp_lt_u32 s80, {SPIN}"); I(f"s_cbranch_scc1 {lo}")
        a.label(dn)
    def setexec(lo,hi):
        I(f"s_mov_b32 exec_lo, {lo:#x}"); I(f"s_mov_b32 exec_hi, {hi:#x}")
    def fullexec(): I("s_mov_b64 exec, -1")
    def srd(dst, base, off, size):
        if off is None:
            I(f"s_mov_b32 s{dst}, s{base}"); I(f"s_mov_b32 s{dst+1}, s{base+1}")
        else:
            I(f"s_add_u32 s{dst}, s{base}, s{off}"); I(f"s_addc_u32 s{dst+1}, s{base+1}, 0")
        I(f"s_mov_b32 s{dst+2}, {size}"); I(f"s_mov_b32 s{dst+3}, 0x20000")
    def srd_rem(dst, base, off, total):
        I(f"s_add_u32 s{dst}, s{base}, s{off}"); I(f"s_addc_u32 s{dst+1}, s{base+1}, 0")
        I(f"s_sub_u32 s{dst+2}, {total}, s{off}"); I(f"s_mov_b32 s{dst+3}, 0x20000")
    def halves_add(D,tmp):
        for r in range(4): I(f"v_mov_b32 v{tmp+r}, v{D+r}")
        for r in range(4): I(f"v_permlane32_swap_b32 v{D+r}, v{tmp+r}")
        for r in range(4): I(f"v_add_f32_dpp v{D+r}, v{tmp+r}, v{D+r} row_ror:8 row_mask:0xf bank_mask:0xf")
    def silu(vs,ts):
        for v,t in zip(vs,ts): I(f"v_mul_f32 v{t}, 0xbfb8aa3b, v{v}")
        for v,t in zip(vs,ts): I(f"v_exp_f32 v{t}, v{t}")
        for v,t in zip(vs,ts): I(f"v_add_f32 v{t}, 1.0, v{t}")
        for v,t in zip(vs,ts): I(f"v_rcp_f32 v{t}, v{t}")
        for v,t in zip(vs,ts): I(f"v_mul_f32 v{v}, v{v}, v{t}")
    def ln_stats(S,S2,mean_b,inv):
        I(f"v_mul_f32 v{S}, {INV576:#x}, v{S}")
        I(f"v_mul_f32 v{S2}, {INV576:#x}, v{S2}")
        I(f"v_fma_f32 v{S2}, -v{S}, v{S}, v{S2}")
        I(f"v_max_f32 v{S2}, 0, v{S2}")
        rnd(mean_b,S)
        rnd(S2,S2)
        I(f"v_add_f32 v{S2}, {EPS:#x}, v{S2}")
        rnd(S2,S2)
        I(f"v_sqrt_f32 v{S2}, v{S2}")
        rnd(S2,S2)
        I(f"v_rcp_f32 v{inv}, v{S2}")
    def unpack2(d0,d1,s):
        I(f"v_and_b32 v{d1}, 0xffff0000, v{s}")
        I(f"v_lshlrev_b32 v{d0}, 16, v{s}")
    def modulate(x4, mean_b, inv, ca4, sa4, t4):
        for r in range(4): I(f"v_sub_f32 v{x4+r}, v{x4+r}, v{mean_b}")
        for r in range(4): rnd(x4+r,x4+r)
        for r in range(4): I(f"v_mul_f32 v{x4+r}, v{x4+r}, v{inv}")
        for r in range(4): rnd(x4+r,x4+r)
        for r in range(4): I(f"v_add_f32 v{t4+r}, 1.0, v{ca4+r}")
        for r in range(4): rnd(t4+r,t4+r)
        for r in range(4): I(f"v_mul_f32 v{x4+r}, v{x4+r}, v{t4+r}")
        for r in range(4): rnd(x4+r,x4+r)
        for r in range(4): I(f"v_add_f32 v{x4+r}, v{x4+r}, v{sa4+r}")
    def consts():
        for r,m in enumerate((0x03030303,0x0c0c0c0c,0x30303030,0xc0c0c0c0)):
            I(f"s_mov_b32 s{72+2*r}, {m:#x}"); I(f"s_mov_b32 s{73+2*r}, {m:#x}")
        I("v_and_b32 v6, 1, v1"); I("v_cmp_eq_u32 vcc, 1, v6")
        I("v_mov_b32 v6, 0xffff"); I("v_mov_b32 v4, 0xffff0000"); I("v_cndmask_b32 v6, v6, v4, vcc")
        I("s_sub_u32 s82, s6, 9"); I("s_lshl_b32 s82, s82, 4"); I("s_add_u32 s82, s82, s5")
        I("s_cmp_lt_u32 s82, 72"); I("s_cselect_b32 s81, 2, 0")
        I("s_cmp_lt_u32 s6, 9"); I("s_cselect_b32 s81, 1, s81")
        srd(44,40,None,256*STRIDE)
        I(f"s_mul_i32 s85, s4, {STRIDE}")
        I(f"s_mov_b32 s86, {STRIDE}")
    def rho(dst,tmp):
        I(f"v_lshrrev_b32 v{dst}, 3, v3"); I(f"v_lshl_add_u32 v{dst}, v{dst}, 2, v2")
    def mlp_prefetch():
        rho(4,None)
        I("v_and_b32 v5, 7, v3"); I("v_lshlrev_b32 v5, 4, v5")
        I("s_movk_i32 s7, 0x2400"); I("v_mad_u32_u24 v152, v4, s7, v5")
        I("s_movk_i32 s7, 0x480"); I("v_mad_u32_u24 v153, v4, s7, v5")
        I("s_mul_i32 s7, s3, 589824"); I("s_lshl_b32 s8, s82, 7"); I("s_add_u32 s7, s7, s8")
        srd_rem(56,28,7,5308416)
        I("s_mul_i32 s7, s82, 73728"); I("s_lshl_b32 s8, s3, 7"); I("s_add_u32 s7, s7, s8")
        srd_rem(60,30,7,5308416)
        for i in range(8):
            I(f"s_mov_b32 s84, {i*73728}")
            I(f"buffer_load_dwordx4 {vr(8+4*i)}, v152, s[56:59], s84 offen {wflag}")
        for i in range(8):
            I(f"s_mov_b32 s84, {i*9216}")
            I(f"buffer_load_dwordx4 {vr(40+4*i)}, v153, s[60:63], s84 offen {wflag}")
    def wo_prefetch():
        rho(4,None)
        I("v_and_b32 v5, 7, v3"); I("v_lshlrev_b32 v5, 4, v5")
        I("s_movk_i32 s7, 0x480"); I("v_mad_u32_u24 v153, v4, s7, v5")
        I("s_lshl_b32 s7, s5, 8"); I("s_lshl_b32 s8, s83, 5"); I("s_add_u32 s7, s7, s8"); I("s_mul_i32 s7, s7, 1152")
        I("s_lshl_b32 s8, s6, 7"); I("s_add_u32 s7, s7, s8")
        srd_rem(56,24,7,4718592)
        for i in range(4):
            I(f"s_mov_b32 s84, {i*9216}")
            I(f"buffer_load_dwordx4 {vr(8+4*i)}, v153, s[56:59], s84 offen {wflag}")
    def matvec(tile, nt, vals, A0, A1, acc):
        for i in range(nt):
            A = A0 if i%2==0 else A1
            expand(A, vals+i)
            src = "0" if i==0 else vr(acc)
            I(f"v_mfma_f32_16x16x32_bf16 {vr(acc)}, {vr(A)}, {vr(tile+4*i)}, {src}")

    a.raw(f"{NAME}_kernel:")
    I("s_cmp_ge_u32 s2, 256"); I("s_cbranch_scc1 L_end")
    I("s_load_dwordx16 s[16:31], s[0:1], 0")
    I("s_load_dwordx8 s[32:39], s[0:1], 64")
    I("s_load_dwordx2 s[40:41], s[0:1], 96")
    I("v_lshrrev_b32 v4, 6, v0")
    I("v_and_b32 v1, 63, v0")
    I("v_readfirstlane_b32 s3, v4")
    I("v_lshrrev_b32 v2, 4, v1")
    I("v_and_b32 v3, 15, v1")
    I("s_and_b32 s5, s2, 7"); I("s_lshl_b32 s5, s5, 1"); I("s_bfe_u32 s7, s2, 0x10003"); I("s_or_b32 s5, s5, s7")
    I("s_lshr_b32 s6, s2, 4")
    I("s_lshl_b32 s4, s5, 4"); I("s_or_b32 s4, s4, s6")
    I("s_mov_b32 s68, 4096"); I("s_mov_b32 s69, 8192"); I("s_mov_b32 s70, 12288")
    if stamps: I("v_mov_b32 v7, 0")
    I("s_cmp_eq_u32 s3, 0"); I("s_cbranch_scc1 L_ctrl")

    a.C("================ worker waves (1..8) ================")
    KB,VB,SB,TB=8,72,136,152
    I("s_sub_u32 s83, s3, 1")
    I("v_lshlrev_b32 v4, 8, v3"); I("v_lshl_add_u32 v4, v2, 4, v4")
    I("v_lshlrev_b32 v5, 10, v2"); I("v_lshl_add_u32 v5, v3, 4, v5")
    I("s_lshl_b32 s7, s4, 17"); I("s_lshl_b32 s8, s83, 14"); I("s_add_u32 s7, s7, s8")
    I("s_waitcnt lgkmcnt(0)")
    stamp(0)
    srd(48,18,7,16384); srd(52,20,7,16384)
    soff=["0","s68","s69","s70"]
    n=[0]
    def win():
        n[0]+=1
        if n[0]>=W: I(f"s_waitcnt vmcnt({W-1})")
    for t in range(4):
        for c in range(4):
            I(f"buffer_load_dwordx4 {vr(KB+(4*t+c)*4)}, v4, s[48:51], {soff[t]} offen offset:{c*64} {ldflag}")
            win()
    def vload(idx):
        t,r=divmod(idx,4)
        I(f"buffer_load_dwordx4 {vr(VB+idx*4)}, v5, s[52:55], {soff[t]} offen offset:{r*256} {ldflag}")
    for idx in range(VK):
        vload(idx); win()
    consts()
    stamp(1)
    I("s_barrier")
    stamp(2)
    for idx in range(VK,16): vload(idx)
    I("v_lshrrev_b32 v4, 3, v3"); I("v_lshlrev_b32 v4, 8, v4"); I("v_lshl_add_u32 v4, v2, 4, v4")
    for c in range(4): I(f"ds_read_b128 {vr(TB+4*c)}, v4 offset:{QL+c*64}")
    I("s_waitcnt vmcnt(16)")
    I("s_waitcnt lgkmcnt(0)")
    for c in range(4):
        for t in range(4):
            src = "0" if c==0 else vr(SB+4*t)
            I(f"v_mfma_f32_16x16x32_bf16 {vr(SB+4*t)}, {vr(KB+(4*t+c)*4)}, {vr(TB+4*c)}, {src}")
    a.C("scores -> bf16 -> scale -> bf16")
    for i in range(16): rnd(SB+i,SB+i)
    for i in range(16): I(f"v_mul_f32 v{SB+i}, {SCALE:#x}, v{SB+i}")
    for i in range(16): rnd(SB+i,SB+i)
    T=TB
    I(f"v_max3_f32 v{T}, v{SB}, v{SB+1}, v{SB+2}")
    I(f"v_max3_f32 v{T+1}, v{SB+3}, v{SB+4}, v{SB+5}")
    I(f"v_max3_f32 v{T}, v{T}, v{SB+6}, v{SB+7}")
    I(f"v_max3_f32 v{T+1}, v{T+1}, v{SB+8}, v{SB+9}")
    I(f"v_max3_f32 v{T}, v{T}, v{SB+10}, v{SB+11}")
    I(f"v_max3_f32 v{T+1}, v{T+1}, v{SB+12}, v{SB+13}")
    I(f"v_max3_f32 v{T}, v{T}, v{SB+14}, v{SB+15}")
    I(f"v_max_f32 v{T}, v{T}, v{T+1}")
    xswap("v_max_f32",[T],[T+1],16); xswap("v_max_f32",[T],[T+1],32)
    I(f"v_lshrrev_b32 v{T+3}, 3, v3"); I(f"v_lshlrev_b32 v{T+3}, 5, v{T+3}")
    I("s_lshl_b32 s7, s83, 2"); I(f"v_add_u32 v{T+2}, s7, v{T+3}")
    I(f"ds_write_b32 v{T+2}, v{T} offset:{WMAX}")
    I("s_waitcnt lgkmcnt(0)")
    I("s_barrier")
    I(f"ds_read_b128 {vr(T+4)}, v{T+3} offset:{WMAX}")
    I(f"ds_read_b128 {vr(T+8)}, v{T+3} offset:{WMAX+16}")
    I("s_cmp_eq_u32 s81, 1"); I("s_cbranch_scc1 L_w_wo")
    I("s_cmp_eq_u32 s81, 2"); I("s_cbranch_scc1 L_w_mlp")

    def softmax_pv(nW):
        T=TB
        I("s_waitcnt lgkmcnt(0)")
        I(f"v_max3_f32 v{T}, v{T+4}, v{T+5}, v{T+6}")
        I(f"v_max3_f32 v{T+1}, v{T+7}, v{T+8}, v{T+9}")
        I(f"v_max3_f32 v{T}, v{T}, v{T+10}, v{T+11}")
        I(f"v_max_f32 v{T}, v{T}, v{T+1}")
        I(f"v_mul_f32 v{T}, 0xbfb8aa3b, v{T}")
        I(f"s_mov_b32 s7, {LOG2E:#x}")
        for i in range(16): I(f"v_fma_f32 v{SB+i}, v{SB+i}, s7, v{T}")
        for i in range(16): I(f"v_exp_f32 v{SB+i}, v{SB+i}")
        I(f"v_add_f32 v{T}, v{SB}, v{SB+1}"); I(f"v_add_f32 v{T+1}, v{SB+2}, v{SB+3}")
        for i in range(4,16,2):
            I(f"v_add_f32 v{T}, v{T}, v{SB+i}"); I(f"v_add_f32 v{T+1}, v{T+1}, v{SB+i+1}")
        I(f"v_add_f32 v{T}, v{T}, v{T+1}")
        for i in range(16): dup(SB+i,SB+i)
        xswap("v_add_f32",[T],[T+1],16); xswap("v_add_f32",[T],[T+1],32)
        for i in range(16): I(f"v_and_b32 v{SB+i}, v{SB+i}, v6")
        I(f"ds_write_b32 v{T+2}, v{T} offset:{WSUM}")
        stamp(3)
        ACC=T+12; A0,A1=T+4,T+8
        for idx in range(16):
            A=A0 if idx%2==0 else A1
            expand(A,SB+idx)
            I(f"s_waitcnt vmcnt({15-idx+nW})")
            src="0" if idx==0 else vr(ACC)
            I(f"v_mfma_f32_16x16x32_bf16 {vr(ACC)}, {vr(A)}, {vr(VB+4*idx)}, {src}")
        I(f"v_lshrrev_b32 v4, 1, v2"); I("v_lshlrev_b32 v4, 9, v4"); I("v_lshl_add_u32 v4, v3, 5, v4")
        I("v_and_b32 v5, 1, v2"); I("v_lshl_add_u32 v4, v5, 4, v4")
        I("s_lshl_b32 s7, s83, 10"); I("v_add_u32 v4, s7, v4")
        I(f"ds_write_b128 v4, {vr(ACC)} offset:{OBUF}")
        I("s_waitcnt lgkmcnt(0)")
        stamp(4)
        I("s_barrier")

    softmax_pv(0)
    finish()

    a.label("L_w_wo")
    wo_prefetch()
    softmax_pv(4)
    a.C("wo tail: gather 16 partial o (32 dims of this wave) + (m,l)")
    O1,O2,M1,M2,T=72,76,80,82,88
    I("v_lshrrev_b32 v4, 3, v1")
    I("s_lshl_b32 s7, s5, 4"); I("v_add_u32 v4, s7, v4")
    I("v_mul_u32_u24 v4, s86, v4")
    I("v_and_b32 v5, 7, v1"); I("v_lshlrev_b32 v5, 4, v5")
    I("s_lshl_b32 s7, s83, 7"); I("v_add3_u32 v84, v4, v5, s7")
    I("s_lshr_b32 s7, s83, 2"); I("s_lshl_b32 s7, s7, 3"); I("v_add_u32 v85, s7, v4")
    I(f"s_mov_b32 s84, {8*STRIDE}")
    poll([f"buffer_load_dwordx2 v[{M1}:{M1+1}], v85, s[44:47], 0 offen offset:{ML} sc1",
          f"buffer_load_dwordx2 v[{M2}:{M2+1}], v85, s[44:47], s84 offen offset:{ML} sc1",
          f"buffer_load_dwordx4 {vr(O1)}, v84, s[44:47], 0 offen offset:{P3} sc1",
          f"buffer_load_dwordx4 {vr(O2)}, v84, s[44:47], s84 offen offset:{P3} sc1"],
         list(range(72,84)), "o", 86)
    stamp(5)
    I(f"v_max_f32 v{T}, v{M1}, v{M2}")
    ror("v_max_f32",[T],8); xswap("v_max_f32",[T],[T+1],16); xswap("v_max_f32",[T],[T+1],32)
    I(f"v_sub_f32 v{M1}, v{M1}, v{T}"); I(f"v_sub_f32 v{M2}, v{M2}, v{T}")
    I(f"v_mul_f32 v{M1}, {LOG2E:#x}, v{M1}"); I(f"v_mul_f32 v{M2}, {LOG2E:#x}, v{M2}")
    I(f"v_exp_f32 v{M1}, v{M1}"); I(f"v_exp_f32 v{M2}, v{M2}")
    I(f"v_mul_f32 v{T+4}, v{M1}, v{M1+1}"); I(f"v_fmac_f32 v{T+4}, v{M2}, v{M2+1}")
    for r in range(4): I(f"v_mul_f32 v{T+r}, v{M1}, v{O1+r}")
    for r in range(4): I(f"v_fmac_f32 v{T+r}, v{M2}, v{O2+r}")
    R5=[T,T+1,T+2,T+3,T+4]; Tm=[T+5,T+6,T+7,T+8,T+9]
    ror("v_add_f32",R5,8); xswap("v_add_f32",R5,Tm,16); xswap("v_add_f32",R5,Tm,32)
    I(f"v_rcp_f32 v{T+4}, v{T+4}")
    for r in range(4): I(f"v_mul_f32 v{T+r}, v{T+r}, v{T+4}")
    for r in range(4): dup(T+r,T+r)
    I("s_lshl_b32 s7, s3, 8"); I("v_add_u32 v5, s7, v5")
    I(f"ds_write_b128 v5, {vr(T)} offset:{SCR}")
    rho(4,None); I("v_lshlrev_b32 v4, 2, v4"); I("v_add_u32 v4, s7, v4")
    for i in range(4): I(f"ds_read_b32 v{T+10+i}, v4 offset:{SCR+32*i}")
    I("s_waitcnt lgkmcnt(0)")
    for i in range(4): I(f"v_and_b32 v{T+10+i}, v{T+10+i}, v6")
    ACC=T+24
    matvec(8,4,T+10,T+16,T+20,ACC)
    halves_add(ACC,T+16)
    I("v_lshlrev_b32 v4, 5, v3"); I("v_lshl_add_u32 v4, v2, 4, v4"); I("s_lshl_b32 s7, s83, 8"); I("v_add_u32 v4, s7, v4")
    setexec(0x00ff00ff,0)
    I(f"ds_write_b128 v4, {vr(ACC)} offset:{RED}")
    fullexec()
    I("s_waitcnt lgkmcnt(0)")
    I("s_barrier")
    I("s_cmp_eq_u32 s83, 0"); sk=L("wo_done"); I(f"s_cbranch_scc0 {sk}")
    I("v_lshlrev_b32 v4, 2, v1")
    for i in range(8): I(f"ds_read_b32 v{T+i}, v4 offset:{RED+256*i}")
    I("s_waitcnt lgkmcnt(0)")
    I(f"v_add_f32 v{T}, v{T}, v{T+1}"); I(f"v_add_f32 v{T+2}, v{T+2}, v{T+3}"); I(f"v_add_f32 v{T+4}, v{T+4}, v{T+5}"); I(f"v_add_f32 v{T+6}, v{T+6}, v{T+7}")
    I(f"v_add_f32 v{T}, v{T}, v{T+2}"); I(f"v_add_f32 v{T+4}, v{T+4}, v{T+6}"); I(f"v_add_f32 v{T}, v{T}, v{T+4}")
    I(f"buffer_store_dword v{T}, v4, s[44:47], s85 offen offset:{P4} sc1")
    stamp(6)
    a.label(sk)
    finish()

    a.label("L_w_mlp")
    mlp_prefetch()
    softmax_pv(16)
    a.label("L_mlp_tail")
    a.C("mlp tail (9 waves): gather attn partials + mod vectors + x")
    G=72
    GA,SBv,CBv,GBv,XV=88,92,96,100,104
    T=112
    I("v_lshlrev_b32 v4, 4, v2")
    I("v_add_u32 v4, s3, v4")
    I("v_mul_u32_u24 v4, s86, v4")
    I("v_lshl_add_u32 v106, v3, 4, v4")
    I("s_lshl_b32 s7, s3, 6"); I("v_lshl_add_u32 v5, v3, 2, s7")
    for k,base in enumerate((1152,1728,2304,2880)):
        I(f"v_add_u32 v4, {base}, v5")
        I(f"v_lshrrev_b32 v{107+k}, 7, v4"); I(f"v_add_u32 v{107+k}, {216-9}, v{107+k}")
        I(f"v_mul_u32_u24 v{107+k}, s86, v{107+k}")
        I("v_and_b32 v4, 127, v4"); I(f"v_lshl_add_u32 v{107+k}, v4, 2, v{107+k}")
    I("v_lshlrev_b32 v111, 1, v5")
    srd(64,16,None,1152)
    I(f"buffer_load_dwordx2 v[{XV}:{XV+1}], v111, s[64:67], 0 offen")
    lds_=[]
    for k in range(4):
        lds_.append(f"buffer_load_dwordx4 {vr(GA+4*k)}, v{107+k}, s[44:47], 0 offen offset:{P1B} sc1")
    I(f"s_mov_b32 s88, {64*STRIDE}"); I(f"s_mov_b32 s89, {128*STRIDE}"); I(f"s_mov_b32 s90, {192*STRIDE}")
    for k,so in enumerate(("0","s88","s89","s90")):
        lds_.append(f"buffer_load_dwordx4 {vr(G+4*k)}, v106, s[44:47], {so} offen offset:{P4} sc1")
    poll(lds_, list(range(72,104)), "x", T)
    stamp(9)
    for r in range(4): I(f"v_add_f32 v{G+r}, v{G+r}, v{G+4+r}")
    for r in range(4): I(f"v_add_f32 v{G+8+r}, v{G+8+r}, v{G+12+r}")
    for r in range(4): I(f"v_add_f32 v{G+r}, v{G+r}, v{G+8+r}")
    R4=[G,G+1,G+2,G+3]; Tm=[G+4,G+5,G+6,G+7]
    xswap("v_add_f32",R4,Tm,16); xswap("v_add_f32",R4,Tm,32)
    X1=G+8
    unpack2(X1,X1+1,XV); unpack2(X1+2,X1+3,XV+1)
    for r in range(4): rnd(G+r,G+r)
    for r in range(4): I(f"v_mul_f32 v{G+r}, v{G+r}, v{GA+r}")
    for r in range(4): rnd(G+r,G+r)
    for r in range(4): I(f"v_add_f32 v{X1+r}, v{X1+r}, v{G+r}")
    for r in range(4): rnd(X1+r,X1+r)
    S,S2=T,T+1
    I(f"v_add_f32 v{S}, v{X1}, v{X1+1}"); I(f"v_mul_f32 v{S2}, v{X1}, v{X1}")
    I(f"v_add_f32 v{S}, v{S}, v{X1+2}"); I(f"v_fmac_f32 v{S2}, v{X1+1}, v{X1+1}")
    I(f"v_add_f32 v{S}, v{S}, v{X1+3}"); I(f"v_fmac_f32 v{S2}, v{X1+2}, v{X1+2}")
    I(f"v_fmac_f32 v{S2}, v{X1+3}, v{X1+3}")
    for k in (8,4,2,1): ror("v_add_f32",[S,S2],k)
    I("s_lshl_b32 s7, s3, 3"); I("v_mov_b32 v4, s7")
    I(f"ds_write_b64 v4, v[{S}:{S+1}] offset:{STAT}")
    I("s_waitcnt lgkmcnt(0)")
    I("s_barrier")
    I("v_mov_b32 v4, 0")
    for i in range(4): I(f"ds_read_b128 {vr(T+4+4*i)}, v4 offset:{STAT+16*i}")
    I(f"ds_read_b64 v[{T+20}:{T+21}], v4 offset:{STAT+64}")
    I("s_waitcnt lgkmcnt(0)")
    I(f"v_add_f32 v{S}, v{T+4}, v{T+6}"); I(f"v_add_f32 v{S2}, v{T+5}, v{T+7}")
    for i in range(2,9):
        I(f"v_add_f32 v{S}, v{S}, v{T+4+2*i}"); I(f"v_add_f32 v{S2}, v{S2}, v{T+5+2*i}")
    ln_stats(S,S2,T+2,T+3)
    H=G
    for r in range(4): I(f"v_mov_b32 v{H+r}, v{X1+r}")
    modulate(H,T+2,T+3,CBv,SBv,T+4)
    for r in range(4): dup(H+r,H+r)
    I("s_lshl_b32 s7, s3, 8"); I("v_lshl_add_u32 v5, v3, 4, s7")
    I(f"ds_write_b128 v5, {vr(H)} offset:{SCR}")
    rho(4,None); I("v_lshlrev_b32 v4, 2, v4"); I("v_add_u32 v110, s7, v4")
    for i in range(8): I(f"ds_read_b32 v{T+4+i}, v110 offset:{SCR+32*i}")
    I("s_waitcnt lgkmcnt(0)")
    for i in range(8): I(f"v_and_b32 v{T+4+i}, v{T+4+i}, v6")
    ACC=T+20
    matvec(8,8,T+4,T+12,T+16,ACC)
    halves_add(ACC,T+12)
    I("v_lshlrev_b32 v109, 5, v3"); I("v_lshl_add_u32 v109, v2, 4, v109")
    I("v_add_u32 v4, s7, v109")
    setexec(0x00ff00ff,0)
    I(f"ds_write_b128 v4, {vr(ACC)} offset:{RED}")
    fullexec()
    I("s_waitcnt lgkmcnt(0)")
    I("s_barrier")
    I("v_lshlrev_b32 v4, 2, v1")
    for i in range(9): I(f"ds_read_b32 v{T+4+i}, v4 offset:{RED+256*i}")
    I("s_waitcnt lgkmcnt(0)")
    Y=T+4
    I(f"v_add_f32 v{Y}, v{Y}, v{Y+1}"); I(f"v_add_f32 v{Y+2}, v{Y+2}, v{Y+3}"); I(f"v_add_f32 v{Y+4}, v{Y+4}, v{Y+5}"); I(f"v_add_f32 v{Y+6}, v{Y+6}, v{Y+7}")
    I(f"v_add_f32 v{Y}, v{Y}, v{Y+2}"); I(f"v_add_f32 v{Y+4}, v{Y+4}, v{Y+6}"); I(f"v_add_f32 v{Y}, v{Y}, v{Y+8}"); I(f"v_add_f32 v{Y}, v{Y}, v{Y+4}")
    rnd(Y,Y)
    silu([Y],[Y+1])
    dup(Y,Y)
    I("v_add_u32 v4, s7, v4")
    I(f"ds_write_b32 v4, v{Y} offset:{SCR}")
    for i in range(8): I(f"ds_read_b32 v{T+4+i}, v110 offset:{SCR+32*i}")
    I("s_waitcnt lgkmcnt(0)")
    for i in range(8): I(f"v_and_b32 v{T+4+i}, v{T+4+i}, v6")
    matvec(40,8,T+4,T+12,T+16,ACC)
    halves_add(ACC,T+12)
    I("s_lshl_b32 s7, s3, 8"); I("s_add_u32 s7, s7, s85")
    setexec(0x00ff00ff,0)
    I(f"buffer_store_dwordx4 {vr(ACC)}, v109, s[44:47], s7 offen offset:{P5} sc1")
    fullexec()
    stamp(10)
    I("s_cmp_lt_u32 s82, 4"); sk=L("mlp_done"); I(f"s_cbranch_scc0 {sk}")
    a.C("final reducers: u<4, wave wv -> columns 64wv+16u..+16")
    I("v_and_b32 v5, 3, v1"); I("s_lshl_b32 s7, s82, 2"); I("v_add_u32 v4, s7, v5"); I("v_lshlrev_b32 v4, 2, v4")
    for r in range(4): I(f"ds_bpermute_b32 v{T+24+r}, v4, v{X1+r}")
    for r in range(4): I(f"ds_bpermute_b32 v{T+28+r}, v4, v{GBv+r}")
    I("v_lshrrev_b32 v4, 2, v1"); I("v_lshlrev_b32 v4, 4, v4"); I("v_add_u32 v4, 9, v4"); I("v_mul_u32_u24 v4, s86, v4")
    I("s_lshl_b32 s7, s3, 6"); I("s_lshl_b32 s8, s82, 4"); I("s_add_u32 s7, s7, s8")
    I("v_lshl_add_u32 v5, v5, 2, s7")
    I("v_lshl_add_u32 v106, v5, 2, v4")
    I("v_lshlrev_b32 v107, 1, v5")
    F=72
    for r in range(4): I(f"v_mov_b32 v{F+16+r}, 0")
    I(f"s_mov_b32 s88, {2*STRIDE}"); I(f"s_mov_b32 s89, {3*STRIDE}"); I(f"s_mov_b32 s90, {4*STRIDE}")
    lds_=[f"buffer_load_dwordx4 {vr(F+4*k)}, v106, s[44:47], {so} offen offset:{P5} sc1" for k,so in enumerate(("0","s86","s88","s89"))]
    lds_+=["s_mov_b32 exec_hi, 0", f"buffer_load_dwordx4 {vr(F+16)}, v106, s[44:47], s90 offen offset:{P5} sc1", "s_mov_b32 exec_hi, -1"]
    poll(lds_, list(range(F,F+20)), "f", T)
    stamp(11)
    for r in range(4): I(f"v_add_f32 v{F+r}, v{F+r}, v{F+4+r}")
    for r in range(4): I(f"v_add_f32 v{F+8+r}, v{F+8+r}, v{F+12+r}")
    for r in range(4): I(f"v_add_f32 v{F+r}, v{F+r}, v{F+16+r}")
    for r in range(4): I(f"v_add_f32 v{F+r}, v{F+r}, v{F+8+r}")
    R4=[F,F+1,F+2,F+3]; Tm=[F+4,F+5,F+6,F+7]
    ror("v_add_f32",R4,4); ror("v_add_f32",R4,8); xswap("v_add_f32",R4,Tm,16); xswap("v_add_f32",R4,Tm,32)
    I("s_waitcnt lgkmcnt(0)")
    for r in range(4): rnd(F+r,F+r)
    for r in range(4): I(f"v_mul_f32 v{F+r}, v{F+r}, v{T+28+r}")
    for r in range(4): rnd(F+r,F+r)
    for r in range(4): I(f"v_add_f32 v{F+r}, v{F+r}, v{T+24+r}")
    I(f"v_cvt_pk_bf16_f32 v{F+4}, v{F}, v{F+1}"); I(f"v_cvt_pk_bf16_f32 v{F+5}, v{F+2}, v{F+3}")
    srd(64,36,None,1152)
    setexec(0xf,0)
    I(f"buffer_store_dwordx2 v[{F+4}:{F+5}], v107, s[64:67], 0 offen")
    a.label(sk)
    finish()

    a.label("L_ctrl")
    a.C("================ control wave (0) ================")
    I("s_setprio 3")
    TILE,XF,CV,XR,AV,A0,A1,ACC,GB,T=8,80,88,90,92,110,114,118,122,154
    I("s_waitcnt lgkmcnt(0)")
    stamp(0)
    srd(64,32,None,1152)
    I("s_and_b32 s7, s4, 7"); I("s_mul_i32 s7, s7, 144")
    I("v_lshlrev_b32 v4, 3, v1")
    I(f"buffer_load_dwordx2 v[{CV}:{CV+1}], v4, s[64:67], s7 offen")
    srd(48,16,None,1152)
    I("s_lshr_b32 s87, s6, 1"); I("s_mul_i32 s87, s87, 72")
    I("s_lshl_b32 s7, s87, 1")
    I(f"buffer_load_dwordx2 v[{XR}:{XR+1}], v4, s[48:51], s7 offen")
    I("v_lshlrev_b32 v5, 5, v1")
    I(f"buffer_load_dwordx4 {vr(XF)}, v5, s[48:51], 0 offen")
    I(f"buffer_load_dwordx4 {vr(XF+4)}, v5, s[48:51], 0 offen offset:16")
    I("s_cmp_lt_u32 s4, 216"); nomod=L("nomod"); I(f"s_cbranch_scc0 {nomod}")
    I("s_and_b32 s7, s4, 7"); I("s_mul_i32 s7, s7, 497664")
    I("s_lshr_b32 s8, s4, 3"); I("s_lshl_b32 s8, s8, 8"); I("s_add_u32 s7, s7, s8")
    srd_rem(52,34,7,3981312)
    I("s_movk_i32 s7, 0x1b00"); I("v_mul_u32_u24 v4, s7, v2"); I("v_lshl_add_u32 v4, v3, 4, v4")
    for i in range(18):
        I(f"s_mov_b32 s84, {i*27648}")
        I(f"buffer_load_dwordx4 {vr(TILE+4*i)}, v4, s[52:55], s84 offen {wflag}")
    a.label(nomod)
    consts()
    I("v_mov_b32 v156, -1"); I("v_mov_b32 v157, -1"); I("v_mov_b32 v158, -1"); I("v_mov_b32 v159, -1")
    I("v_lshlrev_b32 v5, 4, v1")
    for k in range(3): I(f"buffer_store_dwordx4 v[156:159], v5, s[44:47], s85 offen offset:{1024*k} sc1")
    I("s_cmp_eq_u32 s81, 2"); nc=L("noclr"); I(f"s_cbranch_scc0 {nc}")
    I(f"s_add_u32 s7, s85, {P5}")
    for k in range(2): I(f"buffer_store_dwordx4 v[156:159], v5, s[44:47], s7 offen offset:{1024*k} sc1")
    setexec(0xffff,0)
    I(f"buffer_store_dwordx4 v[156:159], v5, s[44:47], s7 offen offset:2048 sc1")
    fullexec()
    a.label(nc)
    I("v_cmp_gt_u32 vcc, 8, v3"); I("v_cndmask_b32 v162, 0, v6, vcc")
    I("v_lshlrev_b32 v163, 2, v2")
    I("v_lshlrev_b32 v164, 4, v1")
    I("s_waitcnt vmcnt(0)")
    stamp(1)
    I("v_mov_b32 v4, s4"); I("v_mov_b32 v5, 1")
    setexec(1,0)
    I("global_store_byte v4, v5, s[38:39] sc1")
    fullexec()
    for k in range(2): unpack2(T+2*k,T+2*k+1,CV+k)
    silu([T,T+1,T+2,T+3],[T+4,T+5,T+6,T+7])
    for r in range(4): dup(T+r,T+r)
    I(f"ds_write_b128 v164, {vr(T)} offset:{TL}")
    I("s_cmp_lt_u32 s4, 216"); nomod2=L("nomod2"); I(f"s_cbranch_scc0 {nomod2}")
    for i in range(18): I(f"ds_read_b32 v{AV+i}, v163 offset:{TL+16*i}")
    I("s_waitcnt lgkmcnt(0)")
    for i in range(18): I(f"v_and_b32 v{AV+i}, v{AV+i}, v162")
    matvec(TILE,18,AV,A0,A1,ACC)
    I("v_lshlrev_b32 v4, 5, v3"); I("v_lshl_add_u32 v4, v2, 4, v4")
    setexec(0xffffffff,0)
    I(f"buffer_store_dwordx4 {vr(ACC)}, v4, s[44:47], s85 offen offset:{P1} sc1")
    fullexec()
    a.label(nomod2)
    stamp(2)
    I("s_lshl_b32 s7, s87, 13"); I("s_lshl_b32 s8, s5, 9"); I("s_add_u32 s7, s7, s8")
    I("s_and_b32 s8, s6, 1"); I("s_lshl_b32 s8, s8, 8"); I("s_add_u32 s7, s7, s8")
    srd_rem(52,22,7,4718592)
    I("v_lshlrev_b32 v4, 13, v2"); I("v_lshl_add_u32 v4, v3, 4, v4")
    for i in range(18):
        I(f"s_mov_b32 s84, {i*32768}")
        I(f"buffer_load_dwordx4 {vr(TILE+4*i)}, v4, s[52:55], s84 offen {wflag}")
    S,S2=T,T+1
    I(f"v_mov_b32 v{S}, 0"); I(f"v_mov_b32 v{S2}, 0")
    for k in range(8):
        unpack2(T+2,T+3,XF+k)
        I(f"v_add_f32 v{S}, v{S}, v{T+2}"); I(f"v_fmac_f32 v{S2}, v{T+2}, v{T+2}")
        I(f"v_add_f32 v{S}, v{S}, v{T+3}"); I(f"v_fmac_f32 v{S2}, v{T+3}, v{T+3}")
    for k in (8,4,2,1): ror("v_add_f32",[S,S2],k)
    xswap("v_add_f32",[S,S2],[T+2,T+3],16); xswap("v_add_f32",[S,S2],[T+2,T+3],32)
    MB,INV=XF,XF+1
    ln_stats(S,S2,MB,INV)
    lo=L("flag"); dn=L("flagd")
    I("s_mov_b32 s80, 0"); I("v_lshlrev_b32 v4, 2, v1")
    a.label(lo)
    I("global_load_dword v5, v4, s[38:39] sc1")
    I("s_waitcnt vmcnt(0)")
    I("v_cmp_ne_u32 vcc, 0x01010101, v5")
    I(f"s_cbranch_vccz {dn}")
    I("s_add_u32 s80, s80, 1"); I(f"s_cmp_lt_u32 s80, {SPIN}"); I(f"s_cbranch_scc1 {lo}")
    a.label(dn)
    stamp(3)
    I("v_and_b32 v4, 31, v1"); I("v_lshl_add_u32 v4, v4, 2, s87")
    I("v_cmp_lt_u32 vcc, 31, v1"); I("v_mov_b32 v5, 576"); I("v_cndmask_b32 v5, 0, v5, vcc"); I("v_add_u32 v4, v4, v5")
    I("v_lshrrev_b32 v5, 7, v4"); I("v_lshlrev_b32 v5, 3, v5"); I("v_mul_u32_u24 v5, s86, v5")
    I("v_and_b32 v4, 127, v4"); I("v_lshl_add_u32 v4, v4, 2, v5")
    def soffs(n,step,base=88):
        res=["0"]
        for k in range(1,n):
            I(f"s_mov_b32 s{base+k-1}, {k*step}"); res.append(f"s{base+k-1}")
        return res
    so=soffs(8,STRIDE)
    setexec(0x3ffff,0x3ffff)
    poll([f"buffer_load_dwordx4 {vr(GB+4*k)}, v4, s[44:47], {so[k]} offen offset:{P1} sc1" for k in range(8)], list(range(GB,GB+32)), "m", T)
    fullexec()
    stamp(4)
    def sum8(G):
        for k in (0,2,4,6):
            for r in range(4): I(f"v_add_f32 v{G+4*k+r}, v{G+4*k+r}, v{G+4*k+4+r}")
        for k in (0,4):
            for r in range(4): I(f"v_add_f32 v{G+4*k+r}, v{G+4*k+r}, v{G+4*k+8+r}")
        for r in range(4): I(f"v_add_f32 v{G+r}, v{G+r}, v{G+16+r}")
    sum8(GB)
    for r in range(4): rnd(GB+r,GB+r)
    for r in range(4): I(f"v_mov_b32 v{GB+4+r}, v{GB+r}")
    for r in range(4): I(f"v_permlane32_swap_b32 v{GB+r}, v{GB+4+r}")
    H=GB+8
    unpack2(H,H+1,XR); unpack2(H+2,H+3,XR+1)
    modulate(H,MB,INV,GB+4,GB,GB+12)
    for r in range(4): dup(H+r,H+r)
    I(f"ds_write_b128 v164, {vr(H)} offset:{TL}")
    for i in range(18): I(f"ds_read_b32 v{AV+i}, v163 offset:{TL+16*i}")
    I("s_waitcnt lgkmcnt(0)")
    for i in range(18): I(f"v_and_b32 v{AV+i}, v{AV+i}, v162")
    matvec(TILE,18,AV,A0,A1,ACC)
    I("v_lshlrev_b32 v4, 5, v3"); I("v_lshl_add_u32 v4, v2, 4, v4")
    setexec(0xffffffff,0)
    I(f"buffer_store_dwordx4 {vr(ACC)}, v4, s[44:47], s85 offen offset:{P2} sc1")
    fullexec()
    stamp(5)
    I("s_sub_u32 s7, s4, 216"); I("s_cmp_lt_u32 s7, 18"); nr=L("nored"); I(f"s_cbranch_scc0 {nr}")
    I("s_add_u32 s7, s7, 9"); I(f"s_mul_i32 s7, s7, {8*STRIDE}"); I("v_add_u32 v4, s7, v164")
    setexec(0xffffffff,0)
    poll([f"buffer_load_dwordx4 {vr(GB+4*k)}, v4, s[44:47], {so[k]} offen offset:{P1} sc1" for k in range(8)], list(range(GB,GB+32)), "b", T)
    sum8(GB)
    for r in range(4): rnd(GB+r,GB+r)
    I(f"buffer_store_dwordx4 {vr(GB)}, v164, s[44:47], s85 offen offset:{P1B} sc1")
    fullexec()
    a.label(nr)
    I("v_lshrrev_b32 v4, 5, v1"); I("s_lshl_b32 s7, s5, 4"); I("v_add_u32 v4, s7, v4"); I("v_mul_u32_u24 v4, s86, v4")
    I("v_and_b32 v5, 31, v1"); I("v_lshl_add_u32 v4, v5, 4, v4")
    so=soffs(8,2*STRIDE)
    poll([f"buffer_load_dwordx4 {vr(GB+4*k)}, v4, s[44:47], {so[k]} offen offset:{P2} sc1" for k in range(8)], list(range(GB,GB+32)), "q", T)
    sum8(GB)
    I(f"v_cvt_pk_bf16_f32 v{GB+4}, v{GB}, v{GB+1}"); I(f"v_cvt_pk_bf16_f32 v{GB+5}, v{GB+2}, v{GB+3}")
    I("v_lshlrev_b32 v4, 3, v1")
    I(f"ds_write_b64 v4, v[{GB+4}:{GB+5}] offset:{QL}")
    I("s_waitcnt lgkmcnt(0)")
    stamp(6)
    I("s_barrier")
    I("s_cmp_eq_u32 s81, 2"); nm=L("nomlp"); I(f"s_cbranch_scc0 {nm}")
    mlp_prefetch()
    a.label(nm)
    I("s_barrier")
    I("v_lshlrev_b32 v152, 4, v1")
    I("s_barrier")
    stamp(7)
    O=72
    for k in range(8): I(f"ds_read_b128 {vr(O+4*k)}, v152 offset:{OBUF+1024*k}")
    I("v_mov_b32 v4, 0")
    for k in range(4): I(f"ds_read_b128 {vr(O+32+4*k)}, v4 offset:{WMAX+16*k}")
    for k in range(4): I(f"ds_read_b128 {vr(O+48+4*k)}, v4 offset:{WSUM+16*k}")
    I("s_waitcnt lgkmcnt(8)")
    sum8(O)
    I(f"buffer_store_dwordx4 {vr(O)}, v152, s[44:47], s85 offen offset:{P3} sc1")
    I("s_waitcnt lgkmcnt(0)")
    M=O+32; Sx=O+48; R=O+64
    for h in range(2):
        b=M+8*h
        I(f"v_max3_f32 v{R+2*h}, v{b}, v{b+1}, v{b+2}"); I(f"v_max3_f32 v{R+2*h}, v{R+2*h}, v{b+3}, v{b+4}")
        I(f"v_max3_f32 v{R+2*h}, v{R+2*h}, v{b+5}, v{b+6}"); I(f"v_max_f32 v{R+2*h}, v{R+2*h}, v{b+7}")
        b=Sx+8*h
        I(f"v_add_f32 v{b}, v{b}, v{b+1}"); I(f"v_add_f32 v{b+2}, v{b+2}, v{b+3}"); I(f"v_add_f32 v{b+4}, v{b+4}, v{b+5}"); I(f"v_add_f32 v{b+6}, v{b+6}, v{b+7}")
        I(f"v_add_f32 v{b}, v{b}, v{b+2}"); I(f"v_add_f32 v{b+4}, v{b+4}, v{b+6}"); I(f"v_add_f32 v{R+2*h+1}, v{b}, v{b+4}")
    I("v_mov_b32 v4, 0")
    setexec(1,0)
    I(f"buffer_store_dwordx4 {vr(R)}, v4, s[44:47], s85 offen offset:{ML} sc1")
    fullexec()
    stamp(8)
    I("s_cmp_eq_u32 s81, 2"); I("s_cbranch_scc1 L_mlp_tail")
    finish()
    a.label("L_end")
    I("s_endpgm")

    body=a.finish()
    out=HEADER
    out+=f"; @launch grid=(256,1,1) block=(576,1,1) lds={LDS_BYTES}\n"
    out+='.amdgcn_target "amdgcn-amd-amdhsa--gfx950"\n.text\n'
    out+=f".globl {NAME}_kernel\n.p2align 8\n.type {NAME}_kernel,@function\n"
    out+=body
    out+=f""".section .rodata,"a"
.p2align 6
.amdhsa_kernel {NAME}_kernel
  .amdhsa_next_free_vgpr 168
  .amdhsa_next_free_sgpr 100
  .amdhsa_accum_offset 168
  .amdhsa_group_segment_fixed_size 0
  .amdhsa_float_denorm_mode_32 3
  .amdhsa_kernarg_size 104
  .amdhsa_user_sgpr_count 2
  .amdhsa_user_sgpr_kernarg_segment_ptr 1
  .amdhsa_system_sgpr_workgroup_id_x 1
.end_amdhsa_kernel
"""
    return out

if __name__=="__main__":
    import argparse
    p=argparse.ArgumentParser()
    p.add_argument("-o",default="cdna_kernels/"+NAME+".s")
    p.add_argument("--W",type=int,default=4); p.add_argument("--VK",type=int,default=8)
    p.add_argument("--ld",default=""); p.add_argument("--wf",default=""); p.add_argument("--stamps",action="store_true")
    x=p.parse_args()
    open(x.o,"w").write(gen(W=x.W,VK=x.VK,ldflag=x.ld,wflag=x.wf,stamps=x.stamps))
```

```python
from asmlib import Asm

NAME="adaLN_cond__gqa_block_cached__dense_activation_silu__decode"
STRIDE=2816
P1,P2,P3,ML,FL=0,1024,1536,2560,2688
P4A,P5A,P1BA,F4A=0xB0000,0xBA000,0x10B000,0x10D400
GCLR_OFF=0x10E000; EPOCH_OFF=0x10F000; WS_SIZE=0x110000
QL,TL,TL2,WMAX,LSUM,STAT,WGT,RED,SCR,OBUF,WAREA=0,512,1536,2560,2624,2632,2688,2816,7424,12032,20224
WOA=WAREA
LDS_BYTES=WAREA+9*8192
SPIN=200000
LOG2E=0x3fb8aa3b
SCALE=0x3db504f3
EPS=0x3727c5ac
INV576=0x3ae38e39
STAMP_OFF=0x400000
HASH_A=0x9E3779B1; HASH_C=0x7F4A7C15
CODE_SLICE=2048
HEADER=open("cdna_kernels/"+NAME+".s.ref").read().split("; Override launch")[0]

def gen(W=4, Wwo=5, ldflag="", wflag="", stamps=False, sl1=140, sl2=40, rot=True, wolate=True, W2=4, Ww=3, psleep=0, nowt=False, notail=False, gate=1, tlbw=True, notiles=False, nochain=False, noclear=False, noB0=False):
    a=Asm(); I=a.I
    uid=[0]
    def L(p):
        uid[0]+=1; return f"L_{p}_{uid[0]}"
    def vr(b,n=4): return f"v[{b}:{b+n-1}]"
    def rnd(d,s): I(f"v_cvt_pk_bf16_f32 v{d}, 0, v{s}")
    def dup(d,s): I(f"v_cvt_pk_bf16_f32 v{d}, v{s}, v{s}")
    def dpp(op,d,s0,s1,ctl): I(f"{op}_dpp v{d}, v{s0}, v{s1} {ctl} row_mask:0xf bank_mask:0xf")
    def ror(op,regs,k):
        for v in regs: dpp(op,v,v,v,f"row_ror:{k}")
    def xswap(op,regs,tmp,which):
        for v,t in zip(regs,tmp): I(f"v_mov_b32 v{t}, v{v}")
        for v,t in zip(regs,tmp): I(f"v_permlane{which}_swap_b32 v{v}, v{t}")
        for v,t in zip(regs,tmp): I(f"{op} v{v}, v{v}, v{t}")
    STV=7
    _I=I
    def I(t):
        if nowt and " lds" in t and "buffer_load" in t: return
        _I(t)
    def stamp(i):
        if stamps:
            I("s_memrealtime s[96:97]"); I("s_waitcnt lgkmcnt(0)")
            I(f"v_writelane_b32 v{STV}, s96, {i}")
    def finish():
        if stamps:
            I("s_mov_b64 exec, -1")
            stamp(15)
            I("s_mul_i32 s7, s4, 11"); I("s_add_u32 s7, s7, s3"); I("s_lshl_b32 s7, s7, 8"); I(f"s_add_u32 s7, s7, {STAMP_OFF}")
            I("s_add_u32 s8, s40, s7"); I("s_addc_u32 s9, s41, 0")
            I("v_lshlrev_b32 v8, 2, v1")
            I(f"global_store_dword v8, v{STV}, s[8:9]")
        I("s_endpgm")
    def spin_tail(lo,dn):
        I(f"s_cbranch_vccz {dn}")
        if psleep: I(f"s_sleep {psleep}")
        I("s_add_u32 s80, s80, 1"); I(f"s_cmp_lt_u32 s80, {SPIN}"); I(f"s_cbranch_scc1 {lo}")
        a.label(dn)
    def check_sent(regs,tmp):
        regs=list(regs); i=0; cur=None
        if len(regs)==1: cur=regs[0]
        else:
            while i<len(regs):
                if cur is None:
                    if len(regs)-i>=3: I(f"v_max3_u32 v{tmp}, v{regs[i]}, v{regs[i+1]}, v{regs[i+2]}"); i+=3
                    else: I(f"v_max_u32 v{tmp}, v{regs[i]}, v{regs[i+1]}"); i+=2
                    cur=tmp
                else:
                    if len(regs)-i>=2: I(f"v_max3_u32 v{tmp}, v{tmp}, v{regs[i]}, v{regs[i+1]}"); i+=2
                    else: I(f"v_max_u32 v{tmp}, v{tmp}, v{regs[i]}"); i+=1
        I(f"v_cmp_eq_u32 vcc, -1, v{cur}")
    def check_tags(tagregs,tmp,first=True):
        for k,r in enumerate(tagregs):
            if k==0 and first: I(f"v_xor_b32 v{tmp}, s95, v{r}")
            else: I(f"v_xad_u32 v{tmp}, v{r}, s95, v{tmp}")
    def poll(loads, sent=(), tags=(), name="p", tmp=0, mid=None):
        lo=L("poll"+name); dn=L("pd"+name)
        I("s_mov_b32 s80, 0")
        a.label(lo)
        for t in loads: I(t)
        I("s_waitcnt vmcnt(0)")
        if mid: mid()
        if sent and tags:
            check_tags(tags,tmp+1)
            check_sent(sent,tmp)
            I(f"v_cmp_ne_u32 s[10:11], 0, v{tmp+1}")
            I("s_or_b64 vcc, vcc, s[10:11]")
        elif tags:
            check_tags(tags,tmp); I(f"v_cmp_ne_u32 vcc, 0, v{tmp}")
        else:
            check_sent(sent,tmp)
        spin_tail(lo,dn)
    def setexec(lo,hi):
        I(f"s_mov_b32 exec_lo, {lo:#x}"); I(f"s_mov_b32 exec_hi, {hi:#x}")
    def fullexec(): I("s_mov_b64 exec, -1")
    def srd(dst, base, off, size):
        if off is None:
            I(f"s_mov_b32 s{dst}, s{base}"); I(f"s_mov_b32 s{dst+1}, s{base+1}")
        else:
            I(f"s_add_u32 s{dst}, s{base}, s{off}"); I(f"s_addc_u32 s{dst+1}, s{base+1}, 0")
        I(f"s_mov_b32 s{dst+2}, {size}"); I(f"s_mov_b32 s{dst+3}, 0x20000")
    def srd_rem(dst, base, off, total):
        I(f"s_add_u32 s{dst}, s{base}, s{off}"); I(f"s_addc_u32 s{dst+1}, s{base+1}, 0")
        I(f"s_sub_u32 s{dst+2}, {total}, s{off}"); I(f"s_mov_b32 s{dst+3}, 0x20000")
    def silu(vs,ts):
        for v,t in zip(vs,ts): I(f"v_mul_f32 v{t}, 0xbfb8aa3b, v{v}")
        for v,t in zip(vs,ts): I(f"v_exp_f32 v{t}, v{t}")
        for v,t in zip(vs,ts): I(f"v_add_f32 v{t}, 1.0, v{t}")
        for v,t in zip(vs,ts): I(f"v_rcp_f32 v{t}, v{t}")
        for v,t in zip(vs,ts): I(f"v_mul_f32 v{v}, v{v}, v{t}")
    def ln_stats(S,S2,mean_b,inv):
        I(f"v_mul_f32 v{S}, {INV576:#x}, v{S}")
        I(f"v_mul_f32 v{S2}, {INV576:#x}, v{S2}")
        I(f"v_fma_f32 v{S2}, -v{S}, v{S}, v{S2}")
        rnd(mean_b,S)
        I(f"v_max_f32 v{S2}, 0, v{S2}")
        rnd(S2,S2)
        I(f"v_add_f32 v{S2}, {EPS:#x}, v{S2}")
        rnd(S2,S2)
        I(f"v_sqrt_f32 v{S2}, v{S2}")
        rnd(S2,S2)
        I(f"v_rcp_f32 v{inv}, v{S2}")
    def unpack2(d0,d1,s):
        I(f"v_and_b32 v{d1}, 0xffff0000, v{s}")
        I(f"v_lshlrev_b32 v{d0}, 16, v{s}")
    def roles():
        I("s_mul_i32 s14, s5, 6"); I("s_add_u32 s14, s14, s6")
        I("s_mul_i32 s82, s5, 9"); I("s_add_u32 s82, s82, s6"); I("s_sub_u32 s82, s82, 7")
        I("s_cmp_lt_u32 s6, 6"); I("s_cselect_b32 s81, 1, 0")
        I("s_cmp_ge_u32 s6, 7"); I("s_cselect_b32 s81, 2, s81")
    def ws_setup():
        srd(44,40,None,WS_SIZE)
        I(f"s_mul_i32 s85, s4, {STRIDE}")
        I(f"s_movk_i32 s86, {STRIDE}")
    def tag():
        I(f"s_mul_i32 s95, s94, {HASH_A:#x}"); I(f"s_add_u32 s95, s95, {HASH_C:#x}")
    def epoch_load():
        I(f"s_add_u32 s8, s40, {EPOCH_OFF:#x}"); I("s_addc_u32 s9, s41, 0"); I("s_load_dword s94, s[8:9], 0")
    def diag_consts():
        for r,m in enumerate((0x03030303,0x0c0c0c0c,0x30303030,0xc0c0c0c0)):
            I(f"s_mov_b32 s{72+2*r}, {m:#x}"); I(f"s_mov_b32 s{73+2*r}, {m:#x}")
        I("v_and_b32 v162, 1, v1"); I("v_cmp_eq_u32 vcc, 1, v162")
        I("v_mov_b32 v162, 0xffff"); I("v_mov_b32 v163, 0xffff0000"); I("v_cndmask_b32 v162, v162, v163, vcc")
        I("v_cmp_gt_u32 vcc, 8, v3"); I("v_cndmask_b32 v162, 0, v162, vcc")
        I("v_lshlrev_b32 v163, 2, v2"); I("v_lshlrev_b32 v164, 4, v1")
    def matvec18(tile, AV, A0, A1, acc, tl):
        for i in range(18): I(f"ds_read_b32 v{AV+i}, v163 offset:{tl+16*i}")
        for i in range(18):
            if i in (0,6,12): I(f"s_waitcnt lgkmcnt({12-i if i<12 else 0})")
            A = A0 if i%2==0 else A1
            I(f"v_and_b32 v{AV+i}, v{AV+i}, v162")
            for r in range(4): I(f"v_cndmask_b32 v{A+r}, 0, v{AV+i}, s[{72+2*r}:{73+2*r}]")
            src = "0" if i==0 else vr(acc)
            I(f"v_mfma_f32_16x16x32_bf16 {vr(acc)}, {vr(A)}, {vr(tile+4*i)}, {src}")
    def code_touch(dst):
        I("s_getpc_b64 s[8:9]")
        lb=L("pc"); a.label(lb)
        I("s_bfe_u32 s7, s2, 0x30003"); I(f"s_mul_i32 s7, s7, {CODE_SLICE}")
        I(f"s_sub_u32 s8, s8, {lb}-{NAME}_kernel"); I("s_subb_u32 s9, s9, 0")
        I(f"v_lshlrev_b32 v{dst}, 4, v1")
        for k in range(CODE_SLICE//1024):
            I(f"v_add_u32 v{dst+1}, s7, v{dst}"); I(f"s_add_u32 s7, s7, 0x400")
            I(f"v_min_u32 v{dst+1}, L_end-{NAME}_kernel-16, v{dst+1}")
            I(f"global_load_dwordx4 {vr(dst+4+4*k)}, v{dst+1}, s[8:9]")

    a.raw(f"{NAME}_kernel:")
    I("s_cmp_ge_u32 s2, 256"); I("s_cbranch_scc1 L_end")
    I("s_load_dwordx16 s[16:31], s[0:1], 0")
    I("s_load_dwordx8 s[32:39], s[0:1], 64")
    I("s_load_dwordx2 s[40:41], s[0:1], 96")
    I("v_lshrrev_b32 v4, 6, v0")
    I("v_and_b32 v1, 63, v0")
    I("v_readfirstlane_b32 s3, v4")
    I("v_lshrrev_b32 v2, 4, v1")
    I("v_and_b32 v3, 15, v1")
    I("s_and_b32 s5, s2, 7"); I("s_lshl_b32 s5, s5, 1"); I("s_bfe_u32 s7, s2, 0x10003"); I("s_or_b32 s5, s5, s7")
    I("s_lshr_b32 s6, s2, 4")
    I("s_lshl_b32 s4, s5, 4"); I("s_or_b32 s4, s4, s6")
    if stamps: I("v_mov_b32 v7, 0")
    roles()
    I("s_cmp_eq_u32 s3, 0"); I("s_cbranch_scc1 L_ctrl")
    I("s_cmp_eq_u32 s3, 9"); I("s_cbranch_scc1 L_mod")
    I("s_cmp_eq_u32 s3, 10"); I("s_cbranch_scc1 L_clean")

    a.C("================ worker waves (1..8) ================")
    KB,VB,SB,TB=8,72,136,152
    I("s_sub_u32 s83, s3, 1")
    I("v_lshlrev_b32 v4, 8, v3"); I("v_lshl_add_u32 v4, v2, 4, v4")
    I("v_lshlrev_b32 v5, 10, v2"); I("v_lshl_add_u32 v5, v3, 4, v5")
    I("s_lshl_b32 s7, s4, 17"); I("s_lshl_b32 s8, s83, 14"); I("s_add_u32 s7, s7, s8")
    if rot:
        I("s_add_u32 s10, s4, s83")
        for t in range(4):
            I(f"s_add_u32 s11, s10, {t}"); I("s_and_b32 s11, s11, 3"); I(f"s_lshl_b32 s{68+t}, s11, 12")
    else:
        for t in range(4): I(f"s_mov_b32 s{68+t}, {t*4096}")
    soff=["s68","s69","s70","s71"]
    I("s_cmp_eq_u32 s81, 1"); nw_=L("dw1"); dd_=L("dwd"); I(f"s_cbranch_scc0 {nw_}")
    I("s_lshl_b32 s12, s5, 8"); I("s_lshl_b32 s13, s83, 5"); I("s_add_u32 s12, s12, s13"); I("s_mul_i32 s12, s12, 1152")
    I("s_mul_i32 s13, s6, 192"); I("s_add_u32 s12, s12, s13")
    I("s_mul_i32 s13, s83, 6144"); I(f"s_add_u32 s13, s13, {WAREA}"); I("s_mov_b32 s79, 0")
    I("s_movk_i32 s10, 0x1556"); I("s_movk_i32 s11, 0x480")
    for i_ in range(3):
        I(f"v_add_u32 v0, {64*i_}, v1"); I("v_mul_u32_u24 v6, s10, v0"); I("v_lshrrev_b32 v6, 16, v6")
        I("v_mul_u32_u24 v164, 12, v6"); I("v_sub_u32 v0, v0, v164")
        I("v_mul_u32_u24 v6, s11, v6"); I(f"v_lshl_add_u32 v{165+i_}, v0, 4, v6")
    I(f"s_branch {dd_}")
    a.label(nw_)
    I("s_mul_i32 s12, s3, 589824"); I("s_lshl_b32 s13, s82, 6"); I("s_add_u32 s12, s12, s13")
    I("s_mul_i32 s79, s82, 36864"); I("s_lshl_b32 s13, s3, 7"); I("s_add_u32 s79, s79, s13")
    I("s_lshl_b32 s13, s3, 13"); I(f"s_add_u32 s13, s13, {WAREA}")
    I("v_lshrrev_b32 v167, 2, v1"); I("s_movk_i32 s10, 0x2400"); I("v_mul_u32_u24 v167, s10, v167"); I("v_and_b32 v0, 3, v1"); I("v_lshl_add_u32 v167, v0, 4, v167")
    I("v_lshrrev_b32 v166, 3, v1"); I("s_movk_i32 s10, 0x480"); I("v_mul_u32_u24 v166, s10, v166"); I("v_and_b32 v0, 7, v1"); I("v_lshl_add_u32 v166, v0, 4, v166")
    I("v_mov_b32 v165, 0")
    I("s_cmp_eq_u32 s81, 0"); I("s_cselect_b32 s12, 0, s12"); I("s_cselect_b32 s79, 0, s79")
    a.label(dd_)
    I("s_waitcnt lgkmcnt(0)")
    stamp(0)
    srd(48,18,7,16384); srd(52,20,7,16384)
    I("s_cmp_eq_u32 s81, 1"); I("s_cselect_b32 s56, s24, s28"); I("s_cselect_b32 s57, s25, s29"); I("s_mov_b32 s58, 5308416"); I("s_cselect_b32 s58, 4718592, s58")
    I("s_add_u32 s56, s56, s12"); I("s_addc_u32 s57, s57, 0"); I("s_sub_u32 s58, s58, s12"); I("s_mov_b32 s59, 0x20000")
    srd_rem(60,30,79,5308416)
    I("s_cmp_eq_u32 s81, 0"); I("s_cselect_b32 s58, 0, s58"); I("s_cselect_b32 s62, 0, s62")
    (I("s_barrier") if not noB0 else None)
    def consts_w():
        ws_setup()
        I("v_and_b32 v152, 1, v1"); I("v_cmp_eq_u32 vcc, 1, v152")
        I("v_mov_b32 v152, 0xffff"); I("v_mov_b32 v153, 0xffff0000"); I("v_cndmask_b32 v152, v152, v153, vcc")
        I("v_bfe_u32 v153, v1, 1, 2")
        for r in range(4):
            I(f"v_cmp_eq_u32 vcc, {r}, v153"); I(f"v_cndmask_b32 v{160+r}, 0, v152, vcc")
        I("s_mov_b32 s72, 0xffff0000"); I("s_mov_b32 s73, 0"); I("s_mov_b32 s74, 0"); I("s_mov_b32 s75, 0xffff"); I("s_mov_b32 s76, 0"); I("s_mov_b32 s77, 0xffff0000")
    def stream(Wn, wo):
        if wo:
            I("v_lshlrev_b32 v0, 1, v2"); I("v_xor_b32 v0, v0, v3"); I("s_movk_i32 s10, 0x480"); I("v_mul_u32_u24 v6, s10, v2")
            I("v_lshl_add_u32 v164, v0, 4, v6"); I("v_xor_b32 v0, 8, v0"); I("v_lshl_add_u32 v165, v0, 4, v6")
            for i in range(8):
                I(f"s_add_u32 m0, s13, {i*1024}"); I(f"s_mov_b32 s84, {i*4608}")
                I(f"buffer_load_dwordx4 v{164+(i&1)}, s[56:59], s84 offen lds {wflag}".replace(" lds nt"," nt lds"))
                if i>=Wn-1: I(f"s_waitcnt vmcnt({Wn-1})")
        for t in range(4):
            for c in range(4):
                I(f"buffer_load_dwordx4 {vr(KB+(4*t+c)*4)}, v4, s[48:51], {soff[t]} offen offset:{c*64} {ldflag}")
                if wo or 4*t+c>=Wn-1: I(f"s_waitcnt vmcnt({Wn-1})")
        for idx in range(16):
            t,r=divmod(idx,4)
            I(f"buffer_load_dwordx4 {vr(VB+idx*4)}, v5, s[52:55], {soff[t]} offen offset:{r*256} {ldflag}")
            if idx<15: I(f"s_waitcnt vmcnt({(Wn if idx<6 else max(Wn,W2))-1})")
            if idx==3: consts_w()
    stream(W,False)
    MK=160; Q=152; ACC=164
    stamp(1)
    I("s_barrier")
    stamp(2)
    I("v_lshrrev_b32 v5, 3, v3"); I("v_lshlrev_b32 v5, 8, v5"); I("v_lshl_add_u32 v5, v2, 4, v5")
    I(f"ds_read_b128 {vr(Q)}, v5 offset:{QL}"); I(f"ds_read_b128 {vr(Q+4)}, v5 offset:{QL+64}")
    I("s_waitcnt vmcnt(16)")
    for c in range(4):
        I(f"s_waitcnt lgkmcnt({1 if c<3 else 0})")
        qb=Q+4*(c%2)
        for t in range(4):
            src = "0" if c==0 else vr(SB+4*t)
            I(f"v_mfma_f32_16x16x32_bf16 {vr(SB+4*t)}, {vr(qb)}, {vr(KB+(4*t+c)*4)}, {src}")
        if c<2: I(f"ds_read_b128 {vr(qb)}, v5 offset:{QL+(c+2)*64}")
    def dma(v,srd_,so,m0off):
        I(f"s_add_u32 m0, s13, {m0off}"); I(f"s_mov_b32 s84, {so}")
        I(f"buffer_load_dwordx4 v{v}, s[{srd_}:{srd_+3}], s84 offen lds {wflag}".replace(" lds nt"," nt lds"))
    I("s_cmp_eq_u32 s81, 1"); dm_=L("dmamlp"); de_=L("dmaend"); I(f"s_cbranch_scc0 {dm_}")
    for i in range(6): dma(165+i%3,56,(i//3)*16*1152,i*1024)
    I(f"s_branch {de_}")
    a.label(dm_)
    for i in range(4): dma(167,56,i*147456,i*1024)
    for i in range(2): dma(166,60,i*9216,4096+i*1024)
    a.label(de_)
    S=[SB,SB+4,SB+8,SB+12]
    I("v_lshrrev_b32 v6, 1, v2"); I("v_lshlrev_b32 v0, 8, v6"); I("v_lshlrev_b32 v6, 5, v6")
    I("s_lshl_b32 s7, s83, 2"); I("v_add_u32 v4, s7, v6")
    I("s_lshl_b32 s9, s83, 9"); I(f"s_add_u32 s9, s9, {SCR}")
    I("v_lshl_add_u32 v0, v3, 2, v0"); I("v_add_u32 v0, s9, v0")
    for x in S: rnd(x,x)
    for x in S: I(f"v_mul_f32 v{x}, {SCALE:#x}, v{x}")
    for x in S: rnd(x,x)
    M=SB+1; M2=SB+2
    I(f"v_max3_f32 v{M}, v{S[0]}, v{S[1]}, v{S[2]}"); I(f"v_max_f32 v{M}, v{M}, v{S[3]}")
    for k in (8,4,2,1): ror("v_max_f32",[M],k)
    I(f"ds_write_b32 v4, v{M} offset:{WMAX}")
    I("s_waitcnt lgkmcnt(0)")
    I("s_barrier")
    I(f"ds_read_b128 {vr(Q)}, v6 offset:{WMAX}"); I(f"ds_read_b128 {vr(Q+4)}, v6 offset:{WMAX+16}")
    I("v_lshrrev_b32 v5, 3, v3"); I("v_lshlrev_b32 v5, 8, v5"); I("v_lshl_add_u32 v5, v2, 4, v5"); I("v_add_u32 v5, s9, v5")
    I(f"s_mov_b32 s7, {LOG2E:#x}")
    I("s_waitcnt lgkmcnt(0)")
    I(f"v_max3_f32 v{M}, v{Q}, v{Q+1}, v{Q+2}"); I(f"v_max3_f32 v{M2}, v{Q+3}, v{Q+4}, v{Q+5}")
    I(f"v_max3_f32 v{M}, v{M}, v{Q+6}, v{Q+7}"); I(f"v_max_f32 v{M}, v{M}, v{M2}")
    I(f"v_mul_f32 v{M}, 0xbfb8aa3b, v{M}")
    for x in S: I(f"v_fma_f32 v{x}, v{x}, s7, v{M}")
    for x in S: I(f"v_exp_f32 v{x}, v{x}")
    I(f"v_add_f32 v{M}, v{S[0]}, v{S[1]}"); I(f"v_add_f32 v{M2}, v{S[2]}, v{S[3]}")
    for x in S: dup(x,x)
    I(f"v_add_f32 v{M}, v{M}, v{M2}")
    for t,x in enumerate(S): I(f"ds_write_b32 v0, v{x} offset:{64*t}")
    for k in (8,4,2,1): ror("v_add_f32",[M],k)
    for t in range(4): I(f"ds_read_b128 {vr(SB+4*t) if t else vr(Q)}, v5 offset:{64*t}")
    I("v_lshrrev_b32 v6, 3, v6")
    setexec(1,1)
    I(f"ds_add_f32 v6, v{M} offset:{LSUM}")
    fullexec()
    I("s_waitcnt lgkmcnt(0)")
    I("s_barrier")
    for r in range(4): I(f"v_mov_b32 v{SB+r}, v{Q+r}")
    stamp(3)
    A0,A1=Q,Q+4
    I("v_lshrrev_b32 v4, 1, v2"); I("v_lshlrev_b32 v4, 9, v4"); I("v_lshl_add_u32 v4, v3, 5, v4")
    I("v_and_b32 v5, 1, v2"); I("v_lshl_add_u32 v4, v5, 4, v4")
    I("s_lshl_b32 s7, s83, 10"); I("v_add_u32 v4, s7, v4")
    for idx in range(16):
        A=A0 if idx%2==0 else A1
        for r in range(4): I(f"v_and_b32 v{A+r}, v{SB+idx}, v{MK+r}")
        I(f"s_waitcnt vmcnt({15-idx+6})")
        src="0" if idx==0 else vr(ACC)
        I(f"v_mfma_f32_16x16x32_bf16 {vr(ACC)}, {vr(A)}, {vr(VB+4*idx)}, {src}")
    I(f"ds_write_b128 v4, {vr(ACC)} offset:{OBUF}")
    I("s_waitcnt lgkmcnt(0)")
    stamp(4)
    I("s_barrier")
    if notail: finish()
    I("s_cmp_eq_u32 s81, 2"); I("s_cbranch_scc1 L_mlp_tail")
    I("s_cmp_eq_u32 s81, 1"); I("s_cbranch_scc1 L_wo_tail")
    finish()

    a.label("L_wo_tail")
    O1,O2,M1,T=72,76,80,88
    I("v_lshrrev_b32 v6, 2, v3"); I("v_lshl_add_u32 v4, v2, 3, v6"); I("s_movk_i32 s7, 192"); I("v_mul_u32_u24 v4, s7, v4")
    I("v_and_b32 v6, 3, v3"); I("v_lshl_add_u32 v4, v6, 3, v4"); I("v_add_u32 v86, s13, v4")
    I("v_bfe_u32 v6, v1, 1, 3"); I("s_lshl_b32 s7, s5, 4"); I("v_add_u32 v4, s7, v6"); I("v_mul_u32_u24 v4, s86, v4")
    I("v_and_b32 v5, 1, v1"); I("v_lshlrev_b32 v5, 4, v5"); I("v_lshl_add_u32 v5, v2, 5, v5")
    I("s_lshl_b32 s7, s83, 7"); I("v_add3_u32 v84, v4, v5, s7")
    I("s_lshr_b32 s7, s83, 2"); I("s_lshl_b32 s7, s7, 6"); I("v_lshl_add_u32 v85, v6, 2, s7")
    I(f"s_mov_b32 s84, {8*STRIDE}")
    I("s_waitcnt vmcnt(0)"); stamp(12)
    for c in range(6):
        I(f"ds_read_b64_tr_b16 v[{KB+4*c}:{KB+4*c+1}], v86 offset:{c*32}")
        I(f"ds_read_b64_tr_b16 v[{KB+4*c+2}:{KB+4*c+3}], v86 offset:{c*32+768}")
    I("s_barrier")
    I(f"ds_read_b32 v{M1}, v85 offset:{WGT}"); I(f"ds_read_b32 v{M1+1}, v85 offset:{WGT+32}")
    poll([f"buffer_load_dwordx4 {vr(O1)}, v84, s[44:47], 0 offen offset:{P3} sc1",
          f"buffer_load_dwordx4 {vr(O2)}, v84, s[44:47], s84 offen offset:{P3} sc1"],
         sent=list(range(72,80)), name="o", tmp=87)
    stamp(5)
    def red8(op,regs):
        for v in regs: dpp(op,v,v,v,"quad_perm:[2,3,0,1]")
        for v in regs: dpp(op,v,v,v,"row_ror:4")
        for v in regs: dpp(op,v,v,v,"row_ror:8")
    I("s_waitcnt lgkmcnt(0)")
    for r in range(4): I(f"v_mul_f32 v{O1+r}, v{M1}, v{O1+r}")
    for r in range(4): I(f"v_fmac_f32 v{O1+r}, v{M1+1}, v{O2+r}")
    red8("v_add_f32",[O1,O1+1,O1+2,O1+3])
    I(f"v_cvt_pk_bf16_f32 v{T}, v{O1}, v{O1+1}"); I(f"v_cvt_pk_bf16_f32 v{T+1}, v{O1+2}, v{O1+3}")
    AO=T+8
    I(f"v_mov_b32_dpp v{AO}, v{T} quad_perm:[0,0,2,2] row_mask:0xf bank_mask:0xf"); I(f"v_mov_b32_dpp v{AO+1}, v{T+1} quad_perm:[0,0,2,2] row_mask:0xf bank_mask:0xf")
    I(f"v_mov_b32_dpp v{AO+2}, v{T} quad_perm:[1,1,3,3] row_mask:0xf bank_mask:0xf"); I(f"v_mov_b32_dpp v{AO+3}, v{T+1} quad_perm:[1,1,3,3] row_mask:0xf bank_mask:0xf")
    D=100
    for c in range(6): I(f"v_mfma_f32_16x16x32_bf16 {vr(D+4*c)}, {vr(AO)}, {vr(KB+4*c)}, 0")
    I("v_lshlrev_b32 v4, 2, v1")
    I("s_lshl_b32 s7, s83, 9"); I("v_add_u32 v5, s7, v4")
    def sel4(dst,D0):
        I(f"v_cndmask_b32 v{dst}, v{D0}, v{D0+4}, s[72:73]")
        I(f"v_cndmask_b32 v{dst}, v{dst}, v{D0+8}, s[74:75]")
        I(f"v_cndmask_b32 v{dst}, v{dst}, v{D0+12}, s[76:77]")
    sel4(T,D)
    I(f"v_cndmask_b32 v{T+1}, v{D+16}, v{D+20}, s[72:73]")
    I(f"ds_write_b32 v5, v{T} offset:{RED}"); I(f"ds_write_b32 v5, v{T+1} offset:{RED+256}")
    I("s_waitcnt lgkmcnt(0)")
    I("s_barrier")
    I("s_cmp_lt_u32 s83, 2"); sk=L("wo_done"); I(f"s_cbranch_scc0 {sk}")
    I("s_lshl_b32 s7, s83, 8"); I("v_add_u32 v4, s7, v4")
    for k in range(4): I(f"ds_read2st64_b32 v[{T+2*k}:{T+2*k+1}], v4 offset0:{RED//256+4*k} offset1:{RED//256+4*k+2}")
    I("s_mul_i32 s7, s14, 384"); I(f"s_add_u32 s7, s7, {P4A:#x}")
    I("s_cmp_eq_u32 s83, 0"); I("s_cselect_b32 exec_hi, -1, 0")
    I("s_waitcnt lgkmcnt(0)")
    I(f"v_add_f32 v{T}, v{T}, v{T+1}"); I(f"v_add_f32 v{T+2}, v{T+2}, v{T+3}"); I(f"v_add_f32 v{T+4}, v{T+4}, v{T+5}"); I(f"v_add_f32 v{T+6}, v{T+6}, v{T+7}")
    I(f"v_add_f32 v{T}, v{T}, v{T+2}"); I(f"v_add_f32 v{T+4}, v{T+4}, v{T+6}"); I(f"v_add_f32 v{T}, v{T}, v{T+4}")
    I(f"buffer_store_dword v{T}, v4, s[44:47], s7 offen sc1")
    stamp(6)
    a.label(sk)
    finish()

    a.label("L_mlp_tail")
    I("s_lshl_b32 s13, s3, 13"); I(f"s_add_u32 s13, s13, {WAREA}")
    I("v_lshrrev_b32 v4, 2, v1"); I("s_movk_i32 s7, 0x2400"); I("v_mul_u32_u24 v4, s7, v4"); I("v_and_b32 v5, 3, v1"); I("v_lshl_add_u32 v96, v5, 4, v4")
    I("s_mul_i32 s7, s3, 589824"); I("s_lshl_b32 s8, s82, 6"); I("s_add_u32 s7, s7, s8")
    srd_rem(56,28,7,5308416)
    I("v_lshrrev_b32 v4, 3, v1"); I("s_movk_i32 s7, 0x480"); I("v_mul_u32_u24 v4, s7, v4"); I("v_and_b32 v5, 7, v1"); I("v_lshl_add_u32 v97, v5, 4, v4")
    I("s_mul_i32 s7, s82, 36864"); I("s_lshl_b32 s8, s3, 7"); I("s_add_u32 s7, s7, s8")
    srd_rem(60,30,7,5308416)
    def mlp_dma():
        sk1=L("w1done")
        I("s_cmp_lg_u32 s3, 0"); I(f"s_cbranch_scc1 {sk1}")
        for i in range(4):
            I(f"s_add_u32 m0, s13, {i*1024}"); I(f"s_mov_b32 s84, {i*147456}")
            I(f"buffer_load_dwordx4 v96, s[56:59], s84 offen lds {wflag}".replace(" lds nt"," nt lds"))
        for i in range(2):
            I(f"s_add_u32 m0, s13, {4096+i*1024}"); I(f"s_mov_b32 s84, {i*9216}")
            I(f"buffer_load_dwordx4 v97, s[60:63], s84 offen lds {wflag}".replace(" lds nt"," nt lds"))
        a.label(sk1)
        for i in range(2,4):
            I(f"s_add_u32 m0, s13, {4096+i*1024}"); I(f"s_mov_b32 s84, {i*9216}")
            I(f"buffer_load_dwordx4 v97, s[60:63], s84 offen lds {wflag}".replace(" lds nt"," nt lds"))
    if not gate: mlp_dma()
    XV,GA,SBv,CBv,GBv=72,73,74,75,76
    I("v_lshlrev_b32 v77, 2, v1")
    I("s_lshl_b32 s7, s3, 7"); I("v_lshl_add_u32 v4, v1, 1, s7")
    srd(64,16,None,1152)
    I(f"buffer_load_ushort v{XV}, v4, s[64:67], 0 offen")
    for k,base in enumerate((1152,1728,2304,2880)):
        I(f"s_lshl_b32 s7, s3, 6"); I(f"s_add_u32 s7, s7, {base-1152}")
        I("s_lshr_b32 s8, s7, 7"); I("s_lshl_b32 s8, s8, 9")
        I("s_and_b32 s7, s7, 127"); I("s_lshl_b32 s7, s7, 2"); I("s_add_u32 s8, s8, s7"); I(f"s_add_u32 s{88+k}, s8, {P1BA:#x}")
    I("s_lshl_b32 s7, s3, 8"); I(f"s_add_u32 s15, s7, {P4A:#x}")
    G=80
    T=100
    I("v_lshrrev_b32 v4, 2, v3"); I("v_lshl_add_u32 v4, v2, 3, v4")
    I("v_and_b32 v5, 3, v3"); I("v_lshlrev_b32 v5, 3, v5")
    I("v_lshl_add_u32 v98, v4, 6, v5"); I("v_add_u32 v98, s13, v98")
    I("v_lshl_add_u32 v99, v4, 7, v5"); I("v_add_u32 v99, s13, v99")
    B1,B2=8,24
    def trreads():
        for kk in range(2):
            for c in range(2):
                b=B1+4*(2*kk+c)
                I(f"ds_read_b64_tr_b16 v[{b}:{b+1}], v98 offset:{kk*2048+c*32}")
                I(f"ds_read_b64_tr_b16 v[{b+2}:{b+3}], v98 offset:{kk*2048+c*32+256}")
        for c in range(4):
            b=B2+4*c
            I(f"ds_read_b64_tr_b16 v[{b}:{b+1}], v99 offset:{4096+c*32}")
            I(f"ds_read_b64_tr_b16 v[{b+2}:{b+3}], v99 offset:{4096+c*32+512}")
    poll([f"buffer_load_dword v{GA+k}, v77, s[44:47], s{88+k} offen sc1" for k in range(4)], sent=list(range(GA,GA+4)), name="s", tmp=T)
    if not gate: trreads()
    I(f"v_lshlrev_b32 v{XV}, 16, v{XV}")
    I(f"v_add_f32 v{CBv}, 1.0, v{CBv}"); rnd(CBv,CBv)
    if gate==2:
        I("s_cmp_eq_u32 s3, 0"); ng_=L("nog"); I(f"s_cbranch_scc0 {ng_}")
        I(f"s_lshl_b32 s12, s5, 7"); I(f"s_add_u32 s12, s12, {F4A:#x}"); I("v_mov_b32 v4, 0")
        setexec(1,0)
        poll([f"buffer_load_dword v{T}, v4, s[44:47], s12 offen sc1","s_sleep 2"], tags=[T], name="c3", tmp=T+1)
        fullexec()
        a.label(ng_)
        I("s_barrier")
        mlp_dma()
    I("s_cmp_eq_u32 s3, 0"); nc_=L("nocan"); I(f"s_cbranch_scc0 {nc_}")
    I("v_lshlrev_b32 v4, 7, v1"); I(f"s_mov_b32 s12, {F4A:#x}")
    setexec(0xffff,0)
    poll([f"buffer_load_dword v{T}, v4, s[44:47], s12 offen sc1","s_sleep 1"], tags=[T], name="c4", tmp=T+1)
    fullexec()
    a.label(nc_)
    I("s_waitcnt lgkmcnt(0)")
    I("s_barrier")
    if gate==1: mlp_dma()
    lds_=["s_mov_b32 s84, s15"]
    for k in range(16):
        lds_.append(f"buffer_load_dword v{G+k}, v77, s[44:47], s84 offen sc1")
        if k<15: lds_.append(f"s_add_u32 s84, s84, 2304")
    poll(lds_, sent=list(range(G,G+16)), name="x", tmp=T, mid=(trreads if gate else None))
    stamp(9)
    if stamps: I(f"v_writelane_b32 v{STV}, s80, 14")
    for k in (0,2,4,6,8,10,12,14): I(f"v_add_f32 v{G+k}, v{G+k}, v{G+k+1}")
    for k in (0,4,8,12): I(f"v_add_f32 v{G+k}, v{G+k}, v{G+k+2}")
    I(f"v_add_f32 v{G}, v{G}, v{G+4}"); I(f"v_add_f32 v{G+8}, v{G+8}, v{G+12}")
    I(f"v_add_f32 v{G}, v{G}, v{G+8}")
    rnd(G,G); I(f"v_mul_f32 v{G}, v{G}, v{GA}"); rnd(G,G); I(f"v_add_f32 v{G}, v{G}, v{XV}")
    X1=G+1; rnd(X1,G)
    S,S2=T,T+1
    I(f"v_mov_b32 v{S}, v{X1}"); I(f"v_mul_f32 v{S2}, v{X1}, v{X1}")
    for k in (8,4,2,1): ror("v_add_f32",[S,S2],k)
    for v_ in (S,S2): I(f"v_add_f32_dpp v{v_}, v{v_}, v{v_} row_bcast:15 row_mask:0xa bank_mask:0xf")
    for v_ in (S,S2): I(f"v_add_f32_dpp v{v_}, v{v_}, v{v_} row_bcast:31 row_mask:0xc bank_mask:0xf")
    I("v_mov_b32 v4, 0")
    setexec(0,0x80000000)
    I(f"ds_add_f32 v4, v{S} offset:{STAT}"); I(f"ds_add_f32 v4, v{S2} offset:{STAT+4}")
    fullexec()
    I("s_lshl_b32 s9, s3, 9"); I(f"s_add_u32 s9, s9, {SCR}")
    I("v_lshl_add_u32 v5, v1, 1, s9")
    I("v_lshl_add_u32 v6, v2, 4, s9")
    I("s_waitcnt lgkmcnt(0)")
    I("s_barrier")
    I(f"ds_read_b64 v[{S}:{S+1}], v4 offset:{STAT}")
    I("s_waitcnt lgkmcnt(0)")
    ln_stats(S,S2,T+2,T+3)
    H=G+2
    I(f"v_sub_f32 v{H}, v{X1}, v{T+2}"); rnd(H,H); I(f"v_mul_f32 v{H}, v{H}, v{T+3}"); rnd(H,H)
    I(f"v_mul_f32 v{H}, v{H}, v{CBv}"); rnd(H,H); I(f"v_add_f32 v{H}, v{H}, v{SBv}")
    I(f"v_cvt_pk_bf16_f32 v{H}, v{H}, v{H}")
    I(f"ds_write_b16 v5, v{H}")
    AH=T+4
    I(f"ds_read_b128 {vr(AH)}, v6"); I(f"ds_read_b128 {vr(AH+4)}, v6 offset:64")
    D=T+12
    I("s_waitcnt lgkmcnt(1)")
    I(f"v_mfma_f32_16x16x32_bf16 {vr(D)}, {vr(AH)}, {vr(B1)}, 0"); I(f"v_mfma_f32_16x16x32_bf16 {vr(D+4)}, {vr(AH)}, {vr(B1+4)}, 0")
    I("s_waitcnt lgkmcnt(0)")
    I(f"v_mfma_f32_16x16x32_bf16 {vr(D)}, {vr(AH+4)}, {vr(B1+8)}, {vr(D)}"); I(f"v_mfma_f32_16x16x32_bf16 {vr(D+4)}, {vr(AH+4)}, {vr(B1+12)}, {vr(D+4)}")
    I(f"v_cndmask_b32 v{T}, v{D}, v{D+4}, s[72:73]")
    I("s_lshl_b32 s7, s3, 8"); I("v_add_u32 v4, s7, v77")
    I(f"ds_write_b32 v4, v{T} offset:{RED}")
    I("s_waitcnt lgkmcnt(0)")
    I("s_barrier")
    for k in range(4): I(f"ds_read2st64_b32 v[{T+2*k}:{T+2*k+1}], v77 offset0:{RED//256+2*k} offset1:{RED//256+2*k+1}")
    I(f"ds_read_b32 v{T+8}, v77 offset:{RED+8*256}")
    I("s_waitcnt lgkmcnt(0)")
    I(f"v_add_f32 v{T}, v{T}, v{T+1}"); I(f"v_add_f32 v{T+2}, v{T+2}, v{T+3}"); I(f"v_add_f32 v{T+4}, v{T+4}, v{T+5}"); I(f"v_add_f32 v{T+6}, v{T+6}, v{T+7}")
    I(f"v_add_f32 v{T}, v{T}, v{T+2}"); I(f"v_add_f32 v{T+4}, v{T+4}, v{T+6}"); I(f"v_add_f32 v{T}, v{T}, v{T+8}"); I(f"v_add_f32 v{T}, v{T}, v{T+4}")
    rnd(T,T); silu([T],[T+1])
    I(f"v_cvt_pk_bf16_f32 v{T}, v{T}, v{T}")
    I(f"ds_write_b16 v5, v{T} offset:256")
    I(f"ds_read_b128 {vr(AH)}, v6 offset:256")
    I("s_waitcnt lgkmcnt(0)")
    for c in range(4): I(f"v_mfma_f32_16x16x32_bf16 {vr(D+4*c)}, {vr(AH)}, {vr(B2+4*c)}, 0")
    I("s_lshl_b32 s7, s3, 8"); I("s_mul_i32 s8, s82, 2304"); I("s_add_u32 s7, s7, s8"); I(f"s_add_u32 s7, s7, {P5A:#x}")
    sel4(T,D)
    I(f"buffer_store_dword v{T}, v77, s[44:47], s7 offen sc1")
    stamp(10)
    I("s_cmp_lt_u32 s82, 9"); sk=L("mlp_done"); I(f"s_cbranch_scc0 {sk}")
    a.C("final reducers: CU u<9 handles column block u; wave wv gathers partials 16wv+pp+4k")
    F=84
    I(f"s_mul_i32 s7, s3, {16*2304}"); I("s_lshl_b32 s8, s82, 8"); I("s_add_u32 s12, s7, s8"); I(f"s_add_u32 s12, s12, {P5A:#x}")
    lds_=["s_mov_b32 s84, s12"]
    for k in range(16):
        lds_.append(f"buffer_load_dword v{F+k}, v77, s[44:47], s84 offen sc1")
        if k<15: lds_.append(f"s_add_u32 s84, s84, 2304")
    poll(lds_, sent=list(range(F,F+16)), name="f", tmp=T)
    stamp(11)
    for k in (0,2,4,6,8,10,12,14): I(f"v_add_f32 v{F+k}, v{F+k}, v{F+k+1}")
    for k in (0,4,8,12): I(f"v_add_f32 v{F+k}, v{F+k}, v{F+k+2}")
    I(f"v_add_f32 v{F}, v{F}, v{F+4}"); I(f"v_add_f32 v{F+8}, v{F+8}, v{F+12}"); I(f"v_add_f32 v{F}, v{F}, v{F+8}")
    I("s_lshl_b32 s7, s3, 8"); I("v_add_u32 v4, s7, v77")
    I(f"ds_write_b32 v4, v{F} offset:{RED+2304}")
    I("s_waitcnt lgkmcnt(0)")
    I("s_barrier")
    I("s_cmp_eq_u32 s3, s82"); I(f"s_cbranch_scc0 {sk}")
    FB=(RED+2304)//256
    for k in range(4): I(f"ds_read2st64_b32 v[{T+2*k}:{T+2*k+1}], v77 offset0:{FB+2*k} offset1:{FB+2*k+1}")
    I(f"ds_read_b32 v{T+8}, v77 offset:{RED+2304+8*256}")
    I("s_lshl_b32 s7, s82, 7"); I("v_lshl_add_u32 v4, v1, 1, s7")
    srd(64,36,None,1152)
    I("s_waitcnt lgkmcnt(0)")
    I(f"v_add_f32 v{T}, v{T}, v{T+1}"); I(f"v_add_f32 v{T+2}, v{T+2}, v{T+3}"); I(f"v_add_f32 v{T+4}, v{T+4}, v{T+5}"); I(f"v_add_f32 v{T+6}, v{T+6}, v{T+7}")
    I(f"v_add_f32 v{T}, v{T}, v{T+2}"); I(f"v_add_f32 v{T+4}, v{T+4}, v{T+6}"); I(f"v_add_f32 v{T}, v{T}, v{T+8}"); I(f"v_add_f32 v{T}, v{T}, v{T+4}")
    rnd(T,T); I(f"v_mul_f32 v{T}, v{T}, v{GBv}"); rnd(T,T); I(f"v_add_f32 v{T}, v{T}, v{X1}")
    I(f"v_cvt_pk_bf16_f32 v{T}, v{T}, v{T}")
    I(f"buffer_store_short v{T}, v4, s[64:67], 0 offen")
    I("s_cmp_eq_u32 s82, 0"); I(f"s_cbranch_scc0 {sk}")
    I("v_mov_b32 v4, s95"); I("v_lshlrev_b32 v5, 2, v1"); I(f"s_mov_b32 s7, {EPOCH_OFF:#x}")
    setexec(0xffffffff,0)
    I("buffer_store_dword v4, v5, s[44:47], s7 offen sc1")
    a.label(sk)
    finish()

    a.label("L_clean")
    code_touch(8)
    I("v_mov_b32 v156, 0"); I("v_mov_b32 v157, 0"); I("v_mov_b32 v158, 0"); I("v_mov_b32 v159, 0")
    I("v_lshlrev_b32 v5, 4, v1")
    I("v_lshlrev_b32 v4, 2, v1"); I(f"ds_write_b32 v4, v156 offset:{WMAX}")
    I("s_waitcnt lgkmcnt(0)")
    stamp(0)
    epoch_load()
    ws_setup()
    if tlbw:
        I("s_mov_b32 s7, 82944"); I("v_mul_u32_u24 v20, s7, v1")
        srd(48,28,None,5308416); srd(52,30,None,5308416); srd(56,24,None,4718592)
        I("buffer_load_dword v21, v20, s[48:51], 0 offen"); I("buffer_load_dword v22, v20, s[52:55], 0 offen"); I("buffer_load_dword v23, v20, s[56:59], 0 offen")
    I("v_mov_b32 v156, -1"); I("v_mov_b32 v157, -1"); I("v_mov_b32 v158, -1"); I("v_mov_b32 v159, -1")
    if noclear: I("s_branch L_skipclr")
    I(f"buffer_store_dwordx4 v[156:159], v5, s[44:47], s85 offen offset:{P2} sc1")
    setexec(0xffffffff,0xff)
    I(f"buffer_store_dwordx4 v[156:159], v5, s[44:47], s85 offen offset:{P2+1024} sc1")
    fullexec()
    I("s_cmp_eq_u32 s81, 2"); nc=L("noclr"); I(f"s_cbranch_scc0 {nc}")
    I("s_mul_i32 s7, s82, 2304"); I(f"s_add_u32 s7, s7, {P5A:#x}")
    for k in range(2): I(f"buffer_store_dwordx4 v[156:159], v5, s[44:47], s7 offen offset:{1024*k} sc1")
    setexec(0xffff,0)
    I(f"buffer_store_dwordx4 v[156:159], v5, s[44:47], s7 offen offset:2048 sc1")
    fullexec()
    a.label(nc)
    I("s_cmp_eq_u32 s81, 1"); nc2=L("noclr2"); I(f"s_cbranch_scc0 {nc2}")
    I("s_mul_i32 s7, s14, 384"); I(f"s_add_u32 s7, s7, {P4A:#x}")
    setexec(0xffffff,0)
    I(f"buffer_store_dwordx4 v[156:159], v5, s[44:47], s7 offen sc1")
    fullexec()
    a.label(nc2)
    I("s_sub_u32 s8, 6, s6"); I("s_lshl_b32 s8, s8, 4"); I("s_add_u32 s8, s8, s5"); I("s_cmp_lt_u32 s8, 18"); I("s_cbranch_scc0 L_skipclr")
    I("s_lshl_b32 s7, s8, 9"); I(f"s_add_u32 s7, s7, {P1BA:#x}")
    setexec(0xffffffff,0)
    I(f"buffer_store_dwordx4 v[156:159], v5, s[44:47], s7 offen sc1")
    fullexec()
    a.label("L_skipclr")
    (I("s_barrier") if not noB0 else None)
    I("s_waitcnt vmcnt(0) lgkmcnt(0)")
    tag()
    I("v_mov_b32 v4, s95"); I("v_lshlrev_b32 v5, 2, v1")
    setexec(0xffffffff,0)
    I(f"buffer_store_dword v4, v5, s[44:47], s85 offen offset:{FL} sc1")
    stamp(1)
    I("s_cmp_eq_u32 s6, 6"); na=L("noagg"); I(f"s_cbranch_scc0 {na}")
    fullexec()
    I("s_lshl_b32 s7, s5, 4"); I("v_add_u32 v4, s7, v1"); I("v_mul_u32_u24 v4, s86, v4")
    setexec(0xffff,0)
    poll([f"buffer_load_dword v8, v4, s[44:47], 0 offen offset:{FL} sc1","s_sleep 8"],tags=[8],name="agg",tmp=9)
    fullexec()
    I("v_mov_b32 v4, s95"); I(f"s_lshl_b32 s7, s5, 7"); I(f"s_add_u32 s7, s7, {GCLR_OFF:#x}")
    setexec(0xffffffff,0)
    I(f"buffer_store_dword v4, v5, s[44:47], s7 offen sc1")
    a.label(na)
    finish()

    a.label("L_mod")
    TILE,XF,CV,XR,AV,A0,A1,ACC,GB,T=8,80,88,90,92,110,114,118,122,154
    I("s_setprio 2")
    I("s_waitcnt lgkmcnt(0)")
    stamp(0)
    epoch_load()
    srd(64,32,None,1152)
    I("s_and_b32 s7, s4, 7"); I("s_mul_i32 s7, s7, 144")
    I("v_lshlrev_b32 v4, 3, v1")
    I(f"buffer_load_dwordx2 v[{CV}:{CV+1}], v4, s[64:67], s7 offen")
    I("s_cmp_lt_u32 s4, 216"); nomod=L("nomod"); I(f"s_cbranch_scc0 {nomod}")
    I("s_and_b32 s7, s4, 7"); I("s_mul_i32 s7, s7, 497664")
    I("s_lshr_b32 s10, s4, 3"); I("s_lshl_b32 s10, s10, 8"); I("s_add_u32 s7, s7, s10")
    srd_rem(52,34,7,3981312)
    I("s_movk_i32 s7, 0x1b00"); I("v_mul_u32_u24 v4, s7, v2"); I("v_lshl_add_u32 v4, v3, 4, v4")
    for i in range(0 if notiles else 18):
        I(f"s_mov_b32 s84, {i*27648}")
        I(f"buffer_load_dwordx4 {vr(TILE+4*i)}, v4, s[52:55], s84 offen {wflag}")
    (I("s_barrier") if not noB0 else None)
    ws_setup(); diag_consts()
    I("s_waitcnt vmcnt(18)")
    for k in range(2): unpack2(T+2*k,T+2*k+1,CV+k)
    silu([T,T+1,T+2,T+3],[T+4,T+5,T+6,T+7])
    for r in range(4): dup(T+r,T+r)
    I(f"ds_write_b128 v164, {vr(T)} offset:{TL}")
    I("s_waitcnt vmcnt(0) lgkmcnt(0)")
    tag()
    stamp(1)
    matvec18(TILE,AV,A0,A1,ACC,TL)
    I(f"v_permlane32_swap_b32 v{ACC}, v{ACC+2}"); I(f"v_permlane32_swap_b32 v{ACC+1}, v{ACC+3}")
    I(f"v_mov_b32 v{A0}, v{ACC}"); I(f"v_mov_b32 v{A0+1}, s95"); I(f"v_mov_b32 v{A0+2}, v{ACC+1}"); I(f"v_mov_b32 v{A0+3}, s95")
    I(f"buffer_store_dwordx4 {vr(A0)}, v164, s[44:47], s85 offen offset:{P1} sc1")
    stamp(2)
    finish()
    a.label(nomod)
    (I("s_barrier") if not noB0 else None)
    finish()

    a.label("L_ctrl")
    I("s_setprio 3")
    I("s_waitcnt lgkmcnt(0)")
    stamp(0)
    epoch_load()
    srd(48,16,None,1152)
    I("s_lshr_b32 s87, s6, 1"); I("s_mul_i32 s87, s87, 72")
    I("s_lshl_b32 s7, s87, 1")
    I("v_lshlrev_b32 v4, 3, v1")
    I(f"buffer_load_dwordx2 v[{XR}:{XR+1}], v4, s[48:51], s7 offen")
    I("v_lshlrev_b32 v5, 5, v1")
    I(f"buffer_load_dwordx4 {vr(XF)}, v5, s[48:51], 0 offen")
    I(f"buffer_load_dwordx4 {vr(XF+4)}, v5, s[48:51], 0 offen offset:16")
    I("s_lshl_b32 s7, s87, 13"); I("s_lshl_b32 s10, s5, 9"); I("s_add_u32 s7, s7, s10")
    I("s_and_b32 s10, s6, 1"); I("s_lshl_b32 s10, s10, 8"); I("s_add_u32 s7, s7, s10")
    srd_rem(52,22,7,4718592)
    I("v_lshlrev_b32 v4, 13, v2"); I("v_lshl_add_u32 v4, v3, 4, v4")
    for i in range(0 if notiles else 18):
        I(f"s_mov_b32 s84, {i*32768:#x}")
        I(f"buffer_load_dwordx4 {vr(TILE+4*i)}, v4, s[52:55], s84 offen {wflag}")
    (I("s_barrier") if not noB0 else None)
    ws_setup(); diag_consts()
    I("s_waitcnt vmcnt(18) lgkmcnt(0)")
    tag()
    stamp(1)
    S,S2=T,T+1
    I(f"v_mov_b32 v{S}, 0"); I(f"v_mov_b32 v{S2}, 0")
    for k in range(8):
        unpack2(T+2,T+3,XF+k)
        I(f"v_add_f32 v{S}, v{S}, v{T+2}"); I(f"v_fmac_f32 v{S2}, v{T+2}, v{T+2}")
        I(f"v_add_f32 v{S}, v{S}, v{T+3}"); I(f"v_fmac_f32 v{S2}, v{T+3}, v{T+3}")
    for k in (8,4,2,1): ror("v_add_f32",[S,S2],k)
    xswap("v_add_f32",[S,S2],[T+2,T+3],16); xswap("v_add_f32",[S,S2],[T+2,T+3],32)
    MB,INV=XF,XF+1
    ln_stats(S,S2,MB,INV)
    GA=92
    if nochain: I("s_branch L_skipchain")
    I("v_and_b32 v4, 31, v1"); I("v_lshl_add_u32 v4, v4, 2, s87")
    I("v_cmp_lt_u32 vcc, 31, v1"); I("v_mov_b32 v5, 576"); I("v_cndmask_b32 v5, 0, v5, vcc"); I("v_add_u32 v4, v4, v5")
    I("v_lshrrev_b32 v5, 7, v4"); I("v_lshlrev_b32 v5, 3, v5"); I("v_mul_u32_u24 v5, s86, v5")
    I("v_bfe_u32 v156, v4, 3, 4"); I("v_bfe_u32 v157, v4, 2, 1"); I("v_lshl_add_u32 v156, v157, 4, v156")
    I("v_lshl_add_u32 v4, v156, 4, v5")
    I("s_lshl_b32 s7, s5, 4"); I("v_add_u32 v158, s7, v1"); I("v_mul_u32_u24 v158, s86, v158")
    I("v_mov_b32 v159, s95")
    def soffs(n,step,base=88):
        res=["0"]
        for k in range(1,n):
            I(f"s_mov_b32 s{base+k-1}, {k*step}"); res.append(f"s{base+k-1}")
        return res
    so=soffs(8,STRIDE)
    def p1loads():
        l=[]
        for k in range(8):
            l.append(f"buffer_load_dwordx4 {vr(GA+8*k)}, v4, s[44:47], {so[k]} offen offset:{P1} sc1")
            l.append(f"buffer_load_dwordx4 {vr(GA+8*k+4)}, v4, s[44:47], {so[k]} offen offset:{P1+512} sc1")
        return l
    p1tags=[GA+8*k+o for k in range(8) for o in (1,3,5,7)]
    def p1sum(D):
        for r,o in enumerate((0,2,4,6)): I(f"v_add_f32 v{D+r}, v{GA+o}, v{GA+8+o}")
        for k in range(2,8):
            for r,o in enumerate((0,2,4,6)): I(f"v_add_f32 v{D+r}, v{D+r}, v{GA+8*k+o}")
    def sleep(nn):
        while nn>0:
            k=min(nn,120); I(f"s_sleep {k}"); nn-=k
    sleep(sl1)
    setexec(0x3ffff,0x3ffff)
    poll(p1loads()+["s_mov_b32 exec_lo, 0xffff","s_mov_b32 exec_hi, 0",f"buffer_load_dword v159, v158, s[44:47], 0 offen offset:{FL} sc1","s_mov_b32 exec_lo, 0x3ffff","s_mov_b32 exec_hi, 0x3ffff"],
         tags=p1tags+[159], name="m", tmp=160)
    fullexec()
    stamp(4)
    p1sum(156)
    for r in range(4): rnd(GB+r,156+r)
    for r in range(4): I(f"v_mov_b32 v{GB+4+r}, v{GB+r}")
    for r in range(4): I(f"v_permlane32_swap_b32 v{GB+r}, v{GB+4+r}")
    H=GB+8; Tt=GB+12
    unpack2(H,H+1,XR); unpack2(H+2,H+3,XR+1)
    for r in range(4): I(f"v_sub_f32 v{H+r}, v{H+r}, v{MB}")
    for r in range(4): I(f"v_add_f32 v{Tt+r}, 1.0, v{GB+4+r}")
    for r in range(4): rnd(H+r,H+r)
    for r in range(4): rnd(Tt+r,Tt+r)
    for r in range(4): I(f"v_mul_f32 v{H+r}, v{H+r}, v{INV}")
    for r in range(4): rnd(H+r,H+r)
    for r in range(4): I(f"v_mul_f32 v{H+r}, v{H+r}, v{Tt+r}")
    for r in range(4): rnd(H+r,H+r)
    for r in range(4): I(f"v_add_f32 v{H+r}, v{H+r}, v{GB+r}")
    for r in range(4): dup(H+r,H+r)
    I(f"ds_write_b128 v164, {vr(H)} offset:{TL2}")
    I("s_waitcnt lgkmcnt(0)")
    matvec18(TILE,AV,A0,A1,ACC,TL2)
    I("v_lshlrev_b32 v4, 5, v3"); I("v_lshl_add_u32 v4, v2, 4, v4")
    setexec(0xffffffff,0)
    I(f"buffer_store_dwordx4 {vr(ACC)}, v4, s[44:47], s85 offen offset:{P2} sc1")
    fullexec()
    stamp(5)
    nr=L("nored")
    I("s_sub_u32 s13, 6, s6"); I("s_lshl_b32 s13, s13, 4"); I("s_add_u32 s13, s13, s5"); I("s_cmp_lt_u32 s13, 18"); I(f"s_cbranch_scc0 {nr}")
    I("s_add_u32 s7, s13, 9"); I(f"s_mul_i32 s7, s7, {8*STRIDE}")
    I("v_and_b32 v4, 1, v1"); I("v_lshrrev_b32 v5, 1, v1"); I("v_lshl_add_u32 v4, v4, 4, v5"); I("v_lshl_add_u32 v4, v4, 4, s7")
    setexec(0xffffffff,0)
    poll(p1loads(), tags=p1tags, name="b", tmp=160)
    p1sum(156)
    for r in range(4): rnd(156+r,156+r)
    I("s_lshl_b32 s7, s13, 9"); I(f"s_add_u32 s7, s7, {P1BA:#x}")
    I(f"buffer_store_dwordx4 v[156:159], v164, s[44:47], s7 offen sc1")
    fullexec()
    a.label(nr)
    I("v_lshrrev_b32 v4, 5, v1"); I("s_lshl_b32 s7, s5, 4"); I("v_add_u32 v4, s7, v4"); I("v_mul_u32_u24 v4, s86, v4")
    I("v_and_b32 v5, 31, v1"); I("v_lshl_add_u32 v4, v5, 4, v4")
    I("v_lshlrev_b32 v158, 7, v1"); I("v_mov_b32 v159, s95"); I(f"s_mov_b32 s12, {GCLR_OFF:#x}")
    so=soffs(8,2*STRIDE)
    sleep(sl2)
    poll([f"buffer_load_dwordx4 {vr(GB+4*k)}, v4, s[44:47], {so[k]} offen offset:{P2} sc1" for k in range(8)]+
         ["s_mov_b32 exec_lo, 0xffff","s_mov_b32 exec_hi, 0","buffer_load_dword v159, v158, s[44:47], s12 offen sc1","s_mov_b64 exec, -1"],
         sent=list(range(GB,GB+32)), tags=[159], name="q", tmp=160)
    for k in (0,2,4,6):
        for r in range(4): I(f"v_add_f32 v{GB+4*k+r}, v{GB+4*k+r}, v{GB+4*k+4+r}")
    for k in (0,4):
        for r in range(4): I(f"v_add_f32 v{GB+4*k+r}, v{GB+4*k+r}, v{GB+4*k+8+r}")
    for r in range(4): I(f"v_add_f32 v{GB+r}, v{GB+r}, v{GB+16+r}")
    I(f"v_cvt_pk_bf16_f32 v{GB+4}, v{GB}, v{GB+1}"); I(f"v_cvt_pk_bf16_f32 v{GB+5}, v{GB+2}, v{GB+3}")
    I("v_lshlrev_b32 v4, 3, v1")
    I(f"ds_write_b64 v4, v[{GB+4}:{GB+5}] offset:{QL}")
    I("s_waitcnt lgkmcnt(0)")
    a.label("L_skipchain")
    stamp(6)
    I("s_barrier")
    code_touch(8)
    I("s_mov_b32 s72, 0xffff0000"); I("s_mov_b32 s73, 0"); I("s_mov_b32 s74, 0"); I("s_mov_b32 s75, 0xffff"); I("s_mov_b32 s76, 0"); I("s_mov_b32 s77, 0xffff0000")
    I("s_barrier")
    I("v_lshlrev_b32 v152, 4, v1"); I("v_mov_b32 v4, 0")
    I(f"ds_read_b128 {vr(80)}, v4 offset:{WMAX}"); I(f"ds_read_b128 {vr(84)}, v4 offset:{WMAX+16}")
    I(f"ds_read_b128 {vr(88)}, v4 offset:{WMAX+32}"); I(f"ds_read_b128 {vr(92)}, v4 offset:{WMAX+48}")
    I("s_waitcnt lgkmcnt(0)")
    R=96
    for h in range(2):
        b=80+8*h
        I(f"v_max3_f32 v{R+2*h}, v{b}, v{b+1}, v{b+2}"); I(f"v_max3_f32 v{R+2*h}, v{R+2*h}, v{b+3}, v{b+4}")
        I(f"v_max3_f32 v{R+2*h}, v{R+2*h}, v{b+5}, v{b+6}"); I(f"v_max_f32 v{R+2*h}, v{R+2*h}, v{b+7}")
    I("s_barrier")
    I(f"ds_read_b64 v[100:101], v4 offset:{LSUM}")
    I("s_waitcnt lgkmcnt(0)")
    I(f"v_mov_b32 v{R+1}, v100"); I(f"v_mov_b32 v{R+3}, v101")
    setexec(0xff,0)
    I(f"buffer_store_dwordx4 {vr(R)}, v152, s[44:47], s85 offen offset:{ML} sc1")
    fullexec()
    I("s_barrier")
    stamp(7)
    O=104
    for k in range(8): I(f"ds_read_b128 {vr(O+4*k)}, v152 offset:{OBUF+1024*k}")
    for k in (0,2,4,6):
        I(f"s_waitcnt lgkmcnt({6-k})")
        for r in range(4): I(f"v_add_f32 v{O+4*k+r}, v{O+4*k+r}, v{O+4*k+4+r}")
    for k in (0,4):
        for r in range(4): I(f"v_add_f32 v{O+4*k+r}, v{O+4*k+r}, v{O+4*k+8+r}")
    for r in range(4): I(f"v_add_f32 v{O+r}, v{O+r}, v{O+16+r}")
    I(f"buffer_store_dwordx4 {vr(O)}, v152, s[44:47], s85 offen offset:{P3} sc1")
    stamp(8)
    if notail: finish()
    I("s_cmp_eq_u32 s81, 2"); I("s_cbranch_scc1 L_mlp_tail")
    I("s_cmp_eq_u32 s81, 1"); cw=L("cwo"); I(f"s_cbranch_scc1 {cw}")
    finish()
    a.label(cw)
    a.C("wo role control: canary on the 16 ML lines, compute normalised split weights")
    I("s_lshl_b32 s7, s5, 4"); I("v_add_u32 v4, s7, v1"); I("v_mul_u32_u24 v4, s86, v4")
    setexec(0xffff,0)
    poll([f"buffer_load_dwordx4 {vr(80)}, v4, s[44:47], 0 offen offset:{ML} sc1"], sent=[80,81,82,83], name="ml", tmp=84)
    I("s_cmp_eq_u32 s6, 0"); nf=L("nof4"); I(f"s_cbranch_scc0 {nf}")
    fullexec()
    I("v_mov_b32 v5, s95"); I("v_lshlrev_b32 v6, 2, v1"); I("s_lshl_b32 s7, s5, 7"); I(f"s_add_u32 s7, s7, {F4A:#x}")
    setexec(0xffffffff,0)
    I("buffer_store_dword v5, v6, s[44:47], s7 offen sc1")
    setexec(0xffff,0)
    a.label(nf)
    I("v_mov_b32 v84, v80"); I("v_mov_b32 v85, v82")
    for k in (8,4,2,1): ror("v_max_f32",[84,85],k)
    I("v_sub_f32 v80, v80, v84"); I("v_sub_f32 v82, v82, v85")
    I(f"v_mul_f32 v80, {LOG2E:#x}, v80"); I(f"v_mul_f32 v82, {LOG2E:#x}, v82")
    I("v_exp_f32 v80, v80"); I("v_exp_f32 v82, v82")
    I("v_mul_f32 v84, v80, v81"); I("v_mul_f32 v85, v82, v83")
    for k in (8,4,2,1): ror("v_add_f32",[84,85],k)
    I("v_rcp_f32 v84, v84"); I("v_rcp_f32 v85, v85")
    I("v_mul_f32 v80, v80, v84"); I("v_mul_f32 v82, v82, v85")
    I("v_lshlrev_b32 v4, 2, v1")
    I(f"ds_write_b32 v4, v80 offset:{WGT}"); I(f"ds_write_b32 v4, v82 offset:{WGT+64}")
    I("s_waitcnt lgkmcnt(0)")
    fullexec()
    I("s_barrier")
    finish()
    a.label("L_end")
    I("s_endpgm")

    body=a.finish()
    out=HEADER
    out+=f"; @launch grid=(256,1,1) block=(704,1,1) lds={LDS_BYTES}\n"
    out+='.amdgcn_target "amdgcn-amd-amdhsa--gfx950"\n.text\n'
    out+=f".globl {NAME}_kernel\n.p2align 8\n.type {NAME}_kernel,@function\n"
    out+=body
    out+=f""".section .rodata,"a"
.p2align 6
.amdhsa_kernel {NAME}_kernel
  .amdhsa_next_free_vgpr 168
  .amdhsa_next_free_sgpr 100
  .amdhsa_accum_offset 168
  .amdhsa_group_segment_fixed_size 0
  .amdhsa_float_denorm_mode_32 3
  .amdhsa_kernarg_size 104
  .amdhsa_user_sgpr_count 2
  .amdhsa_user_sgpr_kernarg_segment_ptr 1
  .amdhsa_system_sgpr_workgroup_id_x 1
.end_amdhsa_kernel
"""
    return out

if __name__=="__main__":
    import argparse
    p=argparse.ArgumentParser()
    p.add_argument("-o",default="cdna_kernels/"+NAME+".s")
    p.add_argument("--W",type=int,default=4); p.add_argument("--Wwo",type=int,default=5)
    p.add_argument("--ld",default=""); p.add_argument("--wf",default=""); p.add_argument("--stamps",action="store_true")
    p.add_argument("--sl1",type=int,default=140); p.add_argument("--sl2",type=int,default=40); p.add_argument("--norot",action="store_true"); p.add_argument("--woearly",action="store_true"); p.add_argument("--W2",type=int,default=4); p.add_argument("--Ww",type=int,default=3); p.add_argument("--psleep",type=int,default=0); p.add_argument("--nowt",action="store_true"); p.add_argument("--notail",action="store_true"); p.add_argument("--gate",type=int,default=1); p.add_argument("--notlbw",action="store_true"); p.add_argument("--notiles",action="store_true"); p.add_argument("--nochain",action="store_true"); p.add_argument("--noclear",action="store_true"); p.add_argument("--noB0",action="store_true")
    x=p.parse_args()
    open(x.o,"w").write(gen(W=x.W,Wwo=x.Wwo,ldflag=x.ld,wflag=x.wf,stamps=x.stamps,sl1=x.sl1,sl2=x.sl2,rot=not x.norot,wolate=not x.woearly,W2=x.W2,Ww=x.Ww,psleep=x.psleep,nowt=x.nowt,notail=x.notail,gate=x.gate,tlbw=not x.notlbw,notiles=x.notiles,nochain=x.nochain,noclear=x.noclear,noB0=x.noB0))
```

```python
from asmlib import Asm

NAME="adaLN_cond__gqa_block_cached__dense_activation_silu__decode"
STRIDE=2816
P1,P2,P3,ML,FL=0,1024,1536,2560,2688
P4A,P5A,P1BA,F4A=0xB0000,0xBA000,0x10B000,0x10D400
GCLR_OFF=0x10E000; EPOCH_OFF=0x10F000; WS_SIZE=0x110000
QL,TL,TL2,WMAX,LSUM,STAT,WGT,RED,SCR,OBUF,WAREA=0,512,1536,2560,2624,2632,2688,2816,7424,12032,20224
WOA=WAREA
LDS_BYTES=WAREA+9*8192
SPIN=200000
LOG2E=0x3fb8aa3b
SCALE=0x3db504f3
EPS=0x3727c5ac
INV576=0x3ae38e39
STAMP_OFF=0x400000
HASH_A=0x9E3779B1; HASH_C=0x7F4A7C15
CODE_SLICE=2048
HEADER=open("cdna_kernels/"+NAME+".s.ref").read().split("; Override launch")[0]

def gen(W=4, Wwo=5, ldflag="", wflag="", stamps=False, sl1=140, sl2=40, rot=True, wolate=True, W2=4, Ww=3, psleep=0, nowt=False, notail=False, gate=1, tlbw=True, notiles=False, nochain=False, noclear=False, noB0=False, dbg=False):
    a=Asm(); I=a.I
    uid=[0]
    def L(p):
        uid[0]+=1; return f"L_{p}_{uid[0]}"
    def vr(b,n=4): return f"v[{b}:{b+n-1}]"
    def rnd(d,s): I(f"v_cvt_pk_bf16_f32 v{d}, 0, v{s}")
    def dup(d,s): I(f"v_cvt_pk_bf16_f32 v{d}, v{s}, v{s}")
    def dpp(op,d,s0,s1,ctl): I(f"{op}_dpp v{d}, v{s0}, v{s1} {ctl} row_mask:0xf bank_mask:0xf")
    def ror(op,regs,k):
        for v in regs: dpp(op,v,v,v,f"row_ror:{k}")
    def xswap(op,regs,tmp,which):
        for v,t in zip(regs,tmp): I(f"v_mov_b32 v{t}, v{v}")
        for v,t in zip(regs,tmp): I(f"v_permlane{which}_swap_b32 v{v}, v{t}")
        for v,t in zip(regs,tmp): I(f"{op} v{v}, v{v}, v{t}")
    STV=7
    _I=I
    def I(t):
        if nowt and " lds" in t and "buffer_load" in t: return
        _I(t)
    DBGMAP={}
    def dstamp(slot, inv=False, only=None):
        if not dbg: return
        sk=None
        if only is not None:
            sk=L("ds"); I(f"s_cmp_eq_u32 s3, {only}"); I(f"s_cbranch_scc0 {sk}")
        _dstamp(slot,inv)
        if sk: a.label(sk)
    def _dstamp(slot, inv):
        I("s_memrealtime s[96:97]"); I("s_waitcnt lgkmcnt(0)")
        if inv: I("s_not_b32 s96, s96")
        I("s_mov_b64 s[92:93], exec"); I("s_mov_b64 exec, 1")
        I("v_mov_b32 v7, s96"); I(f"v_mov_b32 v0, {slot*4}")
        I("global_atomic_umax v0, v7, s[38:39] sc1")
        I("s_mov_b64 exec, s[92:93]")
    def stamp(i):
        if dbg and i in DBGMAP: dstamp(*DBGMAP[i])
        if stamps:
            I("s_memrealtime s[96:97]"); I("s_waitcnt lgkmcnt(0)")
            I(f"v_writelane_b32 v{STV}, s96, {i}")
    def finish():
        if stamps:
            I("s_mov_b64 exec, -1")
            stamp(15)
            I("s_mul_i32 s7, s4, 11"); I("s_add_u32 s7, s7, s3"); I("s_lshl_b32 s7, s7, 8"); I(f"s_add_u32 s7, s7, {STAMP_OFF}")
            I("s_add_u32 s8, s40, s7"); I("s_addc_u32 s9, s41, 0")
            I("v_lshlrev_b32 v8, 2, v1")
            I(f"global_store_dword v8, v{STV}, s[8:9]")
        I("s_endpgm")
    def spin_tail(lo,dn):
        I(f"s_cbranch_vccz {dn}")
        if psleep: I(f"s_sleep {psleep}")
        I("s_add_u32 s80, s80, 1"); I(f"s_cmp_lt_u32 s80, {SPIN}"); I(f"s_cbranch_scc1 {lo}")
        a.label(dn)
    def check_sent(regs,tmp):
        regs=list(regs); i=0; cur=None
        if len(regs)==1: cur=regs[0]
        else:
            while i<len(regs):
                if cur is None:
                    if len(regs)-i>=3: I(f"v_max3_u32 v{tmp}, v{regs[i]}, v{regs[i+1]}, v{regs[i+2]}"); i+=3
                    else: I(f"v_max_u32 v{tmp}, v{regs[i]}, v{regs[i+1]}"); i+=2
                    cur=tmp
                else:
                    if len(regs)-i>=2: I(f"v_max3_u32 v{tmp}, v{tmp}, v{regs[i]}, v{regs[i+1]}"); i+=2
                    else: I(f"v_max_u32 v{tmp}, v{tmp}, v{regs[i]}"); i+=1
        I(f"v_cmp_eq_u32 vcc, -1, v{cur}")
    def check_tags(tagregs,tmp,first=True):
        for k,r in enumerate(tagregs):
            if k==0 and first: I(f"v_xor_b32 v{tmp}, s95, v{r}")
            else: I(f"v_xad_u32 v{tmp}, v{r}, s95, v{tmp}")
    def poll(loads, sent=(), tags=(), name="p", tmp=0, mid=None):
        lo=L("poll"+name); dn=L("pd"+name)
        I("s_mov_b32 s80, 0")
        a.label(lo)
        for t in loads: I(t)
        I("s_waitcnt vmcnt(0)")
        if mid: mid()
        if sent and tags:
            check_tags(tags,tmp+1)
            check_sent(sent,tmp)
            I(f"v_cmp_ne_u32 s[10:11], 0, v{tmp+1}")
            I("s_or_b64 vcc, vcc, s[10:11]")
        elif tags:
            check_tags(tags,tmp); I(f"v_cmp_ne_u32 vcc, 0, v{tmp}")
        else:
            check_sent(sent,tmp)
        spin_tail(lo,dn)
    def setexec(lo,hi):
        I(f"s_mov_b32 exec_lo, {lo:#x}"); I(f"s_mov_b32 exec_hi, {hi:#x}")
    def fullexec(): I("s_mov_b64 exec, -1")
    def srd(dst, base, off, size):
        if off is None:
            I(f"s_mov_b32 s{dst}, s{base}"); I(f"s_mov_b32 s{dst+1}, s{base+1}")
        else:
            I(f"s_add_u32 s{dst}, s{base}, s{off}"); I(f"s_addc_u32 s{dst+1}, s{base+1}, 0")
        I(f"s_mov_b32 s{dst+2}, {size}"); I(f"s_mov_b32 s{dst+3}, 0x20000")
    def srd_rem(dst, base, off, total):
        I(f"s_add_u32 s{dst}, s{base}, s{off}"); I(f"s_addc_u32 s{dst+1}, s{base+1}, 0")
        I(f"s_sub_u32 s{dst+2}, {total}, s{off}"); I(f"s_mov_b32 s{dst+3}, 0x20000")
    def silu(vs,ts):
        for v,t in zip(vs,ts): I(f"v_mul_f32 v{t}, 0xbfb8aa3b, v{v}")
        for v,t in zip(vs,ts): I(f"v_exp_f32 v{t}, v{t}")
        for v,t in zip(vs,ts): I(f"v_add_f32 v{t}, 1.0, v{t}")
        for v,t in zip(vs,ts): I(f"v_rcp_f32 v{t}, v{t}")
        for v,t in zip(vs,ts): I(f"v_mul_f32 v{v}, v{v}, v{t}")
    def ln_stats(S,S2,mean_b,inv):
        I(f"v_mul_f32 v{S}, {INV576:#x}, v{S}")
        I(f"v_mul_f32 v{S2}, {INV576:#x}, v{S2}")
        I(f"v_fma_f32 v{S2}, -v{S}, v{S}, v{S2}")
        rnd(mean_b,S)
        I(f"v_max_f32 v{S2}, 0, v{S2}")
        rnd(S2,S2)
        I(f"v_add_f32 v{S2}, {EPS:#x}, v{S2}")
        rnd(S2,S2)
        I(f"v_sqrt_f32 v{S2}, v{S2}")
        rnd(S2,S2)
        I(f"v_rcp_f32 v{inv}, v{S2}")
    def unpack2(d0,d1,s):
        I(f"v_and_b32 v{d1}, 0xffff0000, v{s}")
        I(f"v_lshlrev_b32 v{d0}, 16, v{s}")
    def roles():
        I("s_mul_i32 s14, s5, 6"); I("s_add_u32 s14, s14, s6")
        I("s_mul_i32 s82, s5, 9"); I("s_add_u32 s82, s82, s6"); I("s_sub_u32 s82, s82, 7")
        I("s_cmp_lt_u32 s6, 6"); I("s_cselect_b32 s81, 1, 0")
        I("s_cmp_ge_u32 s6, 7"); I("s_cselect_b32 s81, 2, s81")
    def ws_setup():
        srd(44,40,None,WS_SIZE)
        I(f"s_mul_i32 s85, s4, {STRIDE}")
        I(f"s_movk_i32 s86, {STRIDE}")
    def tag():
        I(f"s_mul_i32 s95, s94, {HASH_A:#x}"); I(f"s_add_u32 s95, s95, {HASH_C:#x}")
    def epoch_load():
        I(f"s_add_u32 s8, s40, {EPOCH_OFF:#x}"); I("s_addc_u32 s9, s41, 0"); I("s_load_dword s94, s[8:9], 0")
    def diag_consts():
        for r,m in enumerate((0x03030303,0x0c0c0c0c,0x30303030,0xc0c0c0c0)):
            I(f"s_mov_b32 s{72+2*r}, {m:#x}"); I(f"s_mov_b32 s{73+2*r}, {m:#x}")
        I("v_and_b32 v162, 1, v1"); I("v_cmp_eq_u32 vcc, 1, v162")
        I("v_mov_b32 v162, 0xffff"); I("v_mov_b32 v163, 0xffff0000"); I("v_cndmask_b32 v162, v162, v163, vcc")
        I("v_cmp_gt_u32 vcc, 8, v3"); I("v_cndmask_b32 v162, 0, v162, vcc")
        I("v_lshlrev_b32 v163, 2, v2"); I("v_lshlrev_b32 v164, 4, v1")
    def matvec18(tile, AV, A0, A1, acc, tl):
        for i in range(18): I(f"ds_read_b32 v{AV+i}, v163 offset:{tl+16*i}")
        for i in range(18):
            if i in (0,6,12): I(f"s_waitcnt lgkmcnt({12-i if i<12 else 0})")
            A = A0 if i%2==0 else A1
            I(f"v_and_b32 v{AV+i}, v{AV+i}, v162")
            for r in range(4): I(f"v_cndmask_b32 v{A+r}, 0, v{AV+i}, s[{72+2*r}:{73+2*r}]")
            src = "0" if i==0 else vr(acc)
            I(f"v_mfma_f32_16x16x32_bf16 {vr(acc)}, {vr(A)}, {vr(tile+4*i)}, {src}")
    def code_touch(dst):
        I("s_getpc_b64 s[8:9]")
        lb=L("pc"); a.label(lb)
        I("s_bfe_u32 s7, s2, 0x30003"); I(f"s_mul_i32 s7, s7, {CODE_SLICE}")
        I(f"s_sub_u32 s8, s8, {lb}-{NAME}_kernel"); I("s_subb_u32 s9, s9, 0")
        I(f"v_lshlrev_b32 v{dst}, 4, v1")
        for k in range(CODE_SLICE//1024):
            I(f"v_add_u32 v{dst+1}, s7, v{dst}"); I(f"s_add_u32 s7, s7, 0x400")
            I(f"v_min_u32 v{dst+1}, L_end-{NAME}_kernel-16, v{dst+1}")
            I(f"global_load_dwordx4 {vr(dst+4+4*k)}, v{dst+1}, s[8:9]")

    a.raw(f"{NAME}_kernel:")
    I("s_cmp_ge_u32 s2, 256"); I("s_cbranch_scc1 L_end")
    I("s_load_dwordx16 s[16:31], s[0:1], 0")
    I("s_load_dwordx8 s[32:39], s[0:1], 64")
    I("s_load_dwordx2 s[40:41], s[0:1], 96")
    I("v_lshrrev_b32 v4, 6, v0")
    I("v_and_b32 v1, 63, v0")
    I("v_readfirstlane_b32 s3, v4")
    I("v_lshrrev_b32 v2, 4, v1")
    I("v_and_b32 v3, 15, v1")
    I("s_and_b32 s5, s2, 7"); I("s_lshl_b32 s5, s5, 1"); I("s_bfe_u32 s7, s2, 0x10003"); I("s_or_b32 s5, s5, s7")
    I("s_lshr_b32 s6, s2, 4")
    I("s_lshl_b32 s4, s5, 4"); I("s_or_b32 s4, s4, s6")
    if stamps: I("v_mov_b32 v7, 0")
    roles()
    I("s_cmp_eq_u32 s3, 0"); I("s_cbranch_scc1 L_ctrl")
    I("s_cmp_eq_u32 s3, 9"); I("s_cbranch_scc1 L_mod")
    I("s_cmp_eq_u32 s3, 10"); I("s_cbranch_scc1 L_clean")

    a.C("================ worker waves (1..8) ================")
    KB,VB,SB,TB=8,72,136,152
    I("s_sub_u32 s83, s3, 1")
    I("v_lshlrev_b32 v4, 8, v3"); I("v_lshl_add_u32 v4, v2, 4, v4")
    I("v_lshlrev_b32 v5, 10, v2"); I("v_lshl_add_u32 v5, v3, 4, v5")
    I("s_lshl_b32 s7, s4, 17"); I("s_lshl_b32 s8, s83, 14"); I("s_add_u32 s7, s7, s8")
    if rot:
        I("s_add_u32 s10, s4, s83")
        for t in range(4):
            I(f"s_add_u32 s11, s10, {t}"); I("s_and_b32 s11, s11, 3"); I(f"s_lshl_b32 s{68+t}, s11, 12")
    else:
        for t in range(4): I(f"s_mov_b32 s{68+t}, {t*4096}")
    soff=["s68","s69","s70","s71"]
    I("s_cmp_eq_u32 s81, 1"); nw_=L("dw1"); dd_=L("dwd"); I(f"s_cbranch_scc0 {nw_}")
    I("s_lshl_b32 s12, s5, 8"); I("s_lshl_b32 s13, s83, 5"); I("s_add_u32 s12, s12, s13"); I("s_mul_i32 s12, s12, 1152")
    I("s_mul_i32 s13, s6, 192"); I("s_add_u32 s12, s12, s13")
    I("s_mul_i32 s13, s83, 6144"); I(f"s_add_u32 s13, s13, {WAREA}"); I("s_mov_b32 s79, 0")
    I("s_movk_i32 s10, 0x1556"); I("s_movk_i32 s11, 0x480")
    for i_ in range(3):
        I(f"v_add_u32 v0, {64*i_}, v1"); I("v_mul_u32_u24 v6, s10, v0"); I("v_lshrrev_b32 v6, 16, v6")
        I("v_mul_u32_u24 v164, 12, v6"); I("v_sub_u32 v0, v0, v164")
        I("v_mul_u32_u24 v6, s11, v6"); I(f"v_lshl_add_u32 v{165+i_}, v0, 4, v6")
    I(f"s_branch {dd_}")
    a.label(nw_)
    I("s_mul_i32 s12, s3, 589824"); I("s_lshl_b32 s13, s82, 6"); I("s_add_u32 s12, s12, s13")
    I("s_mul_i32 s79, s82, 36864"); I("s_lshl_b32 s13, s3, 7"); I("s_add_u32 s79, s79, s13")
    I("s_lshl_b32 s13, s3, 13"); I(f"s_add_u32 s13, s13, {WAREA}")
    I("v_lshrrev_b32 v167, 2, v1"); I("s_movk_i32 s10, 0x2400"); I("v_mul_u32_u24 v167, s10, v167"); I("v_and_b32 v0, 3, v1"); I("v_lshl_add_u32 v167, v0, 4, v167")
    I("v_lshrrev_b32 v166, 3, v1"); I("s_movk_i32 s10, 0x480"); I("v_mul_u32_u24 v166, s10, v166"); I("v_and_b32 v0, 7, v1"); I("v_lshl_add_u32 v166, v0, 4, v166")
    I("v_mov_b32 v165, 0")
    I("s_cmp_eq_u32 s81, 0"); I("s_cselect_b32 s12, 0, s12"); I("s_cselect_b32 s79, 0, s79")
    a.label(dd_)
    I("s_waitcnt lgkmcnt(0)")
    stamp(0)
    dstamp(0,True,1); dstamp(1,False,1)
    srd(48,18,7,16384); srd(52,20,7,16384)
    I("s_cmp_eq_u32 s81, 1"); I("s_cselect_b32 s56, s24, s28"); I("s_cselect_b32 s57, s25, s29"); I("s_mov_b32 s58, 5308416"); I("s_cselect_b32 s58, 4718592, s58")
    I("s_add_u32 s56, s56, s12"); I("s_addc_u32 s57, s57, 0"); I("s_sub_u32 s58, s58, s12"); I("s_mov_b32 s59, 0x20000")
    srd_rem(60,30,79,5308416)
    I("s_cmp_eq_u32 s81, 0"); I("s_cselect_b32 s58, 0, s58"); I("s_cselect_b32 s62, 0, s62")
    (I("s_barrier") if not noB0 else None)
    def consts_w():
        ws_setup()
        I("v_and_b32 v152, 1, v1"); I("v_cmp_eq_u32 vcc, 1, v152")
        I("v_mov_b32 v152, 0xffff"); I("v_mov_b32 v153, 0xffff0000"); I("v_cndmask_b32 v152, v152, v153, vcc")
        I("v_bfe_u32 v153, v1, 1, 2")
        for r in range(4):
            I(f"v_cmp_eq_u32 vcc, {r}, v153"); I(f"v_cndmask_b32 v{160+r}, 0, v152, vcc")
        I("s_mov_b32 s72, 0xffff0000"); I("s_mov_b32 s73, 0"); I("s_mov_b32 s74, 0"); I("s_mov_b32 s75, 0xffff"); I("s_mov_b32 s76, 0"); I("s_mov_b32 s77, 0xffff0000")
    def stream(Wn, wo):
        if wo:
            I("v_lshlrev_b32 v0, 1, v2"); I("v_xor_b32 v0, v0, v3"); I("s_movk_i32 s10, 0x480"); I("v_mul_u32_u24 v6, s10, v2")
            I("v_lshl_add_u32 v164, v0, 4, v6"); I("v_xor_b32 v0, 8, v0"); I("v_lshl_add_u32 v165, v0, 4, v6")
            for i in range(8):
                I(f"s_add_u32 m0, s13, {i*1024}"); I(f"s_mov_b32 s84, {i*4608}")
                I(f"buffer_load_dwordx4 v{164+(i&1)}, s[56:59], s84 offen lds {wflag}".replace(" lds nt"," nt lds"))
                if i>=Wn-1: I(f"s_waitcnt vmcnt({Wn-1})")
        for t in range(4):
            for c in range(4):
                I(f"buffer_load_dwordx4 {vr(KB+(4*t+c)*4)}, v4, s[48:51], {soff[t]} offen offset:{c*64} {ldflag}")
                if wo or 4*t+c>=Wn-1: I(f"s_waitcnt vmcnt({Wn-1})")
        for idx in range(16):
            t,r=divmod(idx,4)
            I(f"buffer_load_dwordx4 {vr(VB+idx*4)}, v5, s[52:55], {soff[t]} offen offset:{r*256} {ldflag}")
            if idx<15: I(f"s_waitcnt vmcnt({(Wn if idx<6 else max(Wn,W2))-1})")
            if idx==3: consts_w()
    stream(W,False)
    MK=160; Q=152; ACC=164
    stamp(1)
    dstamp(3,False,8)
    I("s_barrier")
    stamp(2)
    I("v_lshrrev_b32 v5, 3, v3"); I("v_lshlrev_b32 v5, 8, v5"); I("v_lshl_add_u32 v5, v2, 4, v5")
    I(f"ds_read_b128 {vr(Q)}, v5 offset:{QL}"); I(f"ds_read_b128 {vr(Q+4)}, v5 offset:{QL+64}")
    I("s_waitcnt vmcnt(16)")
    for c in range(4):
        I(f"s_waitcnt lgkmcnt({1 if c<3 else 0})")
        qb=Q+4*(c%2)
        for t in range(4):
            src = "0" if c==0 else vr(SB+4*t)
            I(f"v_mfma_f32_16x16x32_bf16 {vr(SB+4*t)}, {vr(qb)}, {vr(KB+(4*t+c)*4)}, {src}")
        if c<2: I(f"ds_read_b128 {vr(qb)}, v5 offset:{QL+(c+2)*64}")
    def dma(v,srd_,so,m0off):
        I(f"s_add_u32 m0, s13, {m0off}"); I(f"s_mov_b32 s84, {so}")
        I(f"buffer_load_dwordx4 v{v}, s[{srd_}:{srd_+3}], s84 offen lds {wflag}".replace(" lds nt"," nt lds"))
    I("s_cmp_eq_u32 s81, 1"); dm_=L("dmamlp"); de_=L("dmaend"); I(f"s_cbranch_scc0 {dm_}")
    for i in range(6): dma(165+i%3,56,(i//3)*16*1152,i*1024)
    I(f"s_branch {de_}")
    a.label(dm_)
    for i in range(4): dma(167,56,i*147456,i*1024)
    for i in range(2): dma(166,60,i*9216,4096+i*1024)
    a.label(de_)
    S=[SB,SB+4,SB+8,SB+12]
    I("v_lshrrev_b32 v6, 1, v2"); I("v_lshlrev_b32 v0, 8, v6"); I("v_lshlrev_b32 v6, 5, v6")
    I("s_lshl_b32 s7, s83, 2"); I("v_add_u32 v4, s7, v6")
    I("s_lshl_b32 s9, s83, 9"); I(f"s_add_u32 s9, s9, {SCR}")
    I("v_lshl_add_u32 v0, v3, 2, v0"); I("v_add_u32 v0, s9, v0")
    for x in S: rnd(x,x)
    for x in S: I(f"v_mul_f32 v{x}, {SCALE:#x}, v{x}")
    for x in S: rnd(x,x)
    M=SB+1; M2=SB+2
    I(f"v_max3_f32 v{M}, v{S[0]}, v{S[1]}, v{S[2]}"); I(f"v_max_f32 v{M}, v{M}, v{S[3]}")
    for k in (8,4,2,1): ror("v_max_f32",[M],k)
    I(f"ds_write_b32 v4, v{M} offset:{WMAX}")
    I("s_waitcnt lgkmcnt(0)")
    I("s_barrier")
    I(f"ds_read_b128 {vr(Q)}, v6 offset:{WMAX}"); I(f"ds_read_b128 {vr(Q+4)}, v6 offset:{WMAX+16}")
    I("v_lshrrev_b32 v5, 3, v3"); I("v_lshlrev_b32 v5, 8, v5"); I("v_lshl_add_u32 v5, v2, 4, v5"); I("v_add_u32 v5, s9, v5")
    I(f"s_mov_b32 s7, {LOG2E:#x}")
    I("s_waitcnt lgkmcnt(0)")
    I(f"v_max3_f32 v{M}, v{Q}, v{Q+1}, v{Q+2}"); I(f"v_max3_f32 v{M2}, v{Q+3}, v{Q+4}, v{Q+5}")
    I(f"v_max3_f32 v{M}, v{M}, v{Q+6}, v{Q+7}"); I(f"v_max_f32 v{M}, v{M}, v{M2}")
    I(f"v_mul_f32 v{M}, 0xbfb8aa3b, v{M}")
    for x in S: I(f"v_fma_f32 v{x}, v{x}, s7, v{M}")
    for x in S: I(f"v_exp_f32 v{x}, v{x}")
    I(f"v_add_f32 v{M}, v{S[0]}, v{S[1]}"); I(f"v_add_f32 v{M2}, v{S[2]}, v{S[3]}")
    for x in S: dup(x,x)
    I(f"v_add_f32 v{M}, v{M}, v{M2}")
    for t,x in enumerate(S): I(f"ds_write_b32 v0, v{x} offset:{64*t}")
    for k in (8,4,2,1): ror("v_add_f32",[M],k)
    for t in range(4): I(f"ds_read_b128 {vr(SB+4*t) if t else vr(Q)}, v5 offset:{64*t}")
    I("v_lshrrev_b32 v6, 3, v6")
    setexec(1,1)
    I(f"ds_add_f32 v6, v{M} offset:{LSUM}")
    fullexec()
    I("s_waitcnt lgkmcnt(0)")
    I("s_barrier")
    for r in range(4): I(f"v_mov_b32 v{SB+r}, v{Q+r}")
    stamp(3)
    A0,A1=Q,Q+4
    I("v_lshrrev_b32 v4, 1, v2"); I("v_lshlrev_b32 v4, 9, v4"); I("v_lshl_add_u32 v4, v3, 5, v4")
    I("v_and_b32 v5, 1, v2"); I("v_lshl_add_u32 v4, v5, 4, v4")
    I("s_lshl_b32 s7, s83, 10"); I("v_add_u32 v4, s7, v4")
    for idx in range(16):
        A=A0 if idx%2==0 else A1
        for r in range(4): I(f"v_and_b32 v{A+r}, v{SB+idx}, v{MK+r}")
        I(f"s_waitcnt vmcnt({15-idx+6})")
        src="0" if idx==0 else vr(ACC)
        I(f"v_mfma_f32_16x16x32_bf16 {vr(ACC)}, {vr(A)}, {vr(VB+4*idx)}, {src}")
    I(f"ds_write_b128 v4, {vr(ACC)} offset:{OBUF}")
    I("s_waitcnt lgkmcnt(0)")
    stamp(4)
    dstamp(4,False,8)
    I("s_barrier")
    if notail: finish()
    I("s_cmp_eq_u32 s81, 2"); I("s_cbranch_scc1 L_mlp_tail")
    I("s_cmp_eq_u32 s81, 1"); I("s_cbranch_scc1 L_wo_tail")
    finish()

    a.label("L_wo_tail")
    O1,O2,M1,T=72,76,80,88
    I("v_lshrrev_b32 v6, 2, v3"); I("v_lshl_add_u32 v4, v2, 3, v6"); I("s_movk_i32 s7, 192"); I("v_mul_u32_u24 v4, s7, v4")
    I("v_and_b32 v6, 3, v3"); I("v_lshl_add_u32 v4, v6, 3, v4"); I("v_add_u32 v86, s13, v4")
    I("v_bfe_u32 v6, v1, 1, 3"); I("s_lshl_b32 s7, s5, 4"); I("v_add_u32 v4, s7, v6"); I("v_mul_u32_u24 v4, s86, v4")
    I("v_and_b32 v5, 1, v1"); I("v_lshlrev_b32 v5, 4, v5"); I("v_lshl_add_u32 v5, v2, 5, v5")
    I("s_lshl_b32 s7, s83, 7"); I("v_add3_u32 v84, v4, v5, s7")
    I("s_lshr_b32 s7, s83, 2"); I("s_lshl_b32 s7, s7, 6"); I("v_lshl_add_u32 v85, v6, 2, s7")
    I(f"s_mov_b32 s84, {8*STRIDE}")
    I("s_waitcnt vmcnt(0)"); stamp(12)
    for c in range(6):
        I(f"ds_read_b64_tr_b16 v[{KB+4*c}:{KB+4*c+1}], v86 offset:{c*32}")
        I(f"ds_read_b64_tr_b16 v[{KB+4*c+2}:{KB+4*c+3}], v86 offset:{c*32+768}")
    I("s_barrier")
    I(f"ds_read_b32 v{M1}, v85 offset:{WGT}"); I(f"ds_read_b32 v{M1+1}, v85 offset:{WGT+32}")
    poll([f"buffer_load_dwordx4 {vr(O1)}, v84, s[44:47], 0 offen offset:{P3} sc1",
          f"buffer_load_dwordx4 {vr(O2)}, v84, s[44:47], s84 offen offset:{P3} sc1"],
         sent=list(range(72,80)), name="o", tmp=87)
    stamp(5)
    def red8(op,regs):
        for v in regs: dpp(op,v,v,v,"quad_perm:[2,3,0,1]")
        for v in regs: dpp(op,v,v,v,"row_ror:4")
        for v in regs: dpp(op,v,v,v,"row_ror:8")
    I("s_waitcnt lgkmcnt(0)")
    for r in range(4): I(f"v_mul_f32 v{O1+r}, v{M1}, v{O1+r}")
    for r in range(4): I(f"v_fmac_f32 v{O1+r}, v{M1+1}, v{O2+r}")
    red8("v_add_f32",[O1,O1+1,O1+2,O1+3])
    I(f"v_cvt_pk_bf16_f32 v{T}, v{O1}, v{O1+1}"); I(f"v_cvt_pk_bf16_f32 v{T+1}, v{O1+2}, v{O1+3}")
    AO=T+8
    I(f"v_mov_b32_dpp v{AO}, v{T} quad_perm:[0,0,2,2] row_mask:0xf bank_mask:0xf"); I(f"v_mov_b32_dpp v{AO+1}, v{T+1} quad_perm:[0,0,2,2] row_mask:0xf bank_mask:0xf")
    I(f"v_mov_b32_dpp v{AO+2}, v{T} quad_perm:[1,1,3,3] row_mask:0xf bank_mask:0xf"); I(f"v_mov_b32_dpp v{AO+3}, v{T+1} quad_perm:[1,1,3,3] row_mask:0xf bank_mask:0xf")
    D=100
    for c in range(6): I(f"v_mfma_f32_16x16x32_bf16 {vr(D+4*c)}, {vr(AO)}, {vr(KB+4*c)}, 0")
    I("v_lshlrev_b32 v4, 2, v1")
    I("s_lshl_b32 s7, s83, 9"); I("v_add_u32 v5, s7, v4")
    def sel4(dst,D0):
        I(f"v_cndmask_b32 v{dst}, v{D0}, v{D0+4}, s[72:73]")
        I(f"v_cndmask_b32 v{dst}, v{dst}, v{D0+8}, s[74:75]")
        I(f"v_cndmask_b32 v{dst}, v{dst}, v{D0+12}, s[76:77]")
    sel4(T,D)
    I(f"v_cndmask_b32 v{T+1}, v{D+16}, v{D+20}, s[72:73]")
    I(f"ds_write_b32 v5, v{T} offset:{RED}"); I(f"ds_write_b32 v5, v{T+1} offset:{RED+256}")
    I("s_waitcnt lgkmcnt(0)")
    I("s_barrier")
    I("s_cmp_lt_u32 s83, 2"); sk=L("wo_done"); I(f"s_cbranch_scc0 {sk}")
    I("s_lshl_b32 s7, s83, 8"); I("v_add_u32 v4, s7, v4")
    for k in range(4): I(f"ds_read2st64_b32 v[{T+2*k}:{T+2*k+1}], v4 offset0:{RED//256+4*k} offset1:{RED//256+4*k+2}")
    I("s_mul_i32 s7, s14, 384"); I(f"s_add_u32 s7, s7, {P4A:#x}")
    I("s_cmp_eq_u32 s83, 0"); I("s_cselect_b32 exec_hi, -1, 0")
    I("s_waitcnt lgkmcnt(0)")
    I(f"v_add_f32 v{T}, v{T}, v{T+1}"); I(f"v_add_f32 v{T+2}, v{T+2}, v{T+3}"); I(f"v_add_f32 v{T+4}, v{T+4}, v{T+5}"); I(f"v_add_f32 v{T+6}, v{T+6}, v{T+7}")
    I(f"v_add_f32 v{T}, v{T}, v{T+2}"); I(f"v_add_f32 v{T+4}, v{T+4}, v{T+6}"); I(f"v_add_f32 v{T}, v{T}, v{T+4}")
    I(f"buffer_store_dword v{T}, v4, s[44:47], s7 offen sc1")
    stamp(6)
    dstamp(6,False,1)
    a.label(sk)
    finish()

    a.label("L_mlp_tail")
    I("s_lshl_b32 s13, s3, 13"); I(f"s_add_u32 s13, s13, {WAREA}")
    I("v_lshrrev_b32 v4, 2, v1"); I("s_movk_i32 s7, 0x2400"); I("v_mul_u32_u24 v4, s7, v4"); I("v_and_b32 v5, 3, v1"); I("v_lshl_add_u32 v96, v5, 4, v4")
    I("s_mul_i32 s7, s3, 589824"); I("s_lshl_b32 s8, s82, 6"); I("s_add_u32 s7, s7, s8")
    srd_rem(56,28,7,5308416)
    I("v_lshrrev_b32 v4, 3, v1"); I("s_movk_i32 s7, 0x480"); I("v_mul_u32_u24 v4, s7, v4"); I("v_and_b32 v5, 7, v1"); I("v_lshl_add_u32 v97, v5, 4, v4")
    I("s_mul_i32 s7, s82, 36864"); I("s_lshl_b32 s8, s3, 7"); I("s_add_u32 s7, s7, s8")
    srd_rem(60,30,7,5308416)
    def mlp_dma():
        sk1=L("w1done")
        I("s_cmp_lg_u32 s3, 0"); I(f"s_cbranch_scc1 {sk1}")
        for i in range(4):
            I(f"s_add_u32 m0, s13, {i*1024}"); I(f"s_mov_b32 s84, {i*147456}")
            I(f"buffer_load_dwordx4 v96, s[56:59], s84 offen lds {wflag}".replace(" lds nt"," nt lds"))
        for i in range(2):
            I(f"s_add_u32 m0, s13, {4096+i*1024}"); I(f"s_mov_b32 s84, {i*9216}")
            I(f"buffer_load_dwordx4 v97, s[60:63], s84 offen lds {wflag}".replace(" lds nt"," nt lds"))
        a.label(sk1)
        for i in range(2,4):
            I(f"s_add_u32 m0, s13, {4096+i*1024}"); I(f"s_mov_b32 s84, {i*9216}")
            I(f"buffer_load_dwordx4 v97, s[60:63], s84 offen lds {wflag}".replace(" lds nt"," nt lds"))
    if not gate: mlp_dma()
    XV,GA,SBv,CBv,GBv=72,73,74,75,76
    I("v_lshlrev_b32 v77, 2, v1")
    I("s_lshl_b32 s7, s3, 7"); I("v_lshl_add_u32 v4, v1, 1, s7")
    srd(64,16,None,1152)
    I(f"buffer_load_ushort v{XV}, v4, s[64:67], 0 offen")
    for k,base in enumerate((1152,1728,2304,2880)):
        I(f"s_lshl_b32 s7, s3, 6"); I(f"s_add_u32 s7, s7, {base-1152}")
        I("s_lshr_b32 s8, s7, 7"); I("s_lshl_b32 s8, s8, 9")
        I("s_and_b32 s7, s7, 127"); I("s_lshl_b32 s7, s7, 2"); I("s_add_u32 s8, s8, s7"); I(f"s_add_u32 s{88+k}, s8, {P1BA:#x}")
    I("s_lshl_b32 s7, s3, 8"); I(f"s_add_u32 s15, s7, {P4A:#x}")
    G=80
    T=100
    I("v_lshrrev_b32 v4, 2, v3"); I("v_lshl_add_u32 v4, v2, 3, v4")
    I("v_and_b32 v5, 3, v3"); I("v_lshlrev_b32 v5, 3, v5")
    I("v_lshl_add_u32 v98, v4, 6, v5"); I("v_add_u32 v98, s13, v98")
    I("v_lshl_add_u32 v99, v4, 7, v5"); I("v_add_u32 v99, s13, v99")
    B1,B2=8,24
    def trreads():
        for kk in range(2):
            for c in range(2):
                b=B1+4*(2*kk+c)
                I(f"ds_read_b64_tr_b16 v[{b}:{b+1}], v98 offset:{kk*2048+c*32}")
                I(f"ds_read_b64_tr_b16 v[{b+2}:{b+3}], v98 offset:{kk*2048+c*32+256}")
        for c in range(4):
            b=B2+4*c
            I(f"ds_read_b64_tr_b16 v[{b}:{b+1}], v99 offset:{4096+c*32}")
            I(f"ds_read_b64_tr_b16 v[{b+2}:{b+3}], v99 offset:{4096+c*32+512}")
    poll([f"buffer_load_dword v{GA+k}, v77, s[44:47], s{88+k} offen sc1" for k in range(4)], sent=list(range(GA,GA+4)), name="s", tmp=T)
    if not gate: trreads()
    I(f"v_lshlrev_b32 v{XV}, 16, v{XV}")
    I(f"v_add_f32 v{CBv}, 1.0, v{CBv}"); rnd(CBv,CBv)
    if gate==2:
        I("s_cmp_eq_u32 s3, 0"); ng_=L("nog"); I(f"s_cbranch_scc0 {ng_}")
        I(f"s_lshl_b32 s12, s5, 7"); I(f"s_add_u32 s12, s12, {F4A:#x}"); I("v_mov_b32 v4, 0")
        setexec(1,0)
        poll([f"buffer_load_dword v{T}, v4, s[44:47], s12 offen sc1","s_sleep 2"], tags=[T], name="c3", tmp=T+1)
        fullexec()
        a.label(ng_)
        I("s_barrier")
        mlp_dma()
    I("s_cmp_eq_u32 s3, 0"); nc_=L("nocan"); I(f"s_cbranch_scc0 {nc_}")
    I("v_lshlrev_b32 v4, 7, v1"); I(f"s_mov_b32 s12, {F4A:#x}")
    setexec(0xffff,0)
    poll([f"buffer_load_dword v{T}, v4, s[44:47], s12 offen sc1","s_sleep 1"], tags=[T], name="c4", tmp=T+1)
    fullexec()
    a.label(nc_)
    I("s_waitcnt lgkmcnt(0)")
    I("s_barrier")
    if gate==1: mlp_dma()
    lds_=["s_mov_b32 s84, s15"]
    for k in range(16):
        lds_.append(f"buffer_load_dword v{G+k}, v77, s[44:47], s84 offen sc1")
        if k<15: lds_.append(f"s_add_u32 s84, s84, 2304")
    poll(lds_, sent=list(range(G,G+16)), name="x", tmp=T, mid=(trreads if gate else None))
    stamp(9)
    dstamp(7,False,1)
    if stamps: I(f"v_writelane_b32 v{STV}, s80, 14")
    for k in (0,2,4,6,8,10,12,14): I(f"v_add_f32 v{G+k}, v{G+k}, v{G+k+1}")
    for k in (0,4,8,12): I(f"v_add_f32 v{G+k}, v{G+k}, v{G+k+2}")
    I(f"v_add_f32 v{G}, v{G}, v{G+4}"); I(f"v_add_f32 v{G+8}, v{G+8}, v{G+12}")
    I(f"v_add_f32 v{G}, v{G}, v{G+8}")
    rnd(G,G); I(f"v_mul_f32 v{G}, v{G}, v{GA}"); rnd(G,G); I(f"v_add_f32 v{G}, v{G}, v{XV}")
    X1=G+1; rnd(X1,G)
    S,S2=T,T+1
    I(f"v_mov_b32 v{S}, v{X1}"); I(f"v_mul_f32 v{S2}, v{X1}, v{X1}")
    for k in (8,4,2,1): ror("v_add_f32",[S,S2],k)
    for v_ in (S,S2): I(f"v_add_f32_dpp v{v_}, v{v_}, v{v_} row_bcast:15 row_mask:0xa bank_mask:0xf")
    for v_ in (S,S2): I(f"v_add_f32_dpp v{v_}, v{v_}, v{v_} row_bcast:31 row_mask:0xc bank_mask:0xf")
    I("v_mov_b32 v4, 0")
    setexec(0,0x80000000)
    I(f"ds_add_f32 v4, v{S} offset:{STAT}"); I(f"ds_add_f32 v4, v{S2} offset:{STAT+4}")
    fullexec()
    I("s_lshl_b32 s9, s3, 9"); I(f"s_add_u32 s9, s9, {SCR}")
    I("v_lshl_add_u32 v5, v1, 1, s9")
    I("v_lshl_add_u32 v6, v2, 4, s9")
    I("s_waitcnt lgkmcnt(0)")
    I("s_barrier")
    I(f"ds_read_b64 v[{S}:{S+1}], v4 offset:{STAT}")
    I("s_waitcnt lgkmcnt(0)")
    ln_stats(S,S2,T+2,T+3)
    H=G+2
    I(f"v_sub_f32 v{H}, v{X1}, v{T+2}"); rnd(H,H); I(f"v_mul_f32 v{H}, v{H}, v{T+3}"); rnd(H,H)
    I(f"v_mul_f32 v{H}, v{H}, v{CBv}"); rnd(H,H); I(f"v_add_f32 v{H}, v{H}, v{SBv}")
    I(f"v_cvt_pk_bf16_f32 v{H}, v{H}, v{H}")
    I(f"ds_write_b16 v5, v{H}")
    AH=T+4
    I(f"ds_read_b128 {vr(AH)}, v6"); I(f"ds_read_b128 {vr(AH+4)}, v6 offset:64")
    D=T+12
    I("s_waitcnt lgkmcnt(1)")
    I(f"v_mfma_f32_16x16x32_bf16 {vr(D)}, {vr(AH)}, {vr(B1)}, 0"); I(f"v_mfma_f32_16x16x32_bf16 {vr(D+4)}, {vr(AH)}, {vr(B1+4)}, 0")
    I("s_waitcnt lgkmcnt(0)")
    I(f"v_mfma_f32_16x16x32_bf16 {vr(D)}, {vr(AH+4)}, {vr(B1+8)}, {vr(D)}"); I(f"v_mfma_f32_16x16x32_bf16 {vr(D+4)}, {vr(AH+4)}, {vr(B1+12)}, {vr(D+4)}")
    I(f"v_cndmask_b32 v{T}, v{D}, v{D+4}, s[72:73]")
    I("s_lshl_b32 s7, s3, 8"); I("v_add_u32 v4, s7, v77")
    I(f"ds_write_b32 v4, v{T} offset:{RED}")
    I("s_waitcnt lgkmcnt(0)")
    I("s_barrier")
    for k in range(4): I(f"ds_read2st64_b32 v[{T+2*k}:{T+2*k+1}], v77 offset0:{RED//256+2*k} offset1:{RED//256+2*k+1}")
    I(f"ds_read_b32 v{T+8}, v77 offset:{RED+8*256}")
    I("s_waitcnt lgkmcnt(0)")
    I(f"v_add_f32 v{T}, v{T}, v{T+1}"); I(f"v_add_f32 v{T+2}, v{T+2}, v{T+3}"); I(f"v_add_f32 v{T+4}, v{T+4}, v{T+5}"); I(f"v_add_f32 v{T+6}, v{T+6}, v{T+7}")
    I(f"v_add_f32 v{T}, v{T}, v{T+2}"); I(f"v_add_f32 v{T+4}, v{T+4}, v{T+6}"); I(f"v_add_f32 v{T}, v{T}, v{T+8}"); I(f"v_add_f32 v{T}, v{T}, v{T+4}")
    rnd(T,T); silu([T],[T+1])
    I(f"v_cvt_pk_bf16_f32 v{T}, v{T}, v{T}")
    I(f"ds_write_b16 v5, v{T} offset:256")
    I(f"ds_read_b128 {vr(AH)}, v6 offset:256")
    I("s_waitcnt lgkmcnt(0)")
    for c in range(4): I(f"v_mfma_f32_16x16x32_bf16 {vr(D+4*c)}, {vr(AH)}, {vr(B2+4*c)}, 0")
    I("s_lshl_b32 s7, s3, 8"); I("s_mul_i32 s8, s82, 2304"); I("s_add_u32 s7, s7, s8"); I(f"s_add_u32 s7, s7, {P5A:#x}")
    sel4(T,D)
    I(f"buffer_store_dword v{T}, v77, s[44:47], s7 offen sc1")
    stamp(10)
    dstamp(8,False,1)
    I("s_cmp_lt_u32 s82, 9"); sk=L("mlp_done"); I(f"s_cbranch_scc0 {sk}")
    a.C("final reducers: CU u<9 handles column block u; wave wv gathers partials 16wv+pp+4k")
    F=84
    I(f"s_mul_i32 s7, s3, {16*2304}"); I("s_lshl_b32 s8, s82, 8"); I("s_add_u32 s12, s7, s8"); I(f"s_add_u32 s12, s12, {P5A:#x}")
    lds_=["s_mov_b32 s84, s12"]
    for k in range(16):
        lds_.append(f"buffer_load_dword v{F+k}, v77, s[44:47], s84 offen sc1")
        if k<15: lds_.append(f"s_add_u32 s84, s84, 2304")
    poll(lds_, sent=list(range(F,F+16)), name="f", tmp=T)
    stamp(11)
    dstamp(10,False,1)
    for k in (0,2,4,6,8,10,12,14): I(f"v_add_f32 v{F+k}, v{F+k}, v{F+k+1}")
    for k in (0,4,8,12): I(f"v_add_f32 v{F+k}, v{F+k}, v{F+k+2}")
    I(f"v_add_f32 v{F}, v{F}, v{F+4}"); I(f"v_add_f32 v{F+8}, v{F+8}, v{F+12}"); I(f"v_add_f32 v{F}, v{F}, v{F+8}")
    I("s_lshl_b32 s7, s3, 8"); I("v_add_u32 v4, s7, v77")
    I(f"ds_write_b32 v4, v{F} offset:{RED+2304}")
    I("s_waitcnt lgkmcnt(0)")
    I("s_barrier")
    I("s_cmp_eq_u32 s3, s82"); I(f"s_cbranch_scc0 {sk}")
    FB=(RED+2304)//256
    for k in range(4): I(f"ds_read2st64_b32 v[{T+2*k}:{T+2*k+1}], v77 offset0:{FB+2*k} offset1:{FB+2*k+1}")
    I(f"ds_read_b32 v{T+8}, v77 offset:{RED+2304+8*256}")
    I("s_lshl_b32 s7, s82, 7"); I("v_lshl_add_u32 v4, v1, 1, s7")
    srd(64,36,None,1152)
    I("s_waitcnt lgkmcnt(0)")
    I(f"v_add_f32 v{T}, v{T}, v{T+1}"); I(f"v_add_f32 v{T+2}, v{T+2}, v{T+3}"); I(f"v_add_f32 v{T+4}, v{T+4}, v{T+5}"); I(f"v_add_f32 v{T+6}, v{T+6}, v{T+7}")
    I(f"v_add_f32 v{T}, v{T}, v{T+2}"); I(f"v_add_f32 v{T+4}, v{T+4}, v{T+6}"); I(f"v_add_f32 v{T}, v{T}, v{T+8}"); I(f"v_add_f32 v{T}, v{T}, v{T+4}")
    rnd(T,T); I(f"v_mul_f32 v{T}, v{T}, v{GBv}"); rnd(T,T); I(f"v_add_f32 v{T}, v{T}, v{X1}")
    I(f"v_cvt_pk_bf16_f32 v{T}, v{T}, v{T}")
    I(f"buffer_store_short v{T}, v4, s[64:67], 0 offen")
    dstamp(9)
    I("s_cmp_eq_u32 s82, 0"); I(f"s_cbranch_scc0 {sk}")
    I("v_mov_b32 v4, s95"); I("v_lshlrev_b32 v5, 2, v1"); I(f"s_mov_b32 s7, {EPOCH_OFF:#x}")
    setexec(0xffffffff,0)
    I("buffer_store_dword v4, v5, s[44:47], s7 offen sc1")
    a.label(sk)
    finish()

    a.label("L_clean")
    code_touch(8)
    I("v_mov_b32 v156, 0"); I("v_mov_b32 v157, 0"); I("v_mov_b32 v158, 0"); I("v_mov_b32 v159, 0")
    I("v_lshlrev_b32 v5, 4, v1")
    I("v_lshlrev_b32 v4, 2, v1"); I(f"ds_write_b32 v4, v156 offset:{WMAX}")
    I("s_waitcnt lgkmcnt(0)")
    stamp(0)
    epoch_load()
    ws_setup()
    if tlbw:
        I("s_mov_b32 s7, 82944"); I("v_mul_u32_u24 v20, s7, v1")
        srd(48,28,None,5308416); srd(52,30,None,5308416); srd(56,24,None,4718592)
        I("buffer_load_dword v21, v20, s[48:51], 0 offen"); I("buffer_load_dword v22, v20, s[52:55], 0 offen"); I("buffer_load_dword v23, v20, s[56:59], 0 offen")
    I("v_mov_b32 v156, -1"); I("v_mov_b32 v157, -1"); I("v_mov_b32 v158, -1"); I("v_mov_b32 v159, -1")
    if noclear: I("s_branch L_skipclr")
    I(f"buffer_store_dwordx4 v[156:159], v5, s[44:47], s85 offen offset:{P2} sc1")
    setexec(0xffffffff,0xff)
    I(f"buffer_store_dwordx4 v[156:159], v5, s[44:47], s85 offen offset:{P2+1024} sc1")
    fullexec()
    I("s_cmp_eq_u32 s81, 2"); nc=L("noclr"); I(f"s_cbranch_scc0 {nc}")
    I("s_mul_i32 s7, s82, 2304"); I(f"s_add_u32 s7, s7, {P5A:#x}")
    for k in range(2): I(f"buffer_store_dwordx4 v[156:159], v5, s[44:47], s7 offen offset:{1024*k} sc1")
    setexec(0xffff,0)
    I(f"buffer_store_dwordx4 v[156:159], v5, s[44:47], s7 offen offset:2048 sc1")
    fullexec()
    a.label(nc)
    I("s_cmp_eq_u32 s81, 1"); nc2=L("noclr2"); I(f"s_cbranch_scc0 {nc2}")
    I("s_mul_i32 s7, s14, 384"); I(f"s_add_u32 s7, s7, {P4A:#x}")
    setexec(0xffffff,0)
    I(f"buffer_store_dwordx4 v[156:159], v5, s[44:47], s7 offen sc1")
    fullexec()
    a.label(nc2)
    I("s_sub_u32 s8, 6, s6"); I("s_lshl_b32 s8, s8, 4"); I("s_add_u32 s8, s8, s5"); I("s_cmp_lt_u32 s8, 18"); I("s_cbranch_scc0 L_skipclr")
    I("s_lshl_b32 s7, s8, 9"); I(f"s_add_u32 s7, s7, {P1BA:#x}")
    setexec(0xffffffff,0)
    I(f"buffer_store_dwordx4 v[156:159], v5, s[44:47], s7 offen sc1")
    fullexec()
    a.label("L_skipclr")
    (I("s_barrier") if not noB0 else None)
    I("s_waitcnt vmcnt(0) lgkmcnt(0)")
    tag()
    I("v_mov_b32 v4, s95"); I("v_lshlrev_b32 v5, 2, v1")
    setexec(0xffffffff,0)
    I(f"buffer_store_dword v4, v5, s[44:47], s85 offen offset:{FL} sc1")
    stamp(1)
    I("s_cmp_eq_u32 s6, 6"); na=L("noagg"); I(f"s_cbranch_scc0 {na}")
    fullexec()
    I("s_lshl_b32 s7, s5, 4"); I("v_add_u32 v4, s7, v1"); I("v_mul_u32_u24 v4, s86, v4")
    setexec(0xffff,0)
    poll([f"buffer_load_dword v8, v4, s[44:47], 0 offen offset:{FL} sc1","s_sleep 8"],tags=[8],name="agg",tmp=9)
    fullexec()
    I("v_mov_b32 v4, s95"); I(f"s_lshl_b32 s7, s5, 7"); I(f"s_add_u32 s7, s7, {GCLR_OFF:#x}")
    setexec(0xffffffff,0)
    I(f"buffer_store_dword v4, v5, s[44:47], s7 offen sc1")
    a.label(na)
    finish()

    a.label("L_mod")
    TILE,XF,CV,XR,AV,A0,A1,ACC,GB,T=8,80,88,90,92,110,114,118,122,154
    I("s_setprio 2")
    I("s_waitcnt lgkmcnt(0)")
    stamp(0)
    epoch_load()
    srd(64,32,None,1152)
    I("s_and_b32 s7, s4, 7"); I("s_mul_i32 s7, s7, 144")
    I("v_lshlrev_b32 v4, 3, v1")
    I(f"buffer_load_dwordx2 v[{CV}:{CV+1}], v4, s[64:67], s7 offen")
    I("s_cmp_lt_u32 s4, 216"); nomod=L("nomod"); I(f"s_cbranch_scc0 {nomod}")
    I("s_and_b32 s7, s4, 7"); I("s_mul_i32 s7, s7, 497664")
    I("s_lshr_b32 s10, s4, 3"); I("s_lshl_b32 s10, s10, 8"); I("s_add_u32 s7, s7, s10")
    srd_rem(52,34,7,3981312)
    I("s_movk_i32 s7, 0x1b00"); I("v_mul_u32_u24 v4, s7, v2"); I("v_lshl_add_u32 v4, v3, 4, v4")
    for i in range(0 if notiles else 18):
        I(f"s_mov_b32 s84, {i*27648}")
        I(f"buffer_load_dwordx4 {vr(TILE+4*i)}, v4, s[52:55], s84 offen {wflag}")
    (I("s_barrier") if not noB0 else None)
    ws_setup(); diag_consts()
    I("s_waitcnt vmcnt(18)")
    for k in range(2): unpack2(T+2*k,T+2*k+1,CV+k)
    silu([T,T+1,T+2,T+3],[T+4,T+5,T+6,T+7])
    for r in range(4): dup(T+r,T+r)
    I(f"ds_write_b128 v164, {vr(T)} offset:{TL}")
    I("s_waitcnt vmcnt(0) lgkmcnt(0)")
    tag()
    stamp(1)
    matvec18(TILE,AV,A0,A1,ACC,TL)
    I(f"v_permlane32_swap_b32 v{ACC}, v{ACC+2}"); I(f"v_permlane32_swap_b32 v{ACC+1}, v{ACC+3}")
    I(f"v_mov_b32 v{A0}, v{ACC}"); I(f"v_mov_b32 v{A0+1}, s95"); I(f"v_mov_b32 v{A0+2}, v{ACC+1}"); I(f"v_mov_b32 v{A0+3}, s95")
    I(f"buffer_store_dwordx4 {vr(A0)}, v164, s[44:47], s85 offen offset:{P1} sc1")
    stamp(2)
    dstamp(11)
    finish()
    a.label(nomod)
    (I("s_barrier") if not noB0 else None)
    finish()

    a.label("L_ctrl")
    I("s_setprio 3")
    I("s_waitcnt lgkmcnt(0)")
    stamp(0)
    epoch_load()
    srd(48,16,None,1152)
    I("s_lshr_b32 s87, s6, 1"); I("s_mul_i32 s87, s87, 72")
    I("s_lshl_b32 s7, s87, 1")
    I("v_lshlrev_b32 v4, 3, v1")
    I(f"buffer_load_dwordx2 v[{XR}:{XR+1}], v4, s[48:51], s7 offen")
    I("v_lshlrev_b32 v5, 5, v1")
    I(f"buffer_load_dwordx4 {vr(XF)}, v5, s[48:51], 0 offen")
    I(f"buffer_load_dwordx4 {vr(XF+4)}, v5, s[48:51], 0 offen offset:16")
    I("s_lshl_b32 s7, s87, 13"); I("s_lshl_b32 s10, s5, 9"); I("s_add_u32 s7, s7, s10")
    I("s_and_b32 s10, s6, 1"); I("s_lshl_b32 s10, s10, 8"); I("s_add_u32 s7, s7, s10")
    srd_rem(52,22,7,4718592)
    I("v_lshlrev_b32 v4, 13, v2"); I("v_lshl_add_u32 v4, v3, 4, v4")
    for i in range(0 if notiles else 18):
        I(f"s_mov_b32 s84, {i*32768:#x}")
        I(f"buffer_load_dwordx4 {vr(TILE+4*i)}, v4, s[52:55], s84 offen {wflag}")
    (I("s_barrier") if not noB0 else None)
    ws_setup(); diag_consts()
    I("s_waitcnt vmcnt(18) lgkmcnt(0)")
    tag()
    stamp(1)
    S,S2=T,T+1
    I(f"v_mov_b32 v{S}, 0"); I(f"v_mov_b32 v{S2}, 0")
    for k in range(8):
        unpack2(T+2,T+3,XF+k)
        I(f"v_add_f32 v{S}, v{S}, v{T+2}"); I(f"v_fmac_f32 v{S2}, v{T+2}, v{T+2}")
        I(f"v_add_f32 v{S}, v{S}, v{T+3}"); I(f"v_fmac_f32 v{S2}, v{T+3}, v{T+3}")
    for k in (8,4,2,1): ror("v_add_f32",[S,S2],k)
    xswap("v_add_f32",[S,S2],[T+2,T+3],16); xswap("v_add_f32",[S,S2],[T+2,T+3],32)
    MB,INV=XF,XF+1
    ln_stats(S,S2,MB,INV)
    GA=92
    if nochain: I("s_branch L_skipchain")
    I("v_and_b32 v4, 31, v1"); I("v_lshl_add_u32 v4, v4, 2, s87")
    I("v_cmp_lt_u32 vcc, 31, v1"); I("v_mov_b32 v5, 576"); I("v_cndmask_b32 v5, 0, v5, vcc"); I("v_add_u32 v4, v4, v5")
    I("v_lshrrev_b32 v5, 7, v4"); I("v_lshlrev_b32 v5, 3, v5"); I("v_mul_u32_u24 v5, s86, v5")
    I("v_bfe_u32 v156, v4, 3, 4"); I("v_bfe_u32 v157, v4, 2, 1"); I("v_lshl_add_u32 v156, v157, 4, v156")
    I("v_lshl_add_u32 v4, v156, 4, v5")
    I("s_lshl_b32 s7, s5, 4"); I("v_add_u32 v158, s7, v1"); I("v_mul_u32_u24 v158, s86, v158")
    I("v_mov_b32 v159, s95")
    def soffs(n,step,base=88):
        res=["0"]
        for k in range(1,n):
            I(f"s_mov_b32 s{base+k-1}, {k*step}"); res.append(f"s{base+k-1}")
        return res
    so=soffs(8,STRIDE)
    def p1loads():
        l=[]
        for k in range(8):
            l.append(f"buffer_load_dwordx4 {vr(GA+8*k)}, v4, s[44:47], {so[k]} offen offset:{P1} sc1")
            l.append(f"buffer_load_dwordx4 {vr(GA+8*k+4)}, v4, s[44:47], {so[k]} offen offset:{P1+512} sc1")
        return l
    p1tags=[GA+8*k+o for k in range(8) for o in (1,3,5,7)]
    def p1sum(D):
        for r,o in enumerate((0,2,4,6)): I(f"v_add_f32 v{D+r}, v{GA+o}, v{GA+8+o}")
        for k in range(2,8):
            for r,o in enumerate((0,2,4,6)): I(f"v_add_f32 v{D+r}, v{D+r}, v{GA+8*k+o}")
    def sleep(nn):
        while nn>0:
            k=min(nn,120); I(f"s_sleep {k}"); nn-=k
    sleep(sl1)
    setexec(0x3ffff,0x3ffff)
    poll(p1loads()+["s_mov_b32 exec_lo, 0xffff","s_mov_b32 exec_hi, 0",f"buffer_load_dword v159, v158, s[44:47], 0 offen offset:{FL} sc1","s_mov_b32 exec_lo, 0x3ffff","s_mov_b32 exec_hi, 0x3ffff"],
         tags=p1tags+[159], name="m", tmp=160)
    fullexec()
    stamp(4)
    p1sum(156)
    for r in range(4): rnd(GB+r,156+r)
    for r in range(4): I(f"v_mov_b32 v{GB+4+r}, v{GB+r}")
    for r in range(4): I(f"v_permlane32_swap_b32 v{GB+r}, v{GB+4+r}")
    H=GB+8; Tt=GB+12
    unpack2(H,H+1,XR); unpack2(H+2,H+3,XR+1)
    for r in range(4): I(f"v_sub_f32 v{H+r}, v{H+r}, v{MB}")
    for r in range(4): I(f"v_add_f32 v{Tt+r}, 1.0, v{GB+4+r}")
    for r in range(4): rnd(H+r,H+r)
    for r in range(4): rnd(Tt+r,Tt+r)
    for r in range(4): I(f"v_mul_f32 v{H+r}, v{H+r}, v{INV}")
    for r in range(4): rnd(H+r,H+r)
    for r in range(4): I(f"v_mul_f32 v{H+r}, v{H+r}, v{Tt+r}")
    for r in range(4): rnd(H+r,H+r)
    for r in range(4): I(f"v_add_f32 v{H+r}, v{H+r}, v{GB+r}")
    for r in range(4): dup(H+r,H+r)
    I(f"ds_write_b128 v164, {vr(H)} offset:{TL2}")
    I("s_waitcnt lgkmcnt(0)")
    matvec18(TILE,AV,A0,A1,ACC,TL2)
    I("v_lshlrev_b32 v4, 5, v3"); I("v_lshl_add_u32 v4, v2, 4, v4")
    setexec(0xffffffff,0)
    I(f"buffer_store_dwordx4 {vr(ACC)}, v4, s[44:47], s85 offen offset:{P2} sc1")
    fullexec()
    stamp(5)
    nr=L("nored")
    I("s_sub_u32 s13, 6, s6"); I("s_lshl_b32 s13, s13, 4"); I("s_add_u32 s13, s13, s5"); I("s_cmp_lt_u32 s13, 18"); I(f"s_cbranch_scc0 {nr}")
    I("s_add_u32 s7, s13, 9"); I(f"s_mul_i32 s7, s7, {8*STRIDE}")
    I("v_and_b32 v4, 1, v1"); I("v_lshrrev_b32 v5, 1, v1"); I("v_lshl_add_u32 v4, v4, 4, v5"); I("v_lshl_add_u32 v4, v4, 4, s7")
    setexec(0xffffffff,0)
    poll(p1loads(), tags=p1tags, name="b", tmp=160)
    p1sum(156)
    for r in range(4): rnd(156+r,156+r)
    I("s_lshl_b32 s7, s13, 9"); I(f"s_add_u32 s7, s7, {P1BA:#x}")
    I(f"buffer_store_dwordx4 v[156:159], v164, s[44:47], s7 offen sc1")
    fullexec()
    a.label(nr)
    I("v_lshrrev_b32 v4, 5, v1"); I("s_lshl_b32 s7, s5, 4"); I("v_add_u32 v4, s7, v4"); I("v_mul_u32_u24 v4, s86, v4")
    I("v_and_b32 v5, 31, v1"); I("v_lshl_add_u32 v4, v5, 4, v4")
    I("v_lshlrev_b32 v158, 7, v1"); I("v_mov_b32 v159, s95"); I(f"s_mov_b32 s12, {GCLR_OFF:#x}")
    so=soffs(8,2*STRIDE)
    sleep(sl2)
    poll([f"buffer_load_dwordx4 {vr(GB+4*k)}, v4, s[44:47], {so[k]} offen offset:{P2} sc1" for k in range(8)]+
         ["s_mov_b32 exec_lo, 0xffff","s_mov_b32 exec_hi, 0","buffer_load_dword v159, v158, s[44:47], s12 offen sc1","s_mov_b64 exec, -1"],
         sent=list(range(GB,GB+32)), tags=[159], name="q", tmp=160)
    for k in (0,2,4,6):
        for r in range(4): I(f"v_add_f32 v{GB+4*k+r}, v{GB+4*k+r}, v{GB+4*k+4+r}")
    for k in (0,4):
        for r in range(4): I(f"v_add_f32 v{GB+4*k+r}, v{GB+4*k+r}, v{GB+4*k+8+r}")
    for r in range(4): I(f"v_add_f32 v{GB+r}, v{GB+r}, v{GB+16+r}")
    I(f"v_cvt_pk_bf16_f32 v{GB+4}, v{GB}, v{GB+1}"); I(f"v_cvt_pk_bf16_f32 v{GB+5}, v{GB+2}, v{GB+3}")
    I("v_lshlrev_b32 v4, 3, v1")
    I(f"ds_write_b64 v4, v[{GB+4}:{GB+5}] offset:{QL}")
    I("s_waitcnt lgkmcnt(0)")
    a.label("L_skipchain")
    stamp(6)
    dstamp(2)
    I("s_barrier")
    code_touch(8)
    I("s_mov_b32 s72, 0xffff0000"); I("s_mov_b32 s73, 0"); I("s_mov_b32 s74, 0"); I("s_mov_b32 s75, 0xffff"); I("s_mov_b32 s76, 0"); I("s_mov_b32 s77, 0xffff0000")
    I("s_barrier")
    I("v_lshlrev_b32 v152, 4, v1"); I("v_mov_b32 v4, 0")
    I(f"ds_read_b128 {vr(80)}, v4 offset:{WMAX}"); I(f"ds_read_b128 {vr(84)}, v4 offset:{WMAX+16}")
    I(f"ds_read_b128 {vr(88)}, v4 offset:{WMAX+32}"); I(f"ds_read_b128 {vr(92)}, v4 offset:{WMAX+48}")
    I("s_waitcnt lgkmcnt(0)")
    R=96
    for h in range(2):
        b=80+8*h
        I(f"v_max3_f32 v{R+2*h}, v{b}, v{b+1}, v{b+2}"); I(f"v_max3_f32 v{R+2*h}, v{R+2*h}, v{b+3}, v{b+4}")
        I(f"v_max3_f32 v{R+2*h}, v{R+2*h}, v{b+5}, v{b+6}"); I(f"v_max_f32 v{R+2*h}, v{R+2*h}, v{b+7}")
    I("s_barrier")
    I(f"ds_read_b64 v[100:101], v4 offset:{LSUM}")
    I("s_waitcnt lgkmcnt(0)")
    I(f"v_mov_b32 v{R+1}, v100"); I(f"v_mov_b32 v{R+3}, v101")
    setexec(0xff,0)
    I(f"buffer_store_dwordx4 {vr(R)}, v152, s[44:47], s85 offen offset:{ML} sc1")
    fullexec()
    I("s_barrier")
    stamp(7)
    O=104
    for k in range(8): I(f"ds_read_b128 {vr(O+4*k)}, v152 offset:{OBUF+1024*k}")
    for k in (0,2,4,6):
        I(f"s_waitcnt lgkmcnt({6-k})")
        for r in range(4): I(f"v_add_f32 v{O+4*k+r}, v{O+4*k+r}, v{O+4*k+4+r}")
    for k in (0,4):
        for r in range(4): I(f"v_add_f32 v{O+4*k+r}, v{O+4*k+r}, v{O+4*k+8+r}")
    for r in range(4): I(f"v_add_f32 v{O+r}, v{O+r}, v{O+16+r}")
    I(f"buffer_store_dwordx4 {vr(O)}, v152, s[44:47], s85 offen offset:{P3} sc1")
    stamp(8)
    dstamp(5)
    if notail: finish()
    I("s_cmp_eq_u32 s81, 2"); I("s_cbranch_scc1 L_mlp_tail")
    I("s_cmp_eq_u32 s81, 1"); cw=L("cwo"); I(f"s_cbranch_scc1 {cw}")
    finish()
    a.label(cw)
    a.C("wo role control: canary on the 16 ML lines, compute normalised split weights")
    I("s_lshl_b32 s7, s5, 4"); I("v_add_u32 v4, s7, v1"); I("v_mul_u32_u24 v4, s86, v4")
    setexec(0xffff,0)
    poll([f"buffer_load_dwordx4 {vr(80)}, v4, s[44:47], 0 offen offset:{ML} sc1"], sent=[80,81,82,83], name="ml", tmp=84)
    I("s_cmp_eq_u32 s6, 0"); nf=L("nof4"); I(f"s_cbranch_scc0 {nf}")
    fullexec()
    I("v_mov_b32 v5, s95"); I("v_lshlrev_b32 v6, 2, v1"); I("s_lshl_b32 s7, s5, 7"); I(f"s_add_u32 s7, s7, {F4A:#x}")
    setexec(0xffffffff,0)
    I("buffer_store_dword v5, v6, s[44:47], s7 offen sc1")
    setexec(0xffff,0)
    a.label(nf)
    I("v_mov_b32 v84, v80"); I("v_mov_b32 v85, v82")
    for k in (8,4,2,1): ror("v_max_f32",[84,85],k)
    I("v_sub_f32 v80, v80, v84"); I("v_sub_f32 v82, v82, v85")
    I(f"v_mul_f32 v80, {LOG2E:#x}, v80"); I(f"v_mul_f32 v82, {LOG2E:#x}, v82")
    I("v_exp_f32 v80, v80"); I("v_exp_f32 v82, v82")
    I("v_mul_f32 v84, v80, v81"); I("v_mul_f32 v85, v82, v83")
    for k in (8,4,2,1): ror("v_add_f32",[84,85],k)
    I("v_rcp_f32 v84, v84"); I("v_rcp_f32 v85, v85")
    I("v_mul_f32 v80, v80, v84"); I("v_mul_f32 v82, v82, v85")
    I("v_lshlrev_b32 v4, 2, v1")
    I(f"ds_write_b32 v4, v80 offset:{WGT}"); I(f"ds_write_b32 v4, v82 offset:{WGT+64}")
    I("s_waitcnt lgkmcnt(0)")
    fullexec()
    I("s_barrier")
    finish()
    a.label("L_end")
    I("s_endpgm")

    body=a.finish()
    out=HEADER
    out+=f"; @launch grid=(256,1,1) block=(704,1,1) lds={LDS_BYTES}\n"
    out+='.amdgcn_target "amdgcn-amd-amdhsa--gfx950"\n.text\n'
    out+=f".globl {NAME}_kernel\n.p2align 8\n.type {NAME}_kernel,@function\n"
    out+=body
    out+=f""".section .rodata,"a"
.p2align 6
.amdhsa_kernel {NAME}_kernel
  .amdhsa_next_free_vgpr 168
  .amdhsa_next_free_sgpr 100
  .amdhsa_accum_offset 168
  .amdhsa_group_segment_fixed_size 0
  .amdhsa_float_denorm_mode_32 3
  .amdhsa_kernarg_size 104
  .amdhsa_user_sgpr_count 2
  .amdhsa_user_sgpr_kernarg_segment_ptr 1
  .amdhsa_system_sgpr_workgroup_id_x 1
.end_amdhsa_kernel
"""
    return out

if __name__=="__main__":
    import argparse
    p=argparse.ArgumentParser()
    p.add_argument("-o",default="cdna_kernels/"+NAME+".s")
    p.add_argument("--W",type=int,default=4); p.add_argument("--Wwo",type=int,default=5)
    p.add_argument("--ld",default=""); p.add_argument("--wf",default=""); p.add_argument("--stamps",action="store_true")
    p.add_argument("--sl1",type=int,default=140); p.add_argument("--sl2",type=int,default=40); p.add_argument("--norot",action="store_true"); p.add_argument("--woearly",action="store_true"); p.add_argument("--W2",type=int,default=4); p.add_argument("--Ww",type=int,default=3); p.add_argument("--psleep",type=int,default=0); p.add_argument("--nowt",action="store_true"); p.add_argument("--notail",action="store_true"); p.add_argument("--gate",type=int,default=1); p.add_argument("--notlbw",action="store_true"); p.add_argument("--notiles",action="store_true"); p.add_argument("--nochain",action="store_true"); p.add_argument("--noclear",action="store_true"); p.add_argument("--noB0",action="store_true"); p.add_argument("--dbg",action="store_true")
    x=p.parse_args()
    open(x.o,"w").write(gen(W=x.W,Wwo=x.Wwo,ldflag=x.ld,wflag=x.wf,stamps=x.stamps,sl1=x.sl1,sl2=x.sl2,rot=not x.norot,wolate=not x.woearly,W2=x.W2,Ww=x.Ww,psleep=x.psleep,nowt=x.nowt,notail=x.notail,gate=x.gate,tlbw=not x.notlbw,notiles=x.notiles,nochain=x.nochain,noclear=x.noclear,noB0=x.noB0,dbg=x.dbg))
```

```python
from asmlib import Asm

NAME="adaLN_cond__gqa_block_cached__dense_activation_silu__decode"
STRIDE=2816
P1,P2,P3,ML,FL=0,1024,1536,2560,2688
P4A,P5A,P1BA,F4A=0xB0000,0xBA000,0x10B000,0x10D400
GCLR_OFF=0x10E000; EPOCH_OFF=0x10F000; WS_SIZE=0x110000
QL,TL,TL2,WMAX,LSUM,STAT,WGT,RED,SCR,OBUF,WAREA=0,512,1536,2560,2624,2632,2688,2816,7424,12032,20224
WOA=WAREA
LDS_BYTES=WAREA+9*8192
SPIN=200000
LOG2E=0x3fb8aa3b
SCALE=0x3db504f3
EPS=0x3727c5ac
INV576=0x3ae38e39
STAMP_OFF=0x400000
HASH_A=0x9E3779B1; HASH_C=0x7F4A7C15
CODE_SLICE=2048
HEADER=open("cdna_kernels/"+NAME+".s.ref").read().split("; Override launch")[0]

def gen(W=4, Wwo=5, ldflag="", wflag="", stamps=False, sl1=140, sl2=40, rot=True, wolate=True, W2=4, Ww=3, psleep=0, nowt=False, notail=False, gate=1, tlbw=True, notiles=False, nochain=False, noclear=False, noB0=False, dbg=False):
    a=Asm(); I=a.I
    uid=[0]
    def L(p):
        uid[0]+=1; return f"L_{p}_{uid[0]}"
    def vr(b,n=4): return f"v[{b}:{b+n-1}]"
    def rnd(d,s): I(f"v_cvt_pk_bf16_f32 v{d}, 0, v{s}")
    def dup(d,s): I(f"v_cvt_pk_bf16_f32 v{d}, v{s}, v{s}")
    def dpp(op,d,s0,s1,ctl): I(f"{op}_dpp v{d}, v{s0}, v{s1} {ctl} row_mask:0xf bank_mask:0xf")
    def ror(op,regs,k):
        for v in regs: dpp(op,v,v,v,f"row_ror:{k}")
    def xswap(op,regs,tmp,which):
        for v,t in zip(regs,tmp): I(f"v_mov_b32 v{t}, v{v}")
        for v,t in zip(regs,tmp): I(f"v_permlane{which}_swap_b32 v{v}, v{t}")
        for v,t in zip(regs,tmp): I(f"{op} v{v}, v{v}, v{t}")
    STV=7
    _I=I
    def I(t):
        if nowt and " lds" in t and "buffer_load" in t: return
        _I(t)
    DBGMAP={}
    def dstamp(slot, inv=False, only=None, wg=7):
        if not dbg or inv: return
        sk=L("ds")
        I(f"s_cmp_eq_u32 s4, {wg}"); I(f"s_cbranch_scc0 {sk}")
        if only is not None:
            I(f"s_cmp_eq_u32 s3, {only}"); I(f"s_cbranch_scc0 {sk}")
        I("s_memrealtime s[96:97]"); I("s_waitcnt lgkmcnt(0)")
        I("s_mov_b64 s[92:93], exec"); I("s_mov_b64 exec, 1")
        I("v_mov_b32 v7, s96"); I(f"v_mov_b32 v0, {slot*4}")
        I("global_store_dword v0, v7, s[38:39]")
        I("s_mov_b64 exec, s[92:93]")
        a.label(sk)
    def stamp(i):
        if dbg and i in DBGMAP: dstamp(*DBGMAP[i])
        if stamps:
            I("s_memrealtime s[96:97]"); I("s_waitcnt lgkmcnt(0)")
            I(f"v_writelane_b32 v{STV}, s96, {i}")
    def finish():
        if stamps:
            I("s_mov_b64 exec, -1")
            stamp(15)
            I("s_mul_i32 s7, s4, 11"); I("s_add_u32 s7, s7, s3"); I("s_lshl_b32 s7, s7, 8"); I(f"s_add_u32 s7, s7, {STAMP_OFF}")
            I("s_add_u32 s8, s40, s7"); I("s_addc_u32 s9, s41, 0")
            I("v_lshlrev_b32 v8, 2, v1")
            I(f"global_store_dword v8, v{STV}, s[8:9]")
        I("s_endpgm")
    def spin_tail(lo,dn):
        I(f"s_cbranch_vccz {dn}")
        if psleep: I(f"s_sleep {psleep}")
        I("s_add_u32 s80, s80, 1"); I(f"s_cmp_lt_u32 s80, {SPIN}"); I(f"s_cbranch_scc1 {lo}")
        a.label(dn)
    def check_sent(regs,tmp):
        regs=list(regs); i=0; cur=None
        if len(regs)==1: cur=regs[0]
        else:
            while i<len(regs):
                if cur is None:
                    if len(regs)-i>=3: I(f"v_max3_u32 v{tmp}, v{regs[i]}, v{regs[i+1]}, v{regs[i+2]}"); i+=3
                    else: I(f"v_max_u32 v{tmp}, v{regs[i]}, v{regs[i+1]}"); i+=2
                    cur=tmp
                else:
                    if len(regs)-i>=2: I(f"v_max3_u32 v{tmp}, v{tmp}, v{regs[i]}, v{regs[i+1]}"); i+=2
                    else: I(f"v_max_u32 v{tmp}, v{tmp}, v{regs[i]}"); i+=1
        I(f"v_cmp_eq_u32 vcc, -1, v{cur}")
    def check_tags(tagregs,tmp,first=True):
        for k,r in enumerate(tagregs):
            if k==0 and first: I(f"v_xor_b32 v{tmp}, s95, v{r}")
            else: I(f"v_xad_u32 v{tmp}, v{r}, s95, v{tmp}")
    def poll(loads, sent=(), tags=(), name="p", tmp=0, mid=None):
        lo=L("poll"+name); dn=L("pd"+name)
        I("s_mov_b32 s80, 0")
        a.label(lo)
        for t in loads: I(t)
        I("s_waitcnt vmcnt(0)")
        if mid: mid()
        if sent and tags:
            check_tags(tags,tmp+1)
            check_sent(sent,tmp)
            I(f"v_cmp_ne_u32 s[10:11], 0, v{tmp+1}")
            I("s_or_b64 vcc, vcc, s[10:11]")
        elif tags:
            check_tags(tags,tmp); I(f"v_cmp_ne_u32 vcc, 0, v{tmp}")
        else:
            check_sent(sent,tmp)
        spin_tail(lo,dn)
    def setexec(lo,hi):
        I(f"s_mov_b32 exec_lo, {lo:#x}"); I(f"s_mov_b32 exec_hi, {hi:#x}")
    def fullexec(): I("s_mov_b64 exec, -1")
    def srd(dst, base, off, size):
        if off is None:
            I(f"s_mov_b32 s{dst}, s{base}"); I(f"s_mov_b32 s{dst+1}, s{base+1}")
        else:
            I(f"s_add_u32 s{dst}, s{base}, s{off}"); I(f"s_addc_u32 s{dst+1}, s{base+1}, 0")
        I(f"s_mov_b32 s{dst+2}, {size}"); I(f"s_mov_b32 s{dst+3}, 0x20000")
    def srd_rem(dst, base, off, total):
        I(f"s_add_u32 s{dst}, s{base}, s{off}"); I(f"s_addc_u32 s{dst+1}, s{base+1}, 0")
        I(f"s_sub_u32 s{dst+2}, {total}, s{off}"); I(f"s_mov_b32 s{dst+3}, 0x20000")
    def silu(vs,ts):
        for v,t in zip(vs,ts): I(f"v_mul_f32 v{t}, 0xbfb8aa3b, v{v}")
        for v,t in zip(vs,ts): I(f"v_exp_f32 v{t}, v{t}")
        for v,t in zip(vs,ts): I(f"v_add_f32 v{t}, 1.0, v{t}")
        for v,t in zip(vs,ts): I(f"v_rcp_f32 v{t}, v{t}")
        for v,t in zip(vs,ts): I(f"v_mul_f32 v{v}, v{v}, v{t}")
    def ln_stats(S,S2,mean_b,inv):
        I(f"v_mul_f32 v{S}, {INV576:#x}, v{S}")
        I(f"v_mul_f32 v{S2}, {INV576:#x}, v{S2}")
        I(f"v_fma_f32 v{S2}, -v{S}, v{S}, v{S2}")
        rnd(mean_b,S)
        I(f"v_max_f32 v{S2}, 0, v{S2}")
        rnd(S2,S2)
        I(f"v_add_f32 v{S2}, {EPS:#x}, v{S2}")
        rnd(S2,S2)
        I(f"v_sqrt_f32 v{S2}, v{S2}")
        rnd(S2,S2)
        I(f"v_rcp_f32 v{inv}, v{S2}")
    def unpack2(d0,d1,s):
        I(f"v_and_b32 v{d1}, 0xffff0000, v{s}")
        I(f"v_lshlrev_b32 v{d0}, 16, v{s}")
    def roles():
        I("s_mul_i32 s14, s5, 6"); I("s_add_u32 s14, s14, s6")
        I("s_mul_i32 s82, s5, 9"); I("s_add_u32 s82, s82, s6"); I("s_sub_u32 s82, s82, 7")
        I("s_cmp_lt_u32 s6, 6"); I("s_cselect_b32 s81, 1, 0")
        I("s_cmp_ge_u32 s6, 7"); I("s_cselect_b32 s81, 2, s81")
    def ws_setup():
        srd(44,40,None,WS_SIZE)
        I(f"s_mul_i32 s85, s4, {STRIDE}")
        I(f"s_movk_i32 s86, {STRIDE}")
    def tag():
        I(f"s_mul_i32 s95, s94, {HASH_A:#x}"); I(f"s_add_u32 s95, s95, {HASH_C:#x}")
    def epoch_load():
        I(f"s_add_u32 s8, s40, {EPOCH_OFF:#x}"); I("s_addc_u32 s9, s41, 0"); I("s_load_dword s94, s[8:9], 0")
    def diag_consts():
        for r,m in enumerate((0x03030303,0x0c0c0c0c,0x30303030,0xc0c0c0c0)):
            I(f"s_mov_b32 s{72+2*r}, {m:#x}"); I(f"s_mov_b32 s{73+2*r}, {m:#x}")
        I("v_and_b32 v162, 1, v1"); I("v_cmp_eq_u32 vcc, 1, v162")
        I("v_mov_b32 v162, 0xffff"); I("v_mov_b32 v163, 0xffff0000"); I("v_cndmask_b32 v162, v162, v163, vcc")
        I("v_cmp_gt_u32 vcc, 8, v3"); I("v_cndmask_b32 v162, 0, v162, vcc")
        I("v_lshlrev_b32 v163, 2, v2"); I("v_lshlrev_b32 v164, 4, v1")
    def matvec18(tile, AV, A0, A1, acc, tl):
        for i in range(18): I(f"ds_read_b32 v{AV+i}, v163 offset:{tl+16*i}")
        for i in range(18):
            if i in (0,6,12): I(f"s_waitcnt lgkmcnt({12-i if i<12 else 0})")
            A = A0 if i%2==0 else A1
            I(f"v_and_b32 v{AV+i}, v{AV+i}, v162")
            for r in range(4): I(f"v_cndmask_b32 v{A+r}, 0, v{AV+i}, s[{72+2*r}:{73+2*r}]")
            src = "0" if i==0 else vr(acc)
            I(f"v_mfma_f32_16x16x32_bf16 {vr(acc)}, {vr(A)}, {vr(tile+4*i)}, {src}")
    def code_touch(dst):
        I("s_getpc_b64 s[8:9]")
        lb=L("pc"); a.label(lb)
        I("s_bfe_u32 s7, s2, 0x30003"); I(f"s_mul_i32 s7, s7, {CODE_SLICE}")
        I(f"s_sub_u32 s8, s8, {lb}-{NAME}_kernel"); I("s_subb_u32 s9, s9, 0")
        I(f"v_lshlrev_b32 v{dst}, 4, v1")
        for k in range(CODE_SLICE//1024):
            I(f"v_add_u32 v{dst+1}, s7, v{dst}"); I(f"s_add_u32 s7, s7, 0x400")
            I(f"v_min_u32 v{dst+1}, L_end-{NAME}_kernel-16, v{dst+1}")
            I(f"global_load_dwordx4 {vr(dst+4+4*k)}, v{dst+1}, s[8:9]")

    a.raw(f"{NAME}_kernel:")
    I("s_cmp_ge_u32 s2, 256"); I("s_cbranch_scc1 L_end")
    I("s_load_dwordx16 s[16:31], s[0:1], 0")
    I("s_load_dwordx8 s[32:39], s[0:1], 64")
    I("s_load_dwordx2 s[40:41], s[0:1], 96")
    I("v_lshrrev_b32 v4, 6, v0")
    I("v_and_b32 v1, 63, v0")
    I("v_readfirstlane_b32 s3, v4")
    I("v_lshrrev_b32 v2, 4, v1")
    I("v_and_b32 v3, 15, v1")
    I("s_and_b32 s5, s2, 7"); I("s_lshl_b32 s5, s5, 1"); I("s_bfe_u32 s7, s2, 0x10003"); I("s_or_b32 s5, s5, s7")
    I("s_lshr_b32 s6, s2, 4")
    I("s_lshl_b32 s4, s5, 4"); I("s_or_b32 s4, s4, s6")
    if stamps: I("v_mov_b32 v7, 0")
    roles()
    I("s_cmp_eq_u32 s3, 0"); I("s_cbranch_scc1 L_ctrl")
    I("s_cmp_eq_u32 s3, 9"); I("s_cbranch_scc1 L_mod")
    I("s_cmp_eq_u32 s3, 10"); I("s_cbranch_scc1 L_clean")

    a.C("================ worker waves (1..8) ================")
    KB,VB,SB,TB=8,72,136,152
    I("s_sub_u32 s83, s3, 1")
    I("v_lshlrev_b32 v4, 8, v3"); I("v_lshl_add_u32 v4, v2, 4, v4")
    I("v_lshlrev_b32 v5, 10, v2"); I("v_lshl_add_u32 v5, v3, 4, v5")
    I("s_lshl_b32 s7, s4, 17"); I("s_lshl_b32 s8, s83, 14"); I("s_add_u32 s7, s7, s8")
    if rot:
        I("s_add_u32 s10, s4, s83")
        for t in range(4):
            I(f"s_add_u32 s11, s10, {t}"); I("s_and_b32 s11, s11, 3"); I(f"s_lshl_b32 s{68+t}, s11, 12")
    else:
        for t in range(4): I(f"s_mov_b32 s{68+t}, {t*4096}")
    soff=["s68","s69","s70","s71"]
    I("s_cmp_eq_u32 s81, 1"); nw_=L("dw1"); dd_=L("dwd"); I(f"s_cbranch_scc0 {nw_}")
    I("s_lshl_b32 s12, s5, 8"); I("s_lshl_b32 s13, s83, 5"); I("s_add_u32 s12, s12, s13"); I("s_mul_i32 s12, s12, 1152")
    I("s_mul_i32 s13, s6, 192"); I("s_add_u32 s12, s12, s13")
    I("s_mul_i32 s13, s83, 6144"); I(f"s_add_u32 s13, s13, {WAREA}"); I("s_mov_b32 s79, 0")
    I("s_movk_i32 s10, 0x1556"); I("s_movk_i32 s11, 0x480")
    for i_ in range(3):
        I(f"v_add_u32 v0, {64*i_}, v1"); I("v_mul_u32_u24 v6, s10, v0"); I("v_lshrrev_b32 v6, 16, v6")
        I("v_mul_u32_u24 v164, 12, v6"); I("v_sub_u32 v0, v0, v164")
        I("v_mul_u32_u24 v6, s11, v6"); I(f"v_lshl_add_u32 v{165+i_}, v0, 4, v6")
    I(f"s_branch {dd_}")
    a.label(nw_)
    I("s_mul_i32 s12, s3, 589824"); I("s_lshl_b32 s13, s82, 6"); I("s_add_u32 s12, s12, s13")
    I("s_mul_i32 s79, s82, 36864"); I("s_lshl_b32 s13, s3, 7"); I("s_add_u32 s79, s79, s13")
    I("s_lshl_b32 s13, s3, 13"); I(f"s_add_u32 s13, s13, {WAREA}")
    I("v_lshrrev_b32 v167, 2, v1"); I("s_movk_i32 s10, 0x2400"); I("v_mul_u32_u24 v167, s10, v167"); I("v_and_b32 v0, 3, v1"); I("v_lshl_add_u32 v167, v0, 4, v167")
    I("v_lshrrev_b32 v166, 3, v1"); I("s_movk_i32 s10, 0x480"); I("v_mul_u32_u24 v166, s10, v166"); I("v_and_b32 v0, 7, v1"); I("v_lshl_add_u32 v166, v0, 4, v166")
    I("v_mov_b32 v165, 0")
    I("s_cmp_eq_u32 s81, 0"); I("s_cselect_b32 s12, 0, s12"); I("s_cselect_b32 s79, 0, s79")
    a.label(dd_)
    I("s_waitcnt lgkmcnt(0)")
    stamp(0)
    dstamp(0,True,1); dstamp(1,False,1)
    srd(48,18,7,16384); srd(52,20,7,16384)
    I("s_cmp_eq_u32 s81, 1"); I("s_cselect_b32 s56, s24, s28"); I("s_cselect_b32 s57, s25, s29"); I("s_mov_b32 s58, 5308416"); I("s_cselect_b32 s58, 4718592, s58")
    I("s_add_u32 s56, s56, s12"); I("s_addc_u32 s57, s57, 0"); I("s_sub_u32 s58, s58, s12"); I("s_mov_b32 s59, 0x20000")
    srd_rem(60,30,79,5308416)
    I("s_cmp_eq_u32 s81, 0"); I("s_cselect_b32 s58, 0, s58"); I("s_cselect_b32 s62, 0, s62")
    (I("s_barrier") if not noB0 else None)
    def consts_w():
        ws_setup()
        I("v_and_b32 v152, 1, v1"); I("v_cmp_eq_u32 vcc, 1, v152")
        I("v_mov_b32 v152, 0xffff"); I("v_mov_b32 v153, 0xffff0000"); I("v_cndmask_b32 v152, v152, v153, vcc")
        I("v_bfe_u32 v153, v1, 1, 2")
        for r in range(4):
            I(f"v_cmp_eq_u32 vcc, {r}, v153"); I(f"v_cndmask_b32 v{160+r}, 0, v152, vcc")
        I("s_mov_b32 s72, 0xffff0000"); I("s_mov_b32 s73, 0"); I("s_mov_b32 s74, 0"); I("s_mov_b32 s75, 0xffff"); I("s_mov_b32 s76, 0"); I("s_mov_b32 s77, 0xffff0000")
    def stream(Wn, wo):
        if wo:
            I("v_lshlrev_b32 v0, 1, v2"); I("v_xor_b32 v0, v0, v3"); I("s_movk_i32 s10, 0x480"); I("v_mul_u32_u24 v6, s10, v2")
            I("v_lshl_add_u32 v164, v0, 4, v6"); I("v_xor_b32 v0, 8, v0"); I("v_lshl_add_u32 v165, v0, 4, v6")
            for i in range(8):
                I(f"s_add_u32 m0, s13, {i*1024}"); I(f"s_mov_b32 s84, {i*4608}")
                I(f"buffer_load_dwordx4 v{164+(i&1)}, s[56:59], s84 offen lds {wflag}".replace(" lds nt"," nt lds"))
                if i>=Wn-1: I(f"s_waitcnt vmcnt({Wn-1})")
        for t in range(4):
            for c in range(4):
                I(f"buffer_load_dwordx4 {vr(KB+(4*t+c)*4)}, v4, s[48:51], {soff[t]} offen offset:{c*64} {ldflag}")
                if wo or 4*t+c>=Wn-1: I(f"s_waitcnt vmcnt({Wn-1})")
        for idx in range(16):
            t,r=divmod(idx,4)
            I(f"buffer_load_dwordx4 {vr(VB+idx*4)}, v5, s[52:55], {soff[t]} offen offset:{r*256} {ldflag}")
            if idx<15: I(f"s_waitcnt vmcnt({(Wn if idx<6 else max(Wn,W2))-1})")
            if idx==3: consts_w()
    stream(W,False)
    MK=160; Q=152; ACC=164
    stamp(1)
    dstamp(3,False,8)
    I("s_barrier")
    stamp(2)
    I("v_lshrrev_b32 v5, 3, v3"); I("v_lshlrev_b32 v5, 8, v5"); I("v_lshl_add_u32 v5, v2, 4, v5")
    I(f"ds_read_b128 {vr(Q)}, v5 offset:{QL}"); I(f"ds_read_b128 {vr(Q+4)}, v5 offset:{QL+64}")
    I("s_waitcnt vmcnt(16)")
    for c in range(4):
        I(f"s_waitcnt lgkmcnt({1 if c<3 else 0})")
        qb=Q+4*(c%2)
        for t in range(4):
            src = "0" if c==0 else vr(SB+4*t)
            I(f"v_mfma_f32_16x16x32_bf16 {vr(SB+4*t)}, {vr(qb)}, {vr(KB+(4*t+c)*4)}, {src}")
        if c<2: I(f"ds_read_b128 {vr(qb)}, v5 offset:{QL+(c+2)*64}")
    def dma(v,srd_,so,m0off):
        I(f"s_add_u32 m0, s13, {m0off}"); I(f"s_mov_b32 s84, {so}")
        I(f"buffer_load_dwordx4 v{v}, s[{srd_}:{srd_+3}], s84 offen lds {wflag}".replace(" lds nt"," nt lds"))
    I("s_cmp_eq_u32 s81, 1"); dm_=L("dmamlp"); de_=L("dmaend"); I(f"s_cbranch_scc0 {dm_}")
    for i in range(6): dma(165+i%3,56,(i//3)*16*1152,i*1024)
    I(f"s_branch {de_}")
    a.label(dm_)
    for i in range(4): dma(167,56,i*147456,i*1024)
    for i in range(2): dma(166,60,i*9216,4096+i*1024)
    a.label(de_)
    S=[SB,SB+4,SB+8,SB+12]
    I("v_lshrrev_b32 v6, 1, v2"); I("v_lshlrev_b32 v0, 8, v6"); I("v_lshlrev_b32 v6, 5, v6")
    I("s_lshl_b32 s7, s83, 2"); I("v_add_u32 v4, s7, v6")
    I("s_lshl_b32 s9, s83, 9"); I(f"s_add_u32 s9, s9, {SCR}")
    I("v_lshl_add_u32 v0, v3, 2, v0"); I("v_add_u32 v0, s9, v0")
    for x in S: rnd(x,x)
    for x in S: I(f"v_mul_f32 v{x}, {SCALE:#x}, v{x}")
    for x in S: rnd(x,x)
    M=SB+1; M2=SB+2
    I(f"v_max3_f32 v{M}, v{S[0]}, v{S[1]}, v{S[2]}"); I(f"v_max_f32 v{M}, v{M}, v{S[3]}")
    for k in (8,4,2,1): ror("v_max_f32",[M],k)
    I(f"ds_write_b32 v4, v{M} offset:{WMAX}")
    I("s_waitcnt lgkmcnt(0)")
    I("s_barrier")
    I(f"ds_read_b128 {vr(Q)}, v6 offset:{WMAX}"); I(f"ds_read_b128 {vr(Q+4)}, v6 offset:{WMAX+16}")
    I("v_lshrrev_b32 v5, 3, v3"); I("v_lshlrev_b32 v5, 8, v5"); I("v_lshl_add_u32 v5, v2, 4, v5"); I("v_add_u32 v5, s9, v5")
    I(f"s_mov_b32 s7, {LOG2E:#x}")
    I("s_waitcnt lgkmcnt(0)")
    I(f"v_max3_f32 v{M}, v{Q}, v{Q+1}, v{Q+2}"); I(f"v_max3_f32 v{M2}, v{Q+3}, v{Q+4}, v{Q+5}")
    I(f"v_max3_f32 v{M}, v{M}, v{Q+6}, v{Q+7}"); I(f"v_max_f32 v{M}, v{M}, v{M2}")
    I(f"v_mul_f32 v{M}, 0xbfb8aa3b, v{M}")
    for x in S: I(f"v_fma_f32 v{x}, v{x}, s7, v{M}")
    for x in S: I(f"v_exp_f32 v{x}, v{x}")
    I(f"v_add_f32 v{M}, v{S[0]}, v{S[1]}"); I(f"v_add_f32 v{M2}, v{S[2]}, v{S[3]}")
    for x in S: dup(x,x)
    I(f"v_add_f32 v{M}, v{M}, v{M2}")
    for t,x in enumerate(S): I(f"ds_write_b32 v0, v{x} offset:{64*t}")
    for k in (8,4,2,1): ror("v_add_f32",[M],k)
    for t in range(4): I(f"ds_read_b128 {vr(SB+4*t) if t else vr(Q)}, v5 offset:{64*t}")
    I("v_lshrrev_b32 v6, 3, v6")
    setexec(1,1)
    I(f"ds_add_f32 v6, v{M} offset:{LSUM}")
    fullexec()
    I("s_waitcnt lgkmcnt(0)")
    I("s_barrier")
    for r in range(4): I(f"v_mov_b32 v{SB+r}, v{Q+r}")
    stamp(3)
    A0,A1=Q,Q+4
    I("v_lshrrev_b32 v4, 1, v2"); I("v_lshlrev_b32 v4, 9, v4"); I("v_lshl_add_u32 v4, v3, 5, v4")
    I("v_and_b32 v5, 1, v2"); I("v_lshl_add_u32 v4, v5, 4, v4")
    I("s_lshl_b32 s7, s83, 10"); I("v_add_u32 v4, s7, v4")
    for idx in range(16):
        A=A0 if idx%2==0 else A1
        for r in range(4): I(f"v_and_b32 v{A+r}, v{SB+idx}, v{MK+r}")
        I(f"s_waitcnt vmcnt({15-idx+6})")
        src="0" if idx==0 else vr(ACC)
        I(f"v_mfma_f32_16x16x32_bf16 {vr(ACC)}, {vr(A)}, {vr(VB+4*idx)}, {src}")
    I(f"ds_write_b128 v4, {vr(ACC)} offset:{OBUF}")
    I("s_waitcnt lgkmcnt(0)")
    stamp(4)
    dstamp(4,False,8)
    I("s_barrier")
    if notail: finish()
    I("s_cmp_eq_u32 s81, 2"); I("s_cbranch_scc1 L_mlp_tail")
    I("s_cmp_eq_u32 s81, 1"); I("s_cbranch_scc1 L_wo_tail")
    finish()

    a.label("L_wo_tail")
    O1,O2,M1,T=72,76,80,88
    I("v_lshrrev_b32 v6, 2, v3"); I("v_lshl_add_u32 v4, v2, 3, v6"); I("s_movk_i32 s7, 192"); I("v_mul_u32_u24 v4, s7, v4")
    I("v_and_b32 v6, 3, v3"); I("v_lshl_add_u32 v4, v6, 3, v4"); I("v_add_u32 v86, s13, v4")
    I("v_bfe_u32 v6, v1, 1, 3"); I("s_lshl_b32 s7, s5, 4"); I("v_add_u32 v4, s7, v6"); I("v_mul_u32_u24 v4, s86, v4")
    I("v_and_b32 v5, 1, v1"); I("v_lshlrev_b32 v5, 4, v5"); I("v_lshl_add_u32 v5, v2, 5, v5")
    I("s_lshl_b32 s7, s83, 7"); I("v_add3_u32 v84, v4, v5, s7")
    I("s_lshr_b32 s7, s83, 2"); I("s_lshl_b32 s7, s7, 6"); I("v_lshl_add_u32 v85, v6, 2, s7")
    I(f"s_mov_b32 s84, {8*STRIDE}")
    I("s_waitcnt vmcnt(0)"); stamp(12)
    for c in range(6):
        I(f"ds_read_b64_tr_b16 v[{KB+4*c}:{KB+4*c+1}], v86 offset:{c*32}")
        I(f"ds_read_b64_tr_b16 v[{KB+4*c+2}:{KB+4*c+3}], v86 offset:{c*32+768}")
    I("s_barrier")
    I(f"ds_read_b32 v{M1}, v85 offset:{WGT}"); I(f"ds_read_b32 v{M1+1}, v85 offset:{WGT+32}")
    poll([f"buffer_load_dwordx4 {vr(O1)}, v84, s[44:47], 0 offen offset:{P3} sc1",
          f"buffer_load_dwordx4 {vr(O2)}, v84, s[44:47], s84 offen offset:{P3} sc1"],
         sent=list(range(72,80)), name="o", tmp=87)
    stamp(5)
    def red8(op,regs):
        for v in regs: dpp(op,v,v,v,"quad_perm:[2,3,0,1]")
        for v in regs: dpp(op,v,v,v,"row_ror:4")
        for v in regs: dpp(op,v,v,v,"row_ror:8")
    I("s_waitcnt lgkmcnt(0)")
    for r in range(4): I(f"v_mul_f32 v{O1+r}, v{M1}, v{O1+r}")
    for r in range(4): I(f"v_fmac_f32 v{O1+r}, v{M1+1}, v{O2+r}")
    red8("v_add_f32",[O1,O1+1,O1+2,O1+3])
    I(f"v_cvt_pk_bf16_f32 v{T}, v{O1}, v{O1+1}"); I(f"v_cvt_pk_bf16_f32 v{T+1}, v{O1+2}, v{O1+3}")
    AO=T+8
    I(f"v_mov_b32_dpp v{AO}, v{T} quad_perm:[0,0,2,2] row_mask:0xf bank_mask:0xf"); I(f"v_mov_b32_dpp v{AO+1}, v{T+1} quad_perm:[0,0,2,2] row_mask:0xf bank_mask:0xf")
    I(f"v_mov_b32_dpp v{AO+2}, v{T} quad_perm:[1,1,3,3] row_mask:0xf bank_mask:0xf"); I(f"v_mov_b32_dpp v{AO+3}, v{T+1} quad_perm:[1,1,3,3] row_mask:0xf bank_mask:0xf")
    D=100
    for c in range(6): I(f"v_mfma_f32_16x16x32_bf16 {vr(D+4*c)}, {vr(AO)}, {vr(KB+4*c)}, 0")
    I("v_lshlrev_b32 v4, 2, v1")
    I("s_lshl_b32 s7, s83, 9"); I("v_add_u32 v5, s7, v4")
    def sel4(dst,D0):
        I(f"v_cndmask_b32 v{dst}, v{D0}, v{D0+4}, s[72:73]")
        I(f"v_cndmask_b32 v{dst}, v{dst}, v{D0+8}, s[74:75]")
        I(f"v_cndmask_b32 v{dst}, v{dst}, v{D0+12}, s[76:77]")
    sel4(T,D)
    I(f"v_cndmask_b32 v{T+1}, v{D+16}, v{D+20}, s[72:73]")
    I(f"ds_write_b32 v5, v{T} offset:{RED}"); I(f"ds_write_b32 v5, v{T+1} offset:{RED+256}")
    I("s_waitcnt lgkmcnt(0)")
    I("s_barrier")
    I("s_cmp_lt_u32 s83, 2"); sk=L("wo_done"); I(f"s_cbranch_scc0 {sk}")
    I("s_lshl_b32 s7, s83, 8"); I("v_add_u32 v4, s7, v4")
    for k in range(4): I(f"ds_read2st64_b32 v[{T+2*k}:{T+2*k+1}], v4 offset0:{RED//256+4*k} offset1:{RED//256+4*k+2}")
    I("s_mul_i32 s7, s14, 384"); I(f"s_add_u32 s7, s7, {P4A:#x}")
    I("s_cmp_eq_u32 s83, 0"); I("s_cselect_b32 exec_hi, -1, 0")
    I("s_waitcnt lgkmcnt(0)")
    I(f"v_add_f32 v{T}, v{T}, v{T+1}"); I(f"v_add_f32 v{T+2}, v{T+2}, v{T+3}"); I(f"v_add_f32 v{T+4}, v{T+4}, v{T+5}"); I(f"v_add_f32 v{T+6}, v{T+6}, v{T+7}")
    I(f"v_add_f32 v{T}, v{T}, v{T+2}"); I(f"v_add_f32 v{T+4}, v{T+4}, v{T+6}"); I(f"v_add_f32 v{T}, v{T}, v{T+4}")
    I(f"buffer_store_dword v{T}, v4, s[44:47], s7 offen sc1")
    stamp(6)
    dstamp(6,False,1,0)
    a.label(sk)
    finish()

    a.label("L_mlp_tail")
    I("s_lshl_b32 s13, s3, 13"); I(f"s_add_u32 s13, s13, {WAREA}")
    I("v_lshrrev_b32 v4, 2, v1"); I("s_movk_i32 s7, 0x2400"); I("v_mul_u32_u24 v4, s7, v4"); I("v_and_b32 v5, 3, v1"); I("v_lshl_add_u32 v96, v5, 4, v4")
    I("s_mul_i32 s7, s3, 589824"); I("s_lshl_b32 s8, s82, 6"); I("s_add_u32 s7, s7, s8")
    srd_rem(56,28,7,5308416)
    I("v_lshrrev_b32 v4, 3, v1"); I("s_movk_i32 s7, 0x480"); I("v_mul_u32_u24 v4, s7, v4"); I("v_and_b32 v5, 7, v1"); I("v_lshl_add_u32 v97, v5, 4, v4")
    I("s_mul_i32 s7, s82, 36864"); I("s_lshl_b32 s8, s3, 7"); I("s_add_u32 s7, s7, s8")
    srd_rem(60,30,7,5308416)
    def mlp_dma():
        sk1=L("w1done")
        I("s_cmp_lg_u32 s3, 0"); I(f"s_cbranch_scc1 {sk1}")
        for i in range(4):
            I(f"s_add_u32 m0, s13, {i*1024}"); I(f"s_mov_b32 s84, {i*147456}")
            I(f"buffer_load_dwordx4 v96, s[56:59], s84 offen lds {wflag}".replace(" lds nt"," nt lds"))
        for i in range(2):
            I(f"s_add_u32 m0, s13, {4096+i*1024}"); I(f"s_mov_b32 s84, {i*9216}")
            I(f"buffer_load_dwordx4 v97, s[60:63], s84 offen lds {wflag}".replace(" lds nt"," nt lds"))
        a.label(sk1)
        for i in range(2,4):
            I(f"s_add_u32 m0, s13, {4096+i*1024}"); I(f"s_mov_b32 s84, {i*9216}")
            I(f"buffer_load_dwordx4 v97, s[60:63], s84 offen lds {wflag}".replace(" lds nt"," nt lds"))
    if not gate: mlp_dma()
    XV,GA,SBv,CBv,GBv=72,73,74,75,76
    I("v_lshlrev_b32 v77, 2, v1")
    I("s_lshl_b32 s7, s3, 7"); I("v_lshl_add_u32 v4, v1, 1, s7")
    srd(64,16,None,1152)
    I(f"buffer_load_ushort v{XV}, v4, s[64:67], 0 offen")
    for k,base in enumerate((1152,1728,2304,2880)):
        I(f"s_lshl_b32 s7, s3, 6"); I(f"s_add_u32 s7, s7, {base-1152}")
        I("s_lshr_b32 s8, s7, 7"); I("s_lshl_b32 s8, s8, 9")
        I("s_and_b32 s7, s7, 127"); I("s_lshl_b32 s7, s7, 2"); I("s_add_u32 s8, s8, s7"); I(f"s_add_u32 s{88+k}, s8, {P1BA:#x}")
    I("s_lshl_b32 s7, s3, 8"); I(f"s_add_u32 s15, s7, {P4A:#x}")
    G=80
    T=100
    I("v_lshrrev_b32 v4, 2, v3"); I("v_lshl_add_u32 v4, v2, 3, v4")
    I("v_and_b32 v5, 3, v3"); I("v_lshlrev_b32 v5, 3, v5")
    I("v_lshl_add_u32 v98, v4, 6, v5"); I("v_add_u32 v98, s13, v98")
    I("v_lshl_add_u32 v99, v4, 7, v5"); I("v_add_u32 v99, s13, v99")
    B1,B2=8,24
    def trreads():
        for kk in range(2):
            for c in range(2):
                b=B1+4*(2*kk+c)
                I(f"ds_read_b64_tr_b16 v[{b}:{b+1}], v98 offset:{kk*2048+c*32}")
                I(f"ds_read_b64_tr_b16 v[{b+2}:{b+3}], v98 offset:{kk*2048+c*32+256}")
        for c in range(4):
            b=B2+4*c
            I(f"ds_read_b64_tr_b16 v[{b}:{b+1}], v99 offset:{4096+c*32}")
            I(f"ds_read_b64_tr_b16 v[{b+2}:{b+3}], v99 offset:{4096+c*32+512}")
    poll([f"buffer_load_dword v{GA+k}, v77, s[44:47], s{88+k} offen sc1" for k in range(4)], sent=list(range(GA,GA+4)), name="s", tmp=T)
    if not gate: trreads()
    I(f"v_lshlrev_b32 v{XV}, 16, v{XV}")
    I(f"v_add_f32 v{CBv}, 1.0, v{CBv}"); rnd(CBv,CBv)
    if gate==2:
        I("s_cmp_eq_u32 s3, 0"); ng_=L("nog"); I(f"s_cbranch_scc0 {ng_}")
        I(f"s_lshl_b32 s12, s5, 7"); I(f"s_add_u32 s12, s12, {F4A:#x}"); I("v_mov_b32 v4, 0")
        setexec(1,0)
        poll([f"buffer_load_dword v{T}, v4, s[44:47], s12 offen sc1","s_sleep 2"], tags=[T], name="c3", tmp=T+1)
        fullexec()
        a.label(ng_)
        I("s_barrier")
        mlp_dma()
    I("s_cmp_eq_u32 s3, 0"); nc_=L("nocan"); I(f"s_cbranch_scc0 {nc_}")
    I("v_lshlrev_b32 v4, 7, v1"); I(f"s_mov_b32 s12, {F4A:#x}")
    setexec(0xffff,0)
    poll([f"buffer_load_dword v{T}, v4, s[44:47], s12 offen sc1","s_sleep 1"], tags=[T], name="c4", tmp=T+1)
    fullexec()
    a.label(nc_)
    I("s_waitcnt lgkmcnt(0)")
    I("s_barrier")
    if gate==1: mlp_dma()
    lds_=["s_mov_b32 s84, s15"]
    for k in range(16):
        lds_.append(f"buffer_load_dword v{G+k}, v77, s[44:47], s84 offen sc1")
        if k<15: lds_.append(f"s_add_u32 s84, s84, 2304")
    poll(lds_, sent=list(range(G,G+16)), name="x", tmp=T, mid=(trreads if gate else None))
    stamp(9)
    dstamp(7,False,1)
    if stamps: I(f"v_writelane_b32 v{STV}, s80, 14")
    for k in (0,2,4,6,8,10,12,14): I(f"v_add_f32 v{G+k}, v{G+k}, v{G+k+1}")
    for k in (0,4,8,12): I(f"v_add_f32 v{G+k}, v{G+k}, v{G+k+2}")
    I(f"v_add_f32 v{G}, v{G}, v{G+4}"); I(f"v_add_f32 v{G+8}, v{G+8}, v{G+12}")
    I(f"v_add_f32 v{G}, v{G}, v{G+8}")
    rnd(G,G); I(f"v_mul_f32 v{G}, v{G}, v{GA}"); rnd(G,G); I(f"v_add_f32 v{G}, v{G}, v{XV}")
    X1=G+1; rnd(X1,G)
    S,S2=T,T+1
    I(f"v_mov_b32 v{S}, v{X1}"); I(f"v_mul_f32 v{S2}, v{X1}, v{X1}")
    for k in (8,4,2,1): ror("v_add_f32",[S,S2],k)
    for v_ in (S,S2): I(f"v_add_f32_dpp v{v_}, v{v_}, v{v_} row_bcast:15 row_mask:0xa bank_mask:0xf")
    for v_ in (S,S2): I(f"v_add_f32_dpp v{v_}, v{v_}, v{v_} row_bcast:31 row_mask:0xc bank_mask:0xf")
    I("v_mov_b32 v4, 0")
    setexec(0,0x80000000)
    I(f"ds_add_f32 v4, v{S} offset:{STAT}"); I(f"ds_add_f32 v4, v{S2} offset:{STAT+4}")
    fullexec()
    I("s_lshl_b32 s9, s3, 9"); I(f"s_add_u32 s9, s9, {SCR}")
    I("v_lshl_add_u32 v5, v1, 1, s9")
    I("v_lshl_add_u32 v6, v2, 4, s9")
    I("s_waitcnt lgkmcnt(0)")
    I("s_barrier")
    I(f"ds_read_b64 v[{S}:{S+1}], v4 offset:{STAT}")
    I("s_waitcnt lgkmcnt(0)")
    ln_stats(S,S2,T+2,T+3)
    H=G+2
    I(f"v_sub_f32 v{H}, v{X1}, v{T+2}"); rnd(H,H); I(f"v_mul_f32 v{H}, v{H}, v{T+3}"); rnd(H,H)
    I(f"v_mul_f32 v{H}, v{H}, v{CBv}"); rnd(H,H); I(f"v_add_f32 v{H}, v{H}, v{SBv}")
    I(f"v_cvt_pk_bf16_f32 v{H}, v{H}, v{H}")
    I(f"ds_write_b16 v5, v{H}")
    AH=T+4
    I(f"ds_read_b128 {vr(AH)}, v6"); I(f"ds_read_b128 {vr(AH+4)}, v6 offset:64")
    D=T+12
    I("s_waitcnt lgkmcnt(1)")
    I(f"v_mfma_f32_16x16x32_bf16 {vr(D)}, {vr(AH)}, {vr(B1)}, 0"); I(f"v_mfma_f32_16x16x32_bf16 {vr(D+4)}, {vr(AH)}, {vr(B1+4)}, 0")
    I("s_waitcnt lgkmcnt(0)")
    I(f"v_mfma_f32_16x16x32_bf16 {vr(D)}, {vr(AH+4)}, {vr(B1+8)}, {vr(D)}"); I(f"v_mfma_f32_16x16x32_bf16 {vr(D+4)}, {vr(AH+4)}, {vr(B1+12)}, {vr(D+4)}")
    I(f"v_cndmask_b32 v{T}, v{D}, v{D+4}, s[72:73]")
    I("s_lshl_b32 s7, s3, 8"); I("v_add_u32 v4, s7, v77")
    I(f"ds_write_b32 v4, v{T} offset:{RED}")
    I("s_waitcnt lgkmcnt(0)")
    I("s_barrier")
    for k in range(4): I(f"ds_read2st64_b32 v[{T+2*k}:{T+2*k+1}], v77 offset0:{RED//256+2*k} offset1:{RED//256+2*k+1}")
    I(f"ds_read_b32 v{T+8}, v77 offset:{RED+8*256}")
    I("s_waitcnt lgkmcnt(0)")
    I(f"v_add_f32 v{T}, v{T}, v{T+1}"); I(f"v_add_f32 v{T+2}, v{T+2}, v{T+3}"); I(f"v_add_f32 v{T+4}, v{T+4}, v{T+5}"); I(f"v_add_f32 v{T+6}, v{T+6}, v{T+7}")
    I(f"v_add_f32 v{T}, v{T}, v{T+2}"); I(f"v_add_f32 v{T+4}, v{T+4}, v{T+6}"); I(f"v_add_f32 v{T}, v{T}, v{T+8}"); I(f"v_add_f32 v{T}, v{T}, v{T+4}")
    rnd(T,T); silu([T],[T+1])
    I(f"v_cvt_pk_bf16_f32 v{T}, v{T}, v{T}")
    I(f"ds_write_b16 v5, v{T} offset:256")
    I(f"ds_read_b128 {vr(AH)}, v6 offset:256")
    I("s_waitcnt lgkmcnt(0)")
    for c in range(4): I(f"v_mfma_f32_16x16x32_bf16 {vr(D+4*c)}, {vr(AH)}, {vr(B2+4*c)}, 0")
    I("s_lshl_b32 s7, s3, 8"); I("s_mul_i32 s8, s82, 2304"); I("s_add_u32 s7, s7, s8"); I(f"s_add_u32 s7, s7, {P5A:#x}")
    sel4(T,D)
    I(f"buffer_store_dword v{T}, v77, s[44:47], s7 offen sc1")
    stamp(10)
    dstamp(8,False,1)
    I("s_cmp_lt_u32 s82, 9"); sk=L("mlp_done"); I(f"s_cbranch_scc0 {sk}")
    a.C("final reducers: CU u<9 handles column block u; wave wv gathers partials 16wv+pp+4k")
    F=84
    I(f"s_mul_i32 s7, s3, {16*2304}"); I("s_lshl_b32 s8, s82, 8"); I("s_add_u32 s12, s7, s8"); I(f"s_add_u32 s12, s12, {P5A:#x}")
    lds_=["s_mov_b32 s84, s12"]
    for k in range(16):
        lds_.append(f"buffer_load_dword v{F+k}, v77, s[44:47], s84 offen sc1")
        if k<15: lds_.append(f"s_add_u32 s84, s84, 2304")
    poll(lds_, sent=list(range(F,F+16)), name="f", tmp=T)
    stamp(11)
    dstamp(10,False,1)
    for k in (0,2,4,6,8,10,12,14): I(f"v_add_f32 v{F+k}, v{F+k}, v{F+k+1}")
    for k in (0,4,8,12): I(f"v_add_f32 v{F+k}, v{F+k}, v{F+k+2}")
    I(f"v_add_f32 v{F}, v{F}, v{F+4}"); I(f"v_add_f32 v{F+8}, v{F+8}, v{F+12}"); I(f"v_add_f32 v{F}, v{F}, v{F+8}")
    I("s_lshl_b32 s7, s3, 8"); I("v_add_u32 v4, s7, v77")
    I(f"ds_write_b32 v4, v{F} offset:{RED+2304}")
    I("s_waitcnt lgkmcnt(0)")
    I("s_barrier")
    I("s_cmp_eq_u32 s3, s82"); I(f"s_cbranch_scc0 {sk}")
    FB=(RED+2304)//256
    for k in range(4): I(f"ds_read2st64_b32 v[{T+2*k}:{T+2*k+1}], v77 offset0:{FB+2*k} offset1:{FB+2*k+1}")
    I(f"ds_read_b32 v{T+8}, v77 offset:{RED+2304+8*256}")
    I("s_lshl_b32 s7, s82, 7"); I("v_lshl_add_u32 v4, v1, 1, s7")
    srd(64,36,None,1152)
    I("s_waitcnt lgkmcnt(0)")
    I(f"v_add_f32 v{T}, v{T}, v{T+1}"); I(f"v_add_f32 v{T+2}, v{T+2}, v{T+3}"); I(f"v_add_f32 v{T+4}, v{T+4}, v{T+5}"); I(f"v_add_f32 v{T+6}, v{T+6}, v{T+7}")
    I(f"v_add_f32 v{T}, v{T}, v{T+2}"); I(f"v_add_f32 v{T+4}, v{T+4}, v{T+6}"); I(f"v_add_f32 v{T}, v{T}, v{T+8}"); I(f"v_add_f32 v{T}, v{T}, v{T+4}")
    rnd(T,T); I(f"v_mul_f32 v{T}, v{T}, v{GBv}"); rnd(T,T); I(f"v_add_f32 v{T}, v{T}, v{X1}")
    I(f"v_cvt_pk_bf16_f32 v{T}, v{T}, v{T}")
    I(f"buffer_store_short v{T}, v4, s[64:67], 0 offen")
    dstamp(9,False,0)
    I("s_cmp_eq_u32 s82, 0"); I(f"s_cbranch_scc0 {sk}")
    I("v_mov_b32 v4, s95"); I("v_lshlrev_b32 v5, 2, v1"); I(f"s_mov_b32 s7, {EPOCH_OFF:#x}")
    setexec(0xffffffff,0)
    I("buffer_store_dword v4, v5, s[44:47], s7 offen sc1")
    a.label(sk)
    finish()

    a.label("L_clean")
    code_touch(8)
    I("v_mov_b32 v156, 0"); I("v_mov_b32 v157, 0"); I("v_mov_b32 v158, 0"); I("v_mov_b32 v159, 0")
    I("v_lshlrev_b32 v5, 4, v1")
    I("v_lshlrev_b32 v4, 2, v1"); I(f"ds_write_b32 v4, v156 offset:{WMAX}")
    I("s_waitcnt lgkmcnt(0)")
    stamp(0)
    epoch_load()
    ws_setup()
    if tlbw:
        I("s_mov_b32 s7, 82944"); I("v_mul_u32_u24 v20, s7, v1")
        srd(48,28,None,5308416); srd(52,30,None,5308416); srd(56,24,None,4718592)
        I("buffer_load_dword v21, v20, s[48:51], 0 offen"); I("buffer_load_dword v22, v20, s[52:55], 0 offen"); I("buffer_load_dword v23, v20, s[56:59], 0 offen")
    I("v_mov_b32 v156, -1"); I("v_mov_b32 v157, -1"); I("v_mov_b32 v158, -1"); I("v_mov_b32 v159, -1")
    if noclear: I("s_branch L_skipclr")
    I(f"buffer_store_dwordx4 v[156:159], v5, s[44:47], s85 offen offset:{P2} sc1")
    setexec(0xffffffff,0xff)
    I(f"buffer_store_dwordx4 v[156:159], v5, s[44:47], s85 offen offset:{P2+1024} sc1")
    fullexec()
    I("s_cmp_eq_u32 s81, 2"); nc=L("noclr"); I(f"s_cbranch_scc0 {nc}")
    I("s_mul_i32 s7, s82, 2304"); I(f"s_add_u32 s7, s7, {P5A:#x}")
    for k in range(2): I(f"buffer_store_dwordx4 v[156:159], v5, s[44:47], s7 offen offset:{1024*k} sc1")
    setexec(0xffff,0)
    I(f"buffer_store_dwordx4 v[156:159], v5, s[44:47], s7 offen offset:2048 sc1")
    fullexec()
    a.label(nc)
    I("s_cmp_eq_u32 s81, 1"); nc2=L("noclr2"); I(f"s_cbranch_scc0 {nc2}")
    I("s_mul_i32 s7, s14, 384"); I(f"s_add_u32 s7, s7, {P4A:#x}")
    setexec(0xffffff,0)
    I(f"buffer_store_dwordx4 v[156:159], v5, s[44:47], s7 offen sc1")
    fullexec()
    a.label(nc2)
    I("s_sub_u32 s8, 6, s6"); I("s_lshl_b32 s8, s8, 4"); I("s_add_u32 s8, s8, s5"); I("s_cmp_lt_u32 s8, 18"); I("s_cbranch_scc0 L_skipclr")
    I("s_lshl_b32 s7, s8, 9"); I(f"s_add_u32 s7, s7, {P1BA:#x}")
    setexec(0xffffffff,0)
    I(f"buffer_store_dwordx4 v[156:159], v5, s[44:47], s7 offen sc1")
    fullexec()
    a.label("L_skipclr")
    (I("s_barrier") if not noB0 else None)
    I("s_waitcnt vmcnt(0) lgkmcnt(0)")
    tag()
    I("v_mov_b32 v4, s95"); I("v_lshlrev_b32 v5, 2, v1")
    setexec(0xffffffff,0)
    I(f"buffer_store_dword v4, v5, s[44:47], s85 offen offset:{FL} sc1")
    stamp(1)
    I("s_cmp_eq_u32 s6, 6"); na=L("noagg"); I(f"s_cbranch_scc0 {na}")
    fullexec()
    I("s_lshl_b32 s7, s5, 4"); I("v_add_u32 v4, s7, v1"); I("v_mul_u32_u24 v4, s86, v4")
    setexec(0xffff,0)
    poll([f"buffer_load_dword v8, v4, s[44:47], 0 offen offset:{FL} sc1","s_sleep 8"],tags=[8],name="agg",tmp=9)
    fullexec()
    I("v_mov_b32 v4, s95"); I(f"s_lshl_b32 s7, s5, 7"); I(f"s_add_u32 s7, s7, {GCLR_OFF:#x}")
    setexec(0xffffffff,0)
    I(f"buffer_store_dword v4, v5, s[44:47], s7 offen sc1")
    a.label(na)
    finish()

    a.label("L_mod")
    TILE,XF,CV,XR,AV,A0,A1,ACC,GB,T=8,80,88,90,92,110,114,118,122,154
    I("s_setprio 2")
    I("s_waitcnt lgkmcnt(0)")
    stamp(0)
    epoch_load()
    srd(64,32,None,1152)
    I("s_and_b32 s7, s4, 7"); I("s_mul_i32 s7, s7, 144")
    I("v_lshlrev_b32 v4, 3, v1")
    I(f"buffer_load_dwordx2 v[{CV}:{CV+1}], v4, s[64:67], s7 offen")
    I("s_cmp_lt_u32 s4, 216"); nomod=L("nomod"); I(f"s_cbranch_scc0 {nomod}")
    I("s_and_b32 s7, s4, 7"); I("s_mul_i32 s7, s7, 497664")
    I("s_lshr_b32 s10, s4, 3"); I("s_lshl_b32 s10, s10, 8"); I("s_add_u32 s7, s7, s10")
    srd_rem(52,34,7,3981312)
    I("s_movk_i32 s7, 0x1b00"); I("v_mul_u32_u24 v4, s7, v2"); I("v_lshl_add_u32 v4, v3, 4, v4")
    for i in range(0 if notiles else 18):
        I(f"s_mov_b32 s84, {i*27648}")
        I(f"buffer_load_dwordx4 {vr(TILE+4*i)}, v4, s[52:55], s84 offen {wflag}")
    (I("s_barrier") if not noB0 else None)
    ws_setup(); diag_consts()
    I("s_waitcnt vmcnt(18)")
    for k in range(2): unpack2(T+2*k,T+2*k+1,CV+k)
    silu([T,T+1,T+2,T+3],[T+4,T+5,T+6,T+7])
    for r in range(4): dup(T+r,T+r)
    I(f"ds_write_b128 v164, {vr(T)} offset:{TL}")
    I("s_waitcnt vmcnt(0) lgkmcnt(0)")
    tag()
    stamp(1)
    matvec18(TILE,AV,A0,A1,ACC,TL)
    I(f"v_permlane32_swap_b32 v{ACC}, v{ACC+2}"); I(f"v_permlane32_swap_b32 v{ACC+1}, v{ACC+3}")
    I(f"v_mov_b32 v{A0}, v{ACC}"); I(f"v_mov_b32 v{A0+1}, s95"); I(f"v_mov_b32 v{A0+2}, v{ACC+1}"); I(f"v_mov_b32 v{A0+3}, s95")
    I(f"buffer_store_dwordx4 {vr(A0)}, v164, s[44:47], s85 offen offset:{P1} sc1")
    stamp(2)
    dstamp(11)
    finish()
    a.label(nomod)
    (I("s_barrier") if not noB0 else None)
    finish()

    a.label("L_ctrl")
    I("s_setprio 3")
    I("s_waitcnt lgkmcnt(0)")
    stamp(0)
    epoch_load()
    srd(48,16,None,1152)
    I("s_lshr_b32 s87, s6, 1"); I("s_mul_i32 s87, s87, 72")
    I("s_lshl_b32 s7, s87, 1")
    I("v_lshlrev_b32 v4, 3, v1")
    I(f"buffer_load_dwordx2 v[{XR}:{XR+1}], v4, s[48:51], s7 offen")
    I("v_lshlrev_b32 v5, 5, v1")
    I(f"buffer_load_dwordx4 {vr(XF)}, v5, s[48:51], 0 offen")
    I(f"buffer_load_dwordx4 {vr(XF+4)}, v5, s[48:51], 0 offen offset:16")
    I("s_lshl_b32 s7, s87, 13"); I("s_lshl_b32 s10, s5, 9"); I("s_add_u32 s7, s7, s10")
    I("s_and_b32 s10, s6, 1"); I("s_lshl_b32 s10, s10, 8"); I("s_add_u32 s7, s7, s10")
    srd_rem(52,22,7,4718592)
    I("v_lshlrev_b32 v4, 13, v2"); I("v_lshl_add_u32 v4, v3, 4, v4")
    for i in range(0 if notiles else 18):
        I(f"s_mov_b32 s84, {i*32768:#x}")
        I(f"buffer_load_dwordx4 {vr(TILE+4*i)}, v4, s[52:55], s84 offen {wflag}")
    (I("s_barrier") if not noB0 else None)
    ws_setup(); diag_consts()
    I("s_waitcnt vmcnt(18) lgkmcnt(0)")
    tag()
    stamp(1)
    S,S2=T,T+1
    I(f"v_mov_b32 v{S}, 0"); I(f"v_mov_b32 v{S2}, 0")
    for k in range(8):
        unpack2(T+2,T+3,XF+k)
        I(f"v_add_f32 v{S}, v{S}, v{T+2}"); I(f"v_fmac_f32 v{S2}, v{T+2}, v{T+2}")
        I(f"v_add_f32 v{S}, v{S}, v{T+3}"); I(f"v_fmac_f32 v{S2}, v{T+3}, v{T+3}")
    for k in (8,4,2,1): ror("v_add_f32",[S,S2],k)
    xswap("v_add_f32",[S,S2],[T+2,T+3],16); xswap("v_add_f32",[S,S2],[T+2,T+3],32)
    MB,INV=XF,XF+1
    ln_stats(S,S2,MB,INV)
    GA=92
    if nochain: I("s_branch L_skipchain")
    I("v_and_b32 v4, 31, v1"); I("v_lshl_add_u32 v4, v4, 2, s87")
    I("v_cmp_lt_u32 vcc, 31, v1"); I("v_mov_b32 v5, 576"); I("v_cndmask_b32 v5, 0, v5, vcc"); I("v_add_u32 v4, v4, v5")
    I("v_lshrrev_b32 v5, 7, v4"); I("v_lshlrev_b32 v5, 3, v5"); I("v_mul_u32_u24 v5, s86, v5")
    I("v_bfe_u32 v156, v4, 3, 4"); I("v_bfe_u32 v157, v4, 2, 1"); I("v_lshl_add_u32 v156, v157, 4, v156")
    I("v_lshl_add_u32 v4, v156, 4, v5")
    I("s_lshl_b32 s7, s5, 4"); I("v_add_u32 v158, s7, v1"); I("v_mul_u32_u24 v158, s86, v158")
    I("v_mov_b32 v159, s95")
    def soffs(n,step,base=88):
        res=["0"]
        for k in range(1,n):
            I(f"s_mov_b32 s{base+k-1}, {k*step}"); res.append(f"s{base+k-1}")
        return res
    so=soffs(8,STRIDE)
    def p1loads():
        l=[]
        for k in range(8):
            l.append(f"buffer_load_dwordx4 {vr(GA+8*k)}, v4, s[44:47], {so[k]} offen offset:{P1} sc1")
            l.append(f"buffer_load_dwordx4 {vr(GA+8*k+4)}, v4, s[44:47], {so[k]} offen offset:{P1+512} sc1")
        return l
    p1tags=[GA+8*k+o for k in range(8) for o in (1,3,5,7)]
    def p1sum(D):
        for r,o in enumerate((0,2,4,6)): I(f"v_add_f32 v{D+r}, v{GA+o}, v{GA+8+o}")
        for k in range(2,8):
            for r,o in enumerate((0,2,4,6)): I(f"v_add_f32 v{D+r}, v{D+r}, v{GA+8*k+o}")
    def sleep(nn):
        while nn>0:
            k=min(nn,120); I(f"s_sleep {k}"); nn-=k
    sleep(sl1)
    setexec(0x3ffff,0x3ffff)
    poll(p1loads()+["s_mov_b32 exec_lo, 0xffff","s_mov_b32 exec_hi, 0",f"buffer_load_dword v159, v158, s[44:47], 0 offen offset:{FL} sc1","s_mov_b32 exec_lo, 0x3ffff","s_mov_b32 exec_hi, 0x3ffff"],
         tags=p1tags+[159], name="m", tmp=160)
    fullexec()
    stamp(4)
    p1sum(156)
    for r in range(4): rnd(GB+r,156+r)
    for r in range(4): I(f"v_mov_b32 v{GB+4+r}, v{GB+r}")
    for r in range(4): I(f"v_permlane32_swap_b32 v{GB+r}, v{GB+4+r}")
    H=GB+8; Tt=GB+12
    unpack2(H,H+1,XR); unpack2(H+2,H+3,XR+1)
    for r in range(4): I(f"v_sub_f32 v{H+r}, v{H+r}, v{MB}")
    for r in range(4): I(f"v_add_f32 v{Tt+r}, 1.0, v{GB+4+r}")
    for r in range(4): rnd(H+r,H+r)
    for r in range(4): rnd(Tt+r,Tt+r)
    for r in range(4): I(f"v_mul_f32 v{H+r}, v{H+r}, v{INV}")
    for r in range(4): rnd(H+r,H+r)
    for r in range(4): I(f"v_mul_f32 v{H+r}, v{H+r}, v{Tt+r}")
    for r in range(4): rnd(H+r,H+r)
    for r in range(4): I(f"v_add_f32 v{H+r}, v{H+r}, v{GB+r}")
    for r in range(4): dup(H+r,H+r)
    I(f"ds_write_b128 v164, {vr(H)} offset:{TL2}")
    I("s_waitcnt lgkmcnt(0)")
    matvec18(TILE,AV,A0,A1,ACC,TL2)
    I("v_lshlrev_b32 v4, 5, v3"); I("v_lshl_add_u32 v4, v2, 4, v4")
    setexec(0xffffffff,0)
    I(f"buffer_store_dwordx4 {vr(ACC)}, v4, s[44:47], s85 offen offset:{P2} sc1")
    fullexec()
    stamp(5)
    nr=L("nored")
    I("s_sub_u32 s13, 6, s6"); I("s_lshl_b32 s13, s13, 4"); I("s_add_u32 s13, s13, s5"); I("s_cmp_lt_u32 s13, 18"); I(f"s_cbranch_scc0 {nr}")
    I("s_add_u32 s7, s13, 9"); I(f"s_mul_i32 s7, s7, {8*STRIDE}")
    I("v_and_b32 v4, 1, v1"); I("v_lshrrev_b32 v5, 1, v1"); I("v_lshl_add_u32 v4, v4, 4, v5"); I("v_lshl_add_u32 v4, v4, 4, s7")
    setexec(0xffffffff,0)
    poll(p1loads(), tags=p1tags, name="b", tmp=160)
    p1sum(156)
    for r in range(4): rnd(156+r,156+r)
    I("s_lshl_b32 s7, s13, 9"); I(f"s_add_u32 s7, s7, {P1BA:#x}")
    I(f"buffer_store_dwordx4 v[156:159], v164, s[44:47], s7 offen sc1")
    fullexec()
    a.label(nr)
    I("v_lshrrev_b32 v4, 5, v1"); I("s_lshl_b32 s7, s5, 4"); I("v_add_u32 v4, s7, v4"); I("v_mul_u32_u24 v4, s86, v4")
    I("v_and_b32 v5, 31, v1"); I("v_lshl_add_u32 v4, v5, 4, v4")
    I("v_lshlrev_b32 v158, 7, v1"); I("v_mov_b32 v159, s95"); I(f"s_mov_b32 s12, {GCLR_OFF:#x}")
    so=soffs(8,2*STRIDE)
    sleep(sl2)
    poll([f"buffer_load_dwordx4 {vr(GB+4*k)}, v4, s[44:47], {so[k]} offen offset:{P2} sc1" for k in range(8)]+
         ["s_mov_b32 exec_lo, 0xffff","s_mov_b32 exec_hi, 0","buffer_load_dword v159, v158, s[44:47], s12 offen sc1","s_mov_b64 exec, -1"],
         sent=list(range(GB,GB+32)), tags=[159], name="q", tmp=160)
    for k in (0,2,4,6):
        for r in range(4): I(f"v_add_f32 v{GB+4*k+r}, v{GB+4*k+r}, v{GB+4*k+4+r}")
    for k in (0,4):
        for r in range(4): I(f"v_add_f32 v{GB+4*k+r}, v{GB+4*k+r}, v{GB+4*k+8+r}")
    for r in range(4): I(f"v_add_f32 v{GB+r}, v{GB+r}, v{GB+16+r}")
    I(f"v_cvt_pk_bf16_f32 v{GB+4}, v{GB}, v{GB+1}"); I(f"v_cvt_pk_bf16_f32 v{GB+5}, v{GB+2}, v{GB+3}")
    I("v_lshlrev_b32 v4, 3, v1")
    I(f"ds_write_b64 v4, v[{GB+4}:{GB+5}] offset:{QL}")
    I("s_waitcnt lgkmcnt(0)")
    a.label("L_skipchain")
    stamp(6)
    dstamp(2)
    I("s_barrier")
    code_touch(8)
    I("s_mov_b32 s72, 0xffff0000"); I("s_mov_b32 s73, 0"); I("s_mov_b32 s74, 0"); I("s_mov_b32 s75, 0xffff"); I("s_mov_b32 s76, 0"); I("s_mov_b32 s77, 0xffff0000")
    I("s_barrier")
    I("v_lshlrev_b32 v152, 4, v1"); I("v_mov_b32 v4, 0")
    I(f"ds_read_b128 {vr(80)}, v4 offset:{WMAX}"); I(f"ds_read_b128 {vr(84)}, v4 offset:{WMAX+16}")
    I(f"ds_read_b128 {vr(88)}, v4 offset:{WMAX+32}"); I(f"ds_read_b128 {vr(92)}, v4 offset:{WMAX+48}")
    I("s_waitcnt lgkmcnt(0)")
    R=96
    for h in range(2):
        b=80+8*h
        I(f"v_max3_f32 v{R+2*h}, v{b}, v{b+1}, v{b+2}"); I(f"v_max3_f32 v{R+2*h}, v{R+2*h}, v{b+3}, v{b+4}")
        I(f"v_max3_f32 v{R+2*h}, v{R+2*h}, v{b+5}, v{b+6}"); I(f"v_max_f32 v{R+2*h}, v{R+2*h}, v{b+7}")
    I("s_barrier")
    I(f"ds_read_b64 v[100:101], v4 offset:{LSUM}")
    I("s_waitcnt lgkmcnt(0)")
    I(f"v_mov_b32 v{R+1}, v100"); I(f"v_mov_b32 v{R+3}, v101")
    setexec(0xff,0)
    I(f"buffer_store_dwordx4 {vr(R)}, v152, s[44:47], s85 offen offset:{ML} sc1")
    fullexec()
    I("s_barrier")
    stamp(7)
    O=104
    for k in range(8): I(f"ds_read_b128 {vr(O+4*k)}, v152 offset:{OBUF+1024*k}")
    for k in (0,2,4,6):
        I(f"s_waitcnt lgkmcnt({6-k})")
        for r in range(4): I(f"v_add_f32 v{O+4*k+r}, v{O+4*k+r}, v{O+4*k+4+r}")
    for k in (0,4):
        for r in range(4): I(f"v_add_f32 v{O+4*k+r}, v{O+4*k+r}, v{O+4*k+8+r}")
    for r in range(4): I(f"v_add_f32 v{O+r}, v{O+r}, v{O+16+r}")
    I(f"buffer_store_dwordx4 {vr(O)}, v152, s[44:47], s85 offen offset:{P3} sc1")
    stamp(8)
    dstamp(5)
    if notail: finish()
    I("s_cmp_eq_u32 s81, 2"); I("s_cbranch_scc1 L_mlp_tail")
    I("s_cmp_eq_u32 s81, 1"); cw=L("cwo"); I(f"s_cbranch_scc1 {cw}")
    finish()
    a.label(cw)
    a.C("wo role control: canary on the 16 ML lines, compute normalised split weights")
    I("s_lshl_b32 s7, s5, 4"); I("v_add_u32 v4, s7, v1"); I("v_mul_u32_u24 v4, s86, v4")
    setexec(0xffff,0)
    poll([f"buffer_load_dwordx4 {vr(80)}, v4, s[44:47], 0 offen offset:{ML} sc1"], sent=[80,81,82,83], name="ml", tmp=84)
    I("s_cmp_eq_u32 s6, 0"); nf=L("nof4"); I(f"s_cbranch_scc0 {nf}")
    fullexec()
    I("v_mov_b32 v5, s95"); I("v_lshlrev_b32 v6, 2, v1"); I("s_lshl_b32 s7, s5, 7"); I(f"s_add_u32 s7, s7, {F4A:#x}")
    setexec(0xffffffff,0)
    I("buffer_store_dword v5, v6, s[44:47], s7 offen sc1")
    setexec(0xffff,0)
    a.label(nf)
    I("v_mov_b32 v84, v80"); I("v_mov_b32 v85, v82")
    for k in (8,4,2,1): ror("v_max_f32",[84,85],k)
    I("v_sub_f32 v80, v80, v84"); I("v_sub_f32 v82, v82, v85")
    I(f"v_mul_f32 v80, {LOG2E:#x}, v80"); I(f"v_mul_f32 v82, {LOG2E:#x}, v82")
    I("v_exp_f32 v80, v80"); I("v_exp_f32 v82, v82")
    I("v_mul_f32 v84, v80, v81"); I("v_mul_f32 v85, v82, v83")
    for k in (8,4,2,1): ror("v_add_f32",[84,85],k)
    I("v_rcp_f32 v84, v84"); I("v_rcp_f32 v85, v85")
    I("v_mul_f32 v80, v80, v84"); I("v_mul_f32 v82, v82, v85")
    I("v_lshlrev_b32 v4, 2, v1")
    I(f"ds_write_b32 v4, v80 offset:{WGT}"); I(f"ds_write_b32 v4, v82 offset:{WGT+64}")
    I("s_waitcnt lgkmcnt(0)")
    fullexec()
    I("s_barrier")
    finish()
    a.label("L_end")
    I("s_endpgm")

    body=a.finish()
    out=HEADER
    out+=f"; @launch grid=(256,1,1) block=(704,1,1) lds={LDS_BYTES}\n"
    out+='.amdgcn_target "amdgcn-amd-amdhsa--gfx950"\n.text\n'
    out+=f".globl {NAME}_kernel\n.p2align 8\n.type {NAME}_kernel,@function\n"
    out+=body
    out+=f""".section .rodata,"a"
.p2align 6
.amdhsa_kernel {NAME}_kernel
  .amdhsa_next_free_vgpr 168
  .amdhsa_next_free_sgpr 100
  .amdhsa_accum_offset 168
  .amdhsa_group_segment_fixed_size 0
  .amdhsa_float_denorm_mode_32 3
  .amdhsa_kernarg_size 104
  .amdhsa_user_sgpr_count 2
  .amdhsa_user_sgpr_kernarg_segment_ptr 1
  .amdhsa_system_sgpr_workgroup_id_x 1
.end_amdhsa_kernel
"""
    return out

if __name__=="__main__":
    import argparse
    p=argparse.ArgumentParser()
    p.add_argument("-o",default="cdna_kernels/"+NAME+".s")
    p.add_argument("--W",type=int,default=4); p.add_argument("--Wwo",type=int,default=5)
    p.add_argument("--ld",default=""); p.add_argument("--wf",default=""); p.add_argument("--stamps",action="store_true")
    p.add_argument("--sl1",type=int,default=140); p.add_argument("--sl2",type=int,default=40); p.add_argument("--norot",action="store_true"); p.add_argument("--woearly",action="store_true"); p.add_argument("--W2",type=int,default=4); p.add_argument("--Ww",type=int,default=3); p.add_argument("--psleep",type=int,default=0); p.add_argument("--nowt",action="store_true"); p.add_argument("--notail",action="store_true"); p.add_argument("--gate",type=int,default=1); p.add_argument("--notlbw",action="store_true"); p.add_argument("--notiles",action="store_true"); p.add_argument("--nochain",action="store_true"); p.add_argument("--noclear",action="store_true"); p.add_argument("--noB0",action="store_true"); p.add_argument("--dbg",action="store_true")
    x=p.parse_args()
    open(x.o,"w").write(gen(W=x.W,Wwo=x.Wwo,ldflag=x.ld,wflag=x.wf,stamps=x.stamps,sl1=x.sl1,sl2=x.sl2,rot=not x.norot,wolate=not x.woearly,W2=x.W2,Ww=x.Ww,psleep=x.psleep,nowt=x.nowt,notail=x.notail,gate=x.gate,tlbw=not x.notlbw,notiles=x.notiles,nochain=x.nochain,noclear=x.noclear,noB0=x.noB0,dbg=x.dbg))
```

```python
from asmlib import Asm

NAME="adaLN_cond__gqa_block_cached__dense_activation_silu__decode"
STRIDE=2816
P1,P2,P3,ML,FL=0,1024,1536,2560,2688
P4A,P5A,P1BA,F4A=0xB0000,0xBA000,0x10B000,0x10D400
GCLR_OFF=0x10E000; EPOCH_OFF=0x10F000; WS_SIZE=0x110000
QL,TL,TL2,WMAX,LSUM,STAT,WGT,RED,SCR,OBUF,WAREA=0,512,1536,2560,2624,2632,2688,2816,7424,12032,20224
WOA=WAREA
LDS_BYTES=WAREA+9*8192
SPIN=200000
LOG2E=0x3fb8aa3b
SCALE=0x3db504f3
EPS=0x3727c5ac
INV576=0x3ae38e39
STAMP_OFF=0x400000
HASH_A=0x9E3779B1; HASH_C=0x7F4A7C15
CODE_SLICE=2048
HEADER=open("cdna_kernels/"+NAME+".s.ref").read().split("; Override launch")[0]

def gen(W=4, Wwo=5, ldflag="", wflag="", stamps=False, sl1=140, sl2=40, rot=True, wolate=True, W2=4, Ww=3, psleep=0, nowt=False, notail=False, gate=1, tlbw=True, notiles=False, nochain=False, noclear=False, noB0=False, dbg=False, pad=0):
    a=Asm(); I=a.I
    uid=[0]
    def L(p):
        uid[0]+=1; return f"L_{p}_{uid[0]}"
    def vr(b,n=4): return f"v[{b}:{b+n-1}]"
    def rnd(d,s): I(f"v_cvt_pk_bf16_f32 v{d}, 0, v{s}")
    def dup(d,s): I(f"v_cvt_pk_bf16_f32 v{d}, v{s}, v{s}")
    def dpp(op,d,s0,s1,ctl): I(f"{op}_dpp v{d}, v{s0}, v{s1} {ctl} row_mask:0xf bank_mask:0xf")
    def ror(op,regs,k):
        for v in regs: dpp(op,v,v,v,f"row_ror:{k}")
    def xswap(op,regs,tmp,which):
        for v,t in zip(regs,tmp): I(f"v_mov_b32 v{t}, v{v}")
        for v,t in zip(regs,tmp): I(f"v_permlane{which}_swap_b32 v{v}, v{t}")
        for v,t in zip(regs,tmp): I(f"{op} v{v}, v{v}, v{t}")
    STV=7
    _I=I
    def I(t):
        if nowt and " lds" in t and "buffer_load" in t: return
        _I(t)
    DBGMAP={}
    def dstamp(slot, inv=False, only=None, wg=7):
        if not dbg or inv: return
        sk=L("ds")
        I(f"s_cmp_eq_u32 s4, {wg}"); I(f"s_cbranch_scc0 {sk}")
        if only is not None:
            I(f"s_cmp_eq_u32 s3, {only}"); I(f"s_cbranch_scc0 {sk}")
        I("s_memrealtime s[96:97]"); I("s_waitcnt lgkmcnt(0)")
        I("s_mov_b64 s[92:93], exec"); I("s_mov_b64 exec, 1")
        I("v_mov_b32 v7, s96"); I(f"v_mov_b32 v0, {slot*4}")
        I("global_store_dword v0, v7, s[38:39]")
        I("s_mov_b64 exec, s[92:93]")
        a.label(sk)
    def stamp(i):
        if dbg and i in DBGMAP: dstamp(*DBGMAP[i])
        if stamps:
            I("s_memrealtime s[96:97]"); I("s_waitcnt lgkmcnt(0)")
            I(f"v_writelane_b32 v{STV}, s96, {i}")
    def finish():
        if stamps:
            I("s_mov_b64 exec, -1")
            stamp(15)
            I("s_mul_i32 s7, s4, 11"); I("s_add_u32 s7, s7, s3"); I("s_lshl_b32 s7, s7, 8"); I(f"s_add_u32 s7, s7, {STAMP_OFF}")
            I("s_add_u32 s8, s40, s7"); I("s_addc_u32 s9, s41, 0")
            I("v_lshlrev_b32 v8, 2, v1")
            I(f"global_store_dword v8, v{STV}, s[8:9]")
        I("s_endpgm")
    def spin_tail(lo,dn):
        I(f"s_cbranch_vccz {dn}")
        if psleep: I(f"s_sleep {psleep}")
        I("s_add_u32 s80, s80, 1"); I(f"s_cmp_lt_u32 s80, {SPIN}"); I(f"s_cbranch_scc1 {lo}")
        a.label(dn)
    def check_sent(regs,tmp):
        regs=list(regs); i=0; cur=None
        if len(regs)==1: cur=regs[0]
        else:
            while i<len(regs):
                if cur is None:
                    if len(regs)-i>=3: I(f"v_max3_u32 v{tmp}, v{regs[i]}, v{regs[i+1]}, v{regs[i+2]}"); i+=3
                    else: I(f"v_max_u32 v{tmp}, v{regs[i]}, v{regs[i+1]}"); i+=2
                    cur=tmp
                else:
                    if len(regs)-i>=2: I(f"v_max3_u32 v{tmp}, v{tmp}, v{regs[i]}, v{regs[i+1]}"); i+=2
                    else: I(f"v_max_u32 v{tmp}, v{tmp}, v{regs[i]}"); i+=1
        I(f"v_cmp_eq_u32 vcc, -1, v{cur}")
    def check_tags(tagregs,tmp,first=True):
        for k,r in enumerate(tagregs):
            if k==0 and first: I(f"v_xor_b32 v{tmp}, s95, v{r}")
            else: I(f"v_xad_u32 v{tmp}, v{r}, s95, v{tmp}")
    def poll(loads, sent=(), tags=(), name="p", tmp=0, mid=None):
        lo=L("poll"+name); dn=L("pd"+name)
        I("s_mov_b32 s80, 0")
        a.label(lo)
        for t in loads: I(t)
        I("s_waitcnt vmcnt(0)")
        if mid: mid()
        if sent and tags:
            check_tags(tags,tmp+1)
            check_sent(sent,tmp)
            I(f"v_cmp_ne_u32 s[10:11], 0, v{tmp+1}")
            I("s_or_b64 vcc, vcc, s[10:11]")
        elif tags:
            check_tags(tags,tmp); I(f"v_cmp_ne_u32 vcc, 0, v{tmp}")
        else:
            check_sent(sent,tmp)
        spin_tail(lo,dn)
    def setexec(lo,hi):
        I(f"s_mov_b32 exec_lo, {lo:#x}"); I(f"s_mov_b32 exec_hi, {hi:#x}")
    def fullexec(): I("s_mov_b64 exec, -1")
    def srd(dst, base, off, size):
        if off is None:
            I(f"s_mov_b32 s{dst}, s{base}"); I(f"s_mov_b32 s{dst+1}, s{base+1}")
        else:
            I(f"s_add_u32 s{dst}, s{base}, s{off}"); I(f"s_addc_u32 s{dst+1}, s{base+1}, 0")
        I(f"s_mov_b32 s{dst+2}, {size}"); I(f"s_mov_b32 s{dst+3}, 0x20000")
    def srd_rem(dst, base, off, total):
        I(f"s_add_u32 s{dst}, s{base}, s{off}"); I(f"s_addc_u32 s{dst+1}, s{base+1}, 0")
        I(f"s_sub_u32 s{dst+2}, {total}, s{off}"); I(f"s_mov_b32 s{dst+3}, 0x20000")
    def silu(vs,ts):
        for v,t in zip(vs,ts): I(f"v_mul_f32 v{t}, 0xbfb8aa3b, v{v}")
        for v,t in zip(vs,ts): I(f"v_exp_f32 v{t}, v{t}")
        for v,t in zip(vs,ts): I(f"v_add_f32 v{t}, 1.0, v{t}")
        for v,t in zip(vs,ts): I(f"v_rcp_f32 v{t}, v{t}")
        for v,t in zip(vs,ts): I(f"v_mul_f32 v{v}, v{v}, v{t}")
    def ln_stats(S,S2,mean_b,inv):
        I(f"v_mul_f32 v{S}, {INV576:#x}, v{S}")
        I(f"v_mul_f32 v{S2}, {INV576:#x}, v{S2}")
        I(f"v_fma_f32 v{S2}, -v{S}, v{S}, v{S2}")
        rnd(mean_b,S)
        I(f"v_max_f32 v{S2}, 0, v{S2}")
        rnd(S2,S2)
        I(f"v_add_f32 v{S2}, {EPS:#x}, v{S2}")
        rnd(S2,S2)
        I(f"v_sqrt_f32 v{S2}, v{S2}")
        rnd(S2,S2)
        I(f"v_rcp_f32 v{inv}, v{S2}")
    def unpack2(d0,d1,s):
        I(f"v_and_b32 v{d1}, 0xffff0000, v{s}")
        I(f"v_lshlrev_b32 v{d0}, 16, v{s}")
    def roles():
        I("s_mul_i32 s14, s5, 6"); I("s_add_u32 s14, s14, s6")
        I("s_mul_i32 s82, s5, 9"); I("s_add_u32 s82, s82, s6"); I("s_sub_u32 s82, s82, 7")
        I("s_cmp_lt_u32 s6, 6"); I("s_cselect_b32 s81, 1, 0")
        I("s_cmp_ge_u32 s6, 7"); I("s_cselect_b32 s81, 2, s81")
    def ws_setup():
        srd(44,40,None,WS_SIZE)
        I(f"s_mul_i32 s85, s4, {STRIDE}")
        I(f"s_movk_i32 s86, {STRIDE}")
    def tag():
        I(f"s_mul_i32 s95, s94, {HASH_A:#x}"); I(f"s_add_u32 s95, s95, {HASH_C:#x}")
    def epoch_load():
        I(f"s_add_u32 s8, s40, {EPOCH_OFF:#x}"); I("s_addc_u32 s9, s41, 0"); I("s_load_dword s94, s[8:9], 0")
    def diag_consts():
        for r,m in enumerate((0x03030303,0x0c0c0c0c,0x30303030,0xc0c0c0c0)):
            I(f"s_mov_b32 s{72+2*r}, {m:#x}"); I(f"s_mov_b32 s{73+2*r}, {m:#x}")
        I("v_and_b32 v162, 1, v1"); I("v_cmp_eq_u32 vcc, 1, v162")
        I("v_mov_b32 v162, 0xffff"); I("v_mov_b32 v163, 0xffff0000"); I("v_cndmask_b32 v162, v162, v163, vcc")
        I("v_cmp_gt_u32 vcc, 8, v3"); I("v_cndmask_b32 v162, 0, v162, vcc")
        I("v_lshlrev_b32 v163, 2, v2"); I("v_lshlrev_b32 v164, 4, v1")
    def matvec18(tile, AV, A0, A1, acc, tl):
        for i in range(18): I(f"ds_read_b32 v{AV+i}, v163 offset:{tl+16*i}")
        for i in range(18):
            if i in (0,6,12): I(f"s_waitcnt lgkmcnt({12-i if i<12 else 0})")
            A = A0 if i%2==0 else A1
            I(f"v_and_b32 v{AV+i}, v{AV+i}, v162")
            for r in range(4): I(f"v_cndmask_b32 v{A+r}, 0, v{AV+i}, s[{72+2*r}:{73+2*r}]")
            src = "0" if i==0 else vr(acc)
            I(f"v_mfma_f32_16x16x32_bf16 {vr(acc)}, {vr(A)}, {vr(tile+4*i)}, {src}")
    def code_touch(dst):
        I("s_getpc_b64 s[8:9]")
        lb=L("pc"); a.label(lb)
        I("s_bfe_u32 s7, s2, 0x30003"); I(f"s_mul_i32 s7, s7, {CODE_SLICE}")
        I(f"s_sub_u32 s8, s8, {lb}-{NAME}_kernel"); I("s_subb_u32 s9, s9, 0")
        I(f"v_lshlrev_b32 v{dst}, 4, v1")
        for k in range(CODE_SLICE//1024):
            I(f"v_add_u32 v{dst+1}, s7, v{dst}"); I(f"s_add_u32 s7, s7, 0x400")
            I(f"v_min_u32 v{dst+1}, L_end-{NAME}_kernel-16, v{dst+1}")
            I(f"global_load_dwordx4 {vr(dst+4+4*k)}, v{dst+1}, s[8:9]")

    a.raw(f"{NAME}_kernel:")
    I("s_cmp_ge_u32 s2, 256"); I("s_cbranch_scc1 L_end")
    I("s_load_dwordx16 s[16:31], s[0:1], 0")
    I("s_load_dwordx8 s[32:39], s[0:1], 64")
    I("s_load_dwordx2 s[40:41], s[0:1], 96")
    I("v_lshrrev_b32 v4, 6, v0")
    I("v_and_b32 v1, 63, v0")
    I("v_readfirstlane_b32 s3, v4")
    I("v_lshrrev_b32 v2, 4, v1")
    I("v_and_b32 v3, 15, v1")
    I("s_and_b32 s5, s2, 7"); I("s_lshl_b32 s5, s5, 1"); I("s_bfe_u32 s7, s2, 0x10003"); I("s_or_b32 s5, s5, s7")
    I("s_lshr_b32 s6, s2, 4")
    I("s_lshl_b32 s4, s5, 4"); I("s_or_b32 s4, s4, s6")
    if stamps: I("v_mov_b32 v7, 0")
    roles()
    I("s_cmp_eq_u32 s3, 0"); I("s_cbranch_scc1 L_ctrl")
    I("s_cmp_eq_u32 s3, 9"); I("s_cbranch_scc1 L_mod")
    I("s_cmp_eq_u32 s3, 10"); I("s_cbranch_scc1 L_clean")

    a.C("================ worker waves (1..8) ================")
    KB,VB,SB,TB=8,72,136,152
    I("s_sub_u32 s83, s3, 1")
    I("v_lshlrev_b32 v4, 8, v3"); I("v_lshl_add_u32 v4, v2, 4, v4")
    I("v_lshlrev_b32 v5, 10, v2"); I("v_lshl_add_u32 v5, v3, 4, v5")
    I("s_lshl_b32 s7, s4, 17"); I("s_lshl_b32 s8, s83, 14"); I("s_add_u32 s7, s7, s8")
    if rot:
        I("s_add_u32 s10, s4, s83")
        for t in range(4):
            I(f"s_add_u32 s11, s10, {t}"); I("s_and_b32 s11, s11, 3"); I(f"s_lshl_b32 s{68+t}, s11, 12")
    else:
        for t in range(4): I(f"s_mov_b32 s{68+t}, {t*4096}")
    soff=["s68","s69","s70","s71"]
    I("s_cmp_eq_u32 s81, 1"); nw_=L("dw1"); dd_=L("dwd"); I(f"s_cbranch_scc0 {nw_}")
    I("s_lshl_b32 s12, s5, 8"); I("s_lshl_b32 s13, s83, 5"); I("s_add_u32 s12, s12, s13"); I("s_mul_i32 s12, s12, 1152")
    I("s_mul_i32 s13, s6, 192"); I("s_add_u32 s12, s12, s13")
    I("s_mul_i32 s13, s83, 6144"); I(f"s_add_u32 s13, s13, {WAREA}"); I("s_mov_b32 s79, 0")
    I("s_movk_i32 s10, 0x1556"); I("s_movk_i32 s11, 0x480")
    for i_ in range(3):
        I(f"v_add_u32 v0, {64*i_}, v1"); I("v_mul_u32_u24 v6, s10, v0"); I("v_lshrrev_b32 v6, 16, v6")
        I("v_mul_u32_u24 v164, 12, v6"); I("v_sub_u32 v0, v0, v164")
        I("v_mul_u32_u24 v6, s11, v6"); I(f"v_lshl_add_u32 v{165+i_}, v0, 4, v6")
    I(f"s_branch {dd_}")
    a.label(nw_)
    I("s_mul_i32 s12, s3, 589824"); I("s_lshl_b32 s13, s82, 6"); I("s_add_u32 s12, s12, s13")
    I("s_mul_i32 s79, s82, 36864"); I("s_lshl_b32 s13, s3, 7"); I("s_add_u32 s79, s79, s13")
    I("s_lshl_b32 s13, s3, 13"); I(f"s_add_u32 s13, s13, {WAREA}")
    I("v_lshrrev_b32 v167, 2, v1"); I("s_movk_i32 s10, 0x2400"); I("v_mul_u32_u24 v167, s10, v167"); I("v_and_b32 v0, 3, v1"); I("v_lshl_add_u32 v167, v0, 4, v167")
    I("v_lshrrev_b32 v166, 3, v1"); I("s_movk_i32 s10, 0x480"); I("v_mul_u32_u24 v166, s10, v166"); I("v_and_b32 v0, 7, v1"); I("v_lshl_add_u32 v166, v0, 4, v166")
    I("v_mov_b32 v165, 0")
    I("s_cmp_eq_u32 s81, 0"); I("s_cselect_b32 s12, 0, s12"); I("s_cselect_b32 s79, 0, s79")
    a.label(dd_)
    I("s_waitcnt lgkmcnt(0)")
    stamp(0)
    dstamp(0,True,1); dstamp(1,False,1)
    srd(48,18,7,16384); srd(52,20,7,16384)
    I("s_cmp_eq_u32 s81, 1"); I("s_cselect_b32 s56, s24, s28"); I("s_cselect_b32 s57, s25, s29"); I("s_mov_b32 s58, 5308416"); I("s_cselect_b32 s58, 4718592, s58")
    I("s_add_u32 s56, s56, s12"); I("s_addc_u32 s57, s57, 0"); I("s_sub_u32 s58, s58, s12"); I("s_mov_b32 s59, 0x20000")
    srd_rem(60,30,79,5308416)
    I("s_cmp_eq_u32 s81, 0"); I("s_cselect_b32 s58, 0, s58"); I("s_cselect_b32 s62, 0, s62")
    (I("s_barrier") if not noB0 else None)
    def consts_w():
        ws_setup()
        I("v_and_b32 v152, 1, v1"); I("v_cmp_eq_u32 vcc, 1, v152")
        I("v_mov_b32 v152, 0xffff"); I("v_mov_b32 v153, 0xffff0000"); I("v_cndmask_b32 v152, v152, v153, vcc")
        I("v_bfe_u32 v153, v1, 1, 2")
        for r in range(4):
            I(f"v_cmp_eq_u32 vcc, {r}, v153"); I(f"v_cndmask_b32 v{160+r}, 0, v152, vcc")
        I("s_mov_b32 s72, 0xffff0000"); I("s_mov_b32 s73, 0"); I("s_mov_b32 s74, 0"); I("s_mov_b32 s75, 0xffff"); I("s_mov_b32 s76, 0"); I("s_mov_b32 s77, 0xffff0000")
    def stream(Wn, wo):
        if wo:
            I("v_lshlrev_b32 v0, 1, v2"); I("v_xor_b32 v0, v0, v3"); I("s_movk_i32 s10, 0x480"); I("v_mul_u32_u24 v6, s10, v2")
            I("v_lshl_add_u32 v164, v0, 4, v6"); I("v_xor_b32 v0, 8, v0"); I("v_lshl_add_u32 v165, v0, 4, v6")
            for i in range(8):
                I(f"s_add_u32 m0, s13, {i*1024}"); I(f"s_mov_b32 s84, {i*4608}")
                I(f"buffer_load_dwordx4 v{164+(i&1)}, s[56:59], s84 offen lds {wflag}".replace(" lds nt"," nt lds"))
                if i>=Wn-1: I(f"s_waitcnt vmcnt({Wn-1})")
        for t in range(4):
            for c in range(4):
                I(f"buffer_load_dwordx4 {vr(KB+(4*t+c)*4)}, v4, s[48:51], {soff[t]} offen offset:{c*64} {ldflag}")
                if wo or 4*t+c>=Wn-1: I(f"s_waitcnt vmcnt({Wn-1})")
        for idx in range(16):
            t,r=divmod(idx,4)
            I(f"buffer_load_dwordx4 {vr(VB+idx*4)}, v5, s[52:55], {soff[t]} offen offset:{r*256} {ldflag}")
            if idx<15: I(f"s_waitcnt vmcnt({(Wn if idx<6 else max(Wn,W2))-1})")
            if idx==3: consts_w()
    stream(W,False)
    MK=160; Q=152; ACC=164
    stamp(1)
    dstamp(3,False,8)
    I("s_barrier")
    stamp(2)
    I("v_lshrrev_b32 v5, 3, v3"); I("v_lshlrev_b32 v5, 8, v5"); I("v_lshl_add_u32 v5, v2, 4, v5")
    I(f"ds_read_b128 {vr(Q)}, v5 offset:{QL}"); I(f"ds_read_b128 {vr(Q+4)}, v5 offset:{QL+64}")
    I("s_waitcnt vmcnt(16)")
    for c in range(4):
        I(f"s_waitcnt lgkmcnt({1 if c<3 else 0})")
        qb=Q+4*(c%2)
        for t in range(4):
            src = "0" if c==0 else vr(SB+4*t)
            I(f"v_mfma_f32_16x16x32_bf16 {vr(SB+4*t)}, {vr(qb)}, {vr(KB+(4*t+c)*4)}, {src}")
        if c<2: I(f"ds_read_b128 {vr(qb)}, v5 offset:{QL+(c+2)*64}")
    def dma(v,srd_,so,m0off):
        I(f"s_add_u32 m0, s13, {m0off}"); I(f"s_mov_b32 s84, {so}")
        I(f"buffer_load_dwordx4 v{v}, s[{srd_}:{srd_+3}], s84 offen lds {wflag}".replace(" lds nt"," nt lds"))
    I("s_cmp_eq_u32 s81, 1"); dm_=L("dmamlp"); de_=L("dmaend"); I(f"s_cbranch_scc0 {dm_}")
    for i in range(6): dma(165+i%3,56,(i//3)*16*1152,i*1024)
    I(f"s_branch {de_}")
    a.label(dm_)
    for i in range(4): dma(167,56,i*147456,i*1024)
    for i in range(2): dma(166,60,i*9216,4096+i*1024)
    a.label(de_)
    S=[SB,SB+4,SB+8,SB+12]
    I("v_lshrrev_b32 v6, 1, v2"); I("v_lshlrev_b32 v0, 8, v6"); I("v_lshlrev_b32 v6, 5, v6")
    I("s_lshl_b32 s7, s83, 2"); I("v_add_u32 v4, s7, v6")
    I("s_lshl_b32 s9, s83, 9"); I(f"s_add_u32 s9, s9, {SCR}")
    I("v_lshl_add_u32 v0, v3, 2, v0"); I("v_add_u32 v0, s9, v0")
    for x in S: rnd(x,x)
    for x in S: I(f"v_mul_f32 v{x}, {SCALE:#x}, v{x}")
    for x in S: rnd(x,x)
    M=SB+1; M2=SB+2
    I(f"v_max3_f32 v{M}, v{S[0]}, v{S[1]}, v{S[2]}"); I(f"v_max_f32 v{M}, v{M}, v{S[3]}")
    for k in (8,4,2,1): ror("v_max_f32",[M],k)
    I(f"ds_write_b32 v4, v{M} offset:{WMAX}")
    I("s_waitcnt lgkmcnt(0)")
    I("s_barrier")
    I(f"ds_read_b128 {vr(Q)}, v6 offset:{WMAX}"); I(f"ds_read_b128 {vr(Q+4)}, v6 offset:{WMAX+16}")
    I("v_lshrrev_b32 v5, 3, v3"); I("v_lshlrev_b32 v5, 8, v5"); I("v_lshl_add_u32 v5, v2, 4, v5"); I("v_add_u32 v5, s9, v5")
    I(f"s_mov_b32 s7, {LOG2E:#x}")
    I("s_waitcnt lgkmcnt(0)")
    I(f"v_max3_f32 v{M}, v{Q}, v{Q+1}, v{Q+2}"); I(f"v_max3_f32 v{M2}, v{Q+3}, v{Q+4}, v{Q+5}")
    I(f"v_max3_f32 v{M}, v{M}, v{Q+6}, v{Q+7}"); I(f"v_max_f32 v{M}, v{M}, v{M2}")
    I(f"v_mul_f32 v{M}, 0xbfb8aa3b, v{M}")
    for x in S: I(f"v_fma_f32 v{x}, v{x}, s7, v{M}")
    for x in S: I(f"v_exp_f32 v{x}, v{x}")
    I(f"v_add_f32 v{M}, v{S[0]}, v{S[1]}"); I(f"v_add_f32 v{M2}, v{S[2]}, v{S[3]}")
    for x in S: dup(x,x)
    I(f"v_add_f32 v{M}, v{M}, v{M2}")
    for t,x in enumerate(S): I(f"ds_write_b32 v0, v{x} offset:{64*t}")
    for k in (8,4,2,1): ror("v_add_f32",[M],k)
    for t in range(4): I(f"ds_read_b128 {vr(SB+4*t) if t else vr(Q)}, v5 offset:{64*t}")
    I("v_lshrrev_b32 v6, 3, v6")
    setexec(1,1)
    I(f"ds_add_f32 v6, v{M} offset:{LSUM}")
    fullexec()
    I("s_waitcnt lgkmcnt(0)")
    I("s_barrier")
    for r in range(4): I(f"v_mov_b32 v{SB+r}, v{Q+r}")
    stamp(3)
    A0,A1=Q,Q+4
    I("v_lshrrev_b32 v4, 1, v2"); I("v_lshlrev_b32 v4, 9, v4"); I("v_lshl_add_u32 v4, v3, 5, v4")
    I("v_and_b32 v5, 1, v2"); I("v_lshl_add_u32 v4, v5, 4, v4")
    I("s_lshl_b32 s7, s83, 10"); I("v_add_u32 v4, s7, v4")
    for idx in range(16):
        A=A0 if idx%2==0 else A1
        for r in range(4): I(f"v_and_b32 v{A+r}, v{SB+idx}, v{MK+r}")
        I(f"s_waitcnt vmcnt({15-idx+6})")
        src="0" if idx==0 else vr(ACC)
        I(f"v_mfma_f32_16x16x32_bf16 {vr(ACC)}, {vr(A)}, {vr(VB+4*idx)}, {src}")
    I(f"ds_write_b128 v4, {vr(ACC)} offset:{OBUF}")
    I("s_waitcnt lgkmcnt(0)")
    stamp(4)
    dstamp(4,False,8)
    I("s_barrier")
    if notail: finish()
    I("s_cmp_eq_u32 s81, 2"); I("s_cbranch_scc1 L_mlp_tail")
    I("s_cmp_eq_u32 s81, 1"); I("s_cbranch_scc1 L_wo_tail")
    finish()

    a.label("L_wo_tail")
    O1,O2,M1,T=72,76,80,88
    I("v_lshrrev_b32 v6, 2, v3"); I("v_lshl_add_u32 v4, v2, 3, v6"); I("s_movk_i32 s7, 192"); I("v_mul_u32_u24 v4, s7, v4")
    I("v_and_b32 v6, 3, v3"); I("v_lshl_add_u32 v4, v6, 3, v4"); I("v_add_u32 v86, s13, v4")
    I("v_bfe_u32 v6, v1, 1, 3"); I("s_lshl_b32 s7, s5, 4"); I("v_add_u32 v4, s7, v6"); I("v_mul_u32_u24 v4, s86, v4")
    I("v_and_b32 v5, 1, v1"); I("v_lshlrev_b32 v5, 4, v5"); I("v_lshl_add_u32 v5, v2, 5, v5")
    I("s_lshl_b32 s7, s83, 7"); I("v_add3_u32 v84, v4, v5, s7")
    I("s_lshr_b32 s7, s83, 2"); I("s_lshl_b32 s7, s7, 6"); I("v_lshl_add_u32 v85, v6, 2, s7")
    I(f"s_mov_b32 s84, {8*STRIDE}")
    I("s_waitcnt vmcnt(0)"); stamp(12)
    for c in range(6):
        I(f"ds_read_b64_tr_b16 v[{KB+4*c}:{KB+4*c+1}], v86 offset:{c*32}")
        I(f"ds_read_b64_tr_b16 v[{KB+4*c+2}:{KB+4*c+3}], v86 offset:{c*32+768}")
    I("s_barrier")
    I(f"ds_read_b32 v{M1}, v85 offset:{WGT}"); I(f"ds_read_b32 v{M1+1}, v85 offset:{WGT+32}")
    poll([f"buffer_load_dwordx4 {vr(O1)}, v84, s[44:47], 0 offen offset:{P3} sc1",
          f"buffer_load_dwordx4 {vr(O2)}, v84, s[44:47], s84 offen offset:{P3} sc1"],
         sent=list(range(72,80)), name="o", tmp=87)
    stamp(5)
    def red8(op,regs):
        for v in regs: dpp(op,v,v,v,"quad_perm:[2,3,0,1]")
        for v in regs: dpp(op,v,v,v,"row_ror:4")
        for v in regs: dpp(op,v,v,v,"row_ror:8")
    I("s_waitcnt lgkmcnt(0)")
    for r in range(4): I(f"v_mul_f32 v{O1+r}, v{M1}, v{O1+r}")
    for r in range(4): I(f"v_fmac_f32 v{O1+r}, v{M1+1}, v{O2+r}")
    red8("v_add_f32",[O1,O1+1,O1+2,O1+3])
    I(f"v_cvt_pk_bf16_f32 v{T}, v{O1}, v{O1+1}"); I(f"v_cvt_pk_bf16_f32 v{T+1}, v{O1+2}, v{O1+3}")
    AO=T+8
    I(f"v_mov_b32_dpp v{AO}, v{T} quad_perm:[0,0,2,2] row_mask:0xf bank_mask:0xf"); I(f"v_mov_b32_dpp v{AO+1}, v{T+1} quad_perm:[0,0,2,2] row_mask:0xf bank_mask:0xf")
    I(f"v_mov_b32_dpp v{AO+2}, v{T} quad_perm:[1,1,3,3] row_mask:0xf bank_mask:0xf"); I(f"v_mov_b32_dpp v{AO+3}, v{T+1} quad_perm:[1,1,3,3] row_mask:0xf bank_mask:0xf")
    D=100
    for c in range(6): I(f"v_mfma_f32_16x16x32_bf16 {vr(D+4*c)}, {vr(AO)}, {vr(KB+4*c)}, 0")
    I("v_lshlrev_b32 v4, 2, v1")
    I("s_lshl_b32 s7, s83, 9"); I("v_add_u32 v5, s7, v4")
    def sel4(dst,D0):
        I(f"v_cndmask_b32 v{dst}, v{D0}, v{D0+4}, s[72:73]")
        I(f"v_cndmask_b32 v{dst}, v{dst}, v{D0+8}, s[74:75]")
        I(f"v_cndmask_b32 v{dst}, v{dst}, v{D0+12}, s[76:77]")
    sel4(T,D)
    I(f"v_cndmask_b32 v{T+1}, v{D+16}, v{D+20}, s[72:73]")
    I(f"ds_write_b32 v5, v{T} offset:{RED}"); I(f"ds_write_b32 v5, v{T+1} offset:{RED+256}")
    I("s_waitcnt lgkmcnt(0)")
    I("s_barrier")
    I("s_cmp_lt_u32 s83, 2"); sk=L("wo_done"); I(f"s_cbranch_scc0 {sk}")
    I("s_lshl_b32 s7, s83, 8"); I("v_add_u32 v4, s7, v4")
    for k in range(4): I(f"ds_read2st64_b32 v[{T+2*k}:{T+2*k+1}], v4 offset0:{RED//256+4*k} offset1:{RED//256+4*k+2}")
    I("s_mul_i32 s7, s14, 384"); I(f"s_add_u32 s7, s7, {P4A:#x}")
    I("s_cmp_eq_u32 s83, 0"); I("s_cselect_b32 exec_hi, -1, 0")
    I("s_waitcnt lgkmcnt(0)")
    I(f"v_add_f32 v{T}, v{T}, v{T+1}"); I(f"v_add_f32 v{T+2}, v{T+2}, v{T+3}"); I(f"v_add_f32 v{T+4}, v{T+4}, v{T+5}"); I(f"v_add_f32 v{T+6}, v{T+6}, v{T+7}")
    I(f"v_add_f32 v{T}, v{T}, v{T+2}"); I(f"v_add_f32 v{T+4}, v{T+4}, v{T+6}"); I(f"v_add_f32 v{T}, v{T}, v{T+4}")
    I(f"buffer_store_dword v{T}, v4, s[44:47], s7 offen sc1")
    stamp(6)
    dstamp(6,False,1,0)
    a.label(sk)
    finish()

    a.label("L_mlp_tail")
    I("s_lshl_b32 s13, s3, 13"); I(f"s_add_u32 s13, s13, {WAREA}")
    I("v_lshrrev_b32 v4, 2, v1"); I("s_movk_i32 s7, 0x2400"); I("v_mul_u32_u24 v4, s7, v4"); I("v_and_b32 v5, 3, v1"); I("v_lshl_add_u32 v96, v5, 4, v4")
    I("s_mul_i32 s7, s3, 589824"); I("s_lshl_b32 s8, s82, 6"); I("s_add_u32 s7, s7, s8")
    srd_rem(56,28,7,5308416)
    I("v_lshrrev_b32 v4, 3, v1"); I("s_movk_i32 s7, 0x480"); I("v_mul_u32_u24 v4, s7, v4"); I("v_and_b32 v5, 7, v1"); I("v_lshl_add_u32 v97, v5, 4, v4")
    I("s_mul_i32 s7, s82, 36864"); I("s_lshl_b32 s8, s3, 7"); I("s_add_u32 s7, s7, s8")
    srd_rem(60,30,7,5308416)
    def mlp_dma():
        sk1=L("w1done")
        I("s_cmp_lg_u32 s3, 0"); I(f"s_cbranch_scc1 {sk1}")
        for i in range(4):
            I(f"s_add_u32 m0, s13, {i*1024}"); I(f"s_mov_b32 s84, {i*147456}")
            I(f"buffer_load_dwordx4 v96, s[56:59], s84 offen lds {wflag}".replace(" lds nt"," nt lds"))
        for i in range(2):
            I(f"s_add_u32 m0, s13, {4096+i*1024}"); I(f"s_mov_b32 s84, {i*9216}")
            I(f"buffer_load_dwordx4 v97, s[60:63], s84 offen lds {wflag}".replace(" lds nt"," nt lds"))
        a.label(sk1)
        for i in range(2,4):
            I(f"s_add_u32 m0, s13, {4096+i*1024}"); I(f"s_mov_b32 s84, {i*9216}")
            I(f"buffer_load_dwordx4 v97, s[60:63], s84 offen lds {wflag}".replace(" lds nt"," nt lds"))
    if not gate: mlp_dma()
    XV,GA,SBv,CBv,GBv=72,73,74,75,76
    I("v_lshlrev_b32 v77, 2, v1")
    I("s_lshl_b32 s7, s3, 7"); I("v_lshl_add_u32 v4, v1, 1, s7")
    srd(64,16,None,1152)
    I(f"buffer_load_ushort v{XV}, v4, s[64:67], 0 offen")
    for k,base in enumerate((1152,1728,2304,2880)):
        I(f"s_lshl_b32 s7, s3, 6"); I(f"s_add_u32 s7, s7, {base-1152}")
        I("s_lshr_b32 s8, s7, 7"); I("s_lshl_b32 s8, s8, 9")
        I("s_and_b32 s7, s7, 127"); I("s_lshl_b32 s7, s7, 2"); I("s_add_u32 s8, s8, s7"); I(f"s_add_u32 s{88+k}, s8, {P1BA:#x}")
    I("s_lshl_b32 s7, s3, 8"); I(f"s_add_u32 s15, s7, {P4A:#x}")
    G=80
    T=100
    I("v_lshrrev_b32 v4, 2, v3"); I("v_lshl_add_u32 v4, v2, 3, v4")
    I("v_and_b32 v5, 3, v3"); I("v_lshlrev_b32 v5, 3, v5")
    I("v_lshl_add_u32 v98, v4, 6, v5"); I("v_add_u32 v98, s13, v98")
    I("v_lshl_add_u32 v99, v4, 7, v5"); I("v_add_u32 v99, s13, v99")
    B1,B2=8,24
    def trreads():
        for kk in range(2):
            for c in range(2):
                b=B1+4*(2*kk+c)
                I(f"ds_read_b64_tr_b16 v[{b}:{b+1}], v98 offset:{kk*2048+c*32}")
                I(f"ds_read_b64_tr_b16 v[{b+2}:{b+3}], v98 offset:{kk*2048+c*32+256}")
        for c in range(4):
            b=B2+4*c
            I(f"ds_read_b64_tr_b16 v[{b}:{b+1}], v99 offset:{4096+c*32}")
            I(f"ds_read_b64_tr_b16 v[{b+2}:{b+3}], v99 offset:{4096+c*32+512}")
    poll([f"buffer_load_dword v{GA+k}, v77, s[44:47], s{88+k} offen sc1" for k in range(4)], sent=list(range(GA,GA+4)), name="s", tmp=T)
    if not gate: trreads()
    I(f"v_lshlrev_b32 v{XV}, 16, v{XV}")
    I(f"v_add_f32 v{CBv}, 1.0, v{CBv}"); rnd(CBv,CBv)
    if gate==2:
        I("s_cmp_eq_u32 s3, 0"); ng_=L("nog"); I(f"s_cbranch_scc0 {ng_}")
        I(f"s_lshl_b32 s12, s5, 7"); I(f"s_add_u32 s12, s12, {F4A:#x}"); I("v_mov_b32 v4, 0")
        setexec(1,0)
        poll([f"buffer_load_dword v{T}, v4, s[44:47], s12 offen sc1","s_sleep 2"], tags=[T], name="c3", tmp=T+1)
        fullexec()
        a.label(ng_)
        I("s_barrier")
        mlp_dma()
    I("s_cmp_eq_u32 s3, 0"); nc_=L("nocan"); I(f"s_cbranch_scc0 {nc_}")
    I("v_lshlrev_b32 v4, 7, v1"); I(f"s_mov_b32 s12, {F4A:#x}")
    setexec(0xffff,0)
    poll([f"buffer_load_dword v{T}, v4, s[44:47], s12 offen sc1","s_sleep 1"], tags=[T], name="c4", tmp=T+1)
    fullexec()
    a.label(nc_)
    I("s_waitcnt lgkmcnt(0)")
    I("s_barrier")
    if gate==1: mlp_dma()
    lds_=["s_mov_b32 s84, s15"]
    for k in range(16):
        lds_.append(f"buffer_load_dword v{G+k}, v77, s[44:47], s84 offen sc1")
        if k<15: lds_.append(f"s_add_u32 s84, s84, 2304")
    poll(lds_, sent=list(range(G,G+16)), name="x", tmp=T, mid=(trreads if gate else None))
    stamp(9)
    dstamp(7,False,1)
    if stamps: I(f"v_writelane_b32 v{STV}, s80, 14")
    for k in (0,2,4,6,8,10,12,14): I(f"v_add_f32 v{G+k}, v{G+k}, v{G+k+1}")
    for k in (0,4,8,12): I(f"v_add_f32 v{G+k}, v{G+k}, v{G+k+2}")
    I(f"v_add_f32 v{G}, v{G}, v{G+4}"); I(f"v_add_f32 v{G+8}, v{G+8}, v{G+12}")
    I(f"v_add_f32 v{G}, v{G}, v{G+8}")
    rnd(G,G); I(f"v_mul_f32 v{G}, v{G}, v{GA}"); rnd(G,G); I(f"v_add_f32 v{G}, v{G}, v{XV}")
    X1=G+1; rnd(X1,G)
    S,S2=T,T+1
    I(f"v_mov_b32 v{S}, v{X1}"); I(f"v_mul_f32 v{S2}, v{X1}, v{X1}")
    for k in (8,4,2,1): ror("v_add_f32",[S,S2],k)
    for v_ in (S,S2): I(f"v_add_f32_dpp v{v_}, v{v_}, v{v_} row_bcast:15 row_mask:0xa bank_mask:0xf")
    for v_ in (S,S2): I(f"v_add_f32_dpp v{v_}, v{v_}, v{v_} row_bcast:31 row_mask:0xc bank_mask:0xf")
    I("v_mov_b32 v4, 0")
    setexec(0,0x80000000)
    I(f"ds_add_f32 v4, v{S} offset:{STAT}"); I(f"ds_add_f32 v4, v{S2} offset:{STAT+4}")
    fullexec()
    I("s_lshl_b32 s9, s3, 9"); I(f"s_add_u32 s9, s9, {SCR}")
    I("v_lshl_add_u32 v5, v1, 1, s9")
    I("v_lshl_add_u32 v6, v2, 4, s9")
    I("s_waitcnt lgkmcnt(0)")
    I("s_barrier")
    I(f"ds_read_b64 v[{S}:{S+1}], v4 offset:{STAT}")
    I("s_waitcnt lgkmcnt(0)")
    ln_stats(S,S2,T+2,T+3)
    H=G+2
    I(f"v_sub_f32 v{H}, v{X1}, v{T+2}"); rnd(H,H); I(f"v_mul_f32 v{H}, v{H}, v{T+3}"); rnd(H,H)
    I(f"v_mul_f32 v{H}, v{H}, v{CBv}"); rnd(H,H); I(f"v_add_f32 v{H}, v{H}, v{SBv}")
    I(f"v_cvt_pk_bf16_f32 v{H}, v{H}, v{H}")
    I(f"ds_write_b16 v5, v{H}")
    AH=T+4
    I(f"ds_read_b128 {vr(AH)}, v6"); I(f"ds_read_b128 {vr(AH+4)}, v6 offset:64")
    D=T+12
    I("s_waitcnt lgkmcnt(1)")
    I(f"v_mfma_f32_16x16x32_bf16 {vr(D)}, {vr(AH)}, {vr(B1)}, 0"); I(f"v_mfma_f32_16x16x32_bf16 {vr(D+4)}, {vr(AH)}, {vr(B1+4)}, 0")
    I("s_waitcnt lgkmcnt(0)")
    I(f"v_mfma_f32_16x16x32_bf16 {vr(D)}, {vr(AH+4)}, {vr(B1+8)}, {vr(D)}"); I(f"v_mfma_f32_16x16x32_bf16 {vr(D+4)}, {vr(AH+4)}, {vr(B1+12)}, {vr(D+4)}")
    I(f"v_cndmask_b32 v{T}, v{D}, v{D+4}, s[72:73]")
    I("s_lshl_b32 s7, s3, 8"); I("v_add_u32 v4, s7, v77")
    I(f"ds_write_b32 v4, v{T} offset:{RED}")
    I("s_waitcnt lgkmcnt(0)")
    I("s_barrier")
    for k in range(4): I(f"ds_read2st64_b32 v[{T+2*k}:{T+2*k+1}], v77 offset0:{RED//256+2*k} offset1:{RED//256+2*k+1}")
    I(f"ds_read_b32 v{T+8}, v77 offset:{RED+8*256}")
    I("s_waitcnt lgkmcnt(0)")
    I(f"v_add_f32 v{T}, v{T}, v{T+1}"); I(f"v_add_f32 v{T+2}, v{T+2}, v{T+3}"); I(f"v_add_f32 v{T+4}, v{T+4}, v{T+5}"); I(f"v_add_f32 v{T+6}, v{T+6}, v{T+7}")
    I(f"v_add_f32 v{T}, v{T}, v{T+2}"); I(f"v_add_f32 v{T+4}, v{T+4}, v{T+6}"); I(f"v_add_f32 v{T}, v{T}, v{T+8}"); I(f"v_add_f32 v{T}, v{T}, v{T+4}")
    rnd(T,T); silu([T],[T+1])
    I(f"v_cvt_pk_bf16_f32 v{T}, v{T}, v{T}")
    I(f"ds_write_b16 v5, v{T} offset:256")
    I(f"ds_read_b128 {vr(AH)}, v6 offset:256")
    I("s_waitcnt lgkmcnt(0)")
    for c in range(4): I(f"v_mfma_f32_16x16x32_bf16 {vr(D+4*c)}, {vr(AH)}, {vr(B2+4*c)}, 0")
    I("s_lshl_b32 s7, s3, 8"); I("s_mul_i32 s8, s82, 2304"); I("s_add_u32 s7, s7, s8"); I(f"s_add_u32 s7, s7, {P5A:#x}")
    sel4(T,D)
    I(f"buffer_store_dword v{T}, v77, s[44:47], s7 offen sc1")
    stamp(10)
    dstamp(8,False,1)
    I("s_cmp_lt_u32 s82, 9"); sk=L("mlp_done"); I(f"s_cbranch_scc0 {sk}")
    a.C("final reducers: CU u<9 handles column block u; wave wv gathers partials 16wv+pp+4k")
    F=84
    I(f"s_mul_i32 s7, s3, {16*2304}"); I("s_lshl_b32 s8, s82, 8"); I("s_add_u32 s12, s7, s8"); I(f"s_add_u32 s12, s12, {P5A:#x}")
    lds_=["s_mov_b32 s84, s12"]
    for k in range(16):
        lds_.append(f"buffer_load_dword v{F+k}, v77, s[44:47], s84 offen sc1")
        if k<15: lds_.append(f"s_add_u32 s84, s84, 2304")
    poll(lds_, sent=list(range(F,F+16)), name="f", tmp=T)
    stamp(11)
    dstamp(10,False,1)
    for k in (0,2,4,6,8,10,12,14): I(f"v_add_f32 v{F+k}, v{F+k}, v{F+k+1}")
    for k in (0,4,8,12): I(f"v_add_f32 v{F+k}, v{F+k}, v{F+k+2}")
    I(f"v_add_f32 v{F}, v{F}, v{F+4}"); I(f"v_add_f32 v{F+8}, v{F+8}, v{F+12}"); I(f"v_add_f32 v{F}, v{F}, v{F+8}")
    I("s_lshl_b32 s7, s3, 8"); I("v_add_u32 v4, s7, v77")
    I(f"ds_write_b32 v4, v{F} offset:{RED+2304}")
    I("s_waitcnt lgkmcnt(0)")
    I("s_barrier")
    I("s_cmp_eq_u32 s3, s82"); I(f"s_cbranch_scc0 {sk}")
    FB=(RED+2304)//256
    for k in range(4): I(f"ds_read2st64_b32 v[{T+2*k}:{T+2*k+1}], v77 offset0:{FB+2*k} offset1:{FB+2*k+1}")
    I(f"ds_read_b32 v{T+8}, v77 offset:{RED+2304+8*256}")
    I("s_lshl_b32 s7, s82, 7"); I("v_lshl_add_u32 v4, v1, 1, s7")
    srd(64,36,None,1152)
    I("s_waitcnt lgkmcnt(0)")
    I(f"v_add_f32 v{T}, v{T}, v{T+1}"); I(f"v_add_f32 v{T+2}, v{T+2}, v{T+3}"); I(f"v_add_f32 v{T+4}, v{T+4}, v{T+5}"); I(f"v_add_f32 v{T+6}, v{T+6}, v{T+7}")
    I(f"v_add_f32 v{T}, v{T}, v{T+2}"); I(f"v_add_f32 v{T+4}, v{T+4}, v{T+6}"); I(f"v_add_f32 v{T}, v{T}, v{T+8}"); I(f"v_add_f32 v{T}, v{T}, v{T+4}")
    rnd(T,T); I(f"v_mul_f32 v{T}, v{T}, v{GBv}"); rnd(T,T); I(f"v_add_f32 v{T}, v{T}, v{X1}")
    I(f"v_cvt_pk_bf16_f32 v{T}, v{T}, v{T}")
    I(f"buffer_store_short v{T}, v4, s[64:67], 0 offen")
    dstamp(9,False,0)
    I("s_cmp_eq_u32 s82, 0"); I(f"s_cbranch_scc0 {sk}")
    if pad:
        pl=L("pad"); a.label(pl)
        I("s_memrealtime s[96:97]"); I("s_waitcnt lgkmcnt(0)"); I("s_sub_u32 s96, s96, s42"); I(f"s_cmp_lt_u32 s96, {pad}"); I(f"s_cbranch_scc1 {pl}")
    I("v_mov_b32 v4, s95"); I("v_lshlrev_b32 v5, 2, v1"); I(f"s_mov_b32 s7, {EPOCH_OFF:#x}")
    setexec(0xffffffff,0)
    I("buffer_store_dword v4, v5, s[44:47], s7 offen sc1")
    a.label(sk)
    finish()

    a.label("L_clean")
    code_touch(8)
    I("v_mov_b32 v156, 0"); I("v_mov_b32 v157, 0"); I("v_mov_b32 v158, 0"); I("v_mov_b32 v159, 0")
    I("v_lshlrev_b32 v5, 4, v1")
    I("v_lshlrev_b32 v4, 2, v1"); I(f"ds_write_b32 v4, v156 offset:{WMAX}")
    I("s_waitcnt lgkmcnt(0)")
    stamp(0)
    epoch_load()
    ws_setup()
    if tlbw:
        I("s_mov_b32 s7, 82944"); I("v_mul_u32_u24 v20, s7, v1")
        srd(48,28,None,5308416); srd(52,30,None,5308416); srd(56,24,None,4718592)
        I("buffer_load_dword v21, v20, s[48:51], 0 offen"); I("buffer_load_dword v22, v20, s[52:55], 0 offen"); I("buffer_load_dword v23, v20, s[56:59], 0 offen")
    I("v_mov_b32 v156, -1"); I("v_mov_b32 v157, -1"); I("v_mov_b32 v158, -1"); I("v_mov_b32 v159, -1")
    if noclear: I("s_branch L_skipclr")
    I(f"buffer_store_dwordx4 v[156:159], v5, s[44:47], s85 offen offset:{P2} sc1")
    setexec(0xffffffff,0xff)
    I(f"buffer_store_dwordx4 v[156:159], v5, s[44:47], s85 offen offset:{P2+1024} sc1")
    fullexec()
    I("s_cmp_eq_u32 s81, 2"); nc=L("noclr"); I(f"s_cbranch_scc0 {nc}")
    I("s_mul_i32 s7, s82, 2304"); I(f"s_add_u32 s7, s7, {P5A:#x}")
    for k in range(2): I(f"buffer_store_dwordx4 v[156:159], v5, s[44:47], s7 offen offset:{1024*k} sc1")
    setexec(0xffff,0)
    I(f"buffer_store_dwordx4 v[156:159], v5, s[44:47], s7 offen offset:2048 sc1")
    fullexec()
    a.label(nc)
    I("s_cmp_eq_u32 s81, 1"); nc2=L("noclr2"); I(f"s_cbranch_scc0 {nc2}")
    I("s_mul_i32 s7, s14, 384"); I(f"s_add_u32 s7, s7, {P4A:#x}")
    setexec(0xffffff,0)
    I(f"buffer_store_dwordx4 v[156:159], v5, s[44:47], s7 offen sc1")
    fullexec()
    a.label(nc2)
    I("s_sub_u32 s8, 6, s6"); I("s_lshl_b32 s8, s8, 4"); I("s_add_u32 s8, s8, s5"); I("s_cmp_lt_u32 s8, 18"); I("s_cbranch_scc0 L_skipclr")
    I("s_lshl_b32 s7, s8, 9"); I(f"s_add_u32 s7, s7, {P1BA:#x}")
    setexec(0xffffffff,0)
    I(f"buffer_store_dwordx4 v[156:159], v5, s[44:47], s7 offen sc1")
    fullexec()
    a.label("L_skipclr")
    (I("s_barrier") if not noB0 else None)
    I("s_waitcnt vmcnt(0) lgkmcnt(0)")
    tag()
    I("v_mov_b32 v4, s95"); I("v_lshlrev_b32 v5, 2, v1")
    setexec(0xffffffff,0)
    I(f"buffer_store_dword v4, v5, s[44:47], s85 offen offset:{FL} sc1")
    stamp(1)
    I("s_cmp_eq_u32 s6, 6"); na=L("noagg"); I(f"s_cbranch_scc0 {na}")
    fullexec()
    I("s_lshl_b32 s7, s5, 4"); I("v_add_u32 v4, s7, v1"); I("v_mul_u32_u24 v4, s86, v4")
    setexec(0xffff,0)
    poll([f"buffer_load_dword v8, v4, s[44:47], 0 offen offset:{FL} sc1","s_sleep 8"],tags=[8],name="agg",tmp=9)
    fullexec()
    I("v_mov_b32 v4, s95"); I(f"s_lshl_b32 s7, s5, 7"); I(f"s_add_u32 s7, s7, {GCLR_OFF:#x}")
    setexec(0xffffffff,0)
    I(f"buffer_store_dword v4, v5, s[44:47], s7 offen sc1")
    a.label(na)
    finish()

    a.label("L_mod")
    TILE,XF,CV,XR,AV,A0,A1,ACC,GB,T=8,80,88,90,92,110,114,118,122,154
    I("s_setprio 2")
    I("s_waitcnt lgkmcnt(0)")
    stamp(0)
    epoch_load()
    srd(64,32,None,1152)
    I("s_and_b32 s7, s4, 7"); I("s_mul_i32 s7, s7, 144")
    I("v_lshlrev_b32 v4, 3, v1")
    I(f"buffer_load_dwordx2 v[{CV}:{CV+1}], v4, s[64:67], s7 offen")
    I("s_cmp_lt_u32 s4, 216"); nomod=L("nomod"); I(f"s_cbranch_scc0 {nomod}")
    I("s_and_b32 s7, s4, 7"); I("s_mul_i32 s7, s7, 497664")
    I("s_lshr_b32 s10, s4, 3"); I("s_lshl_b32 s10, s10, 8"); I("s_add_u32 s7, s7, s10")
    srd_rem(52,34,7,3981312)
    I("s_movk_i32 s7, 0x1b00"); I("v_mul_u32_u24 v4, s7, v2"); I("v_lshl_add_u32 v4, v3, 4, v4")
    for i in range(0 if notiles else 18):
        I(f"s_mov_b32 s84, {i*27648}")
        I(f"buffer_load_dwordx4 {vr(TILE+4*i)}, v4, s[52:55], s84 offen {wflag}")
    (I("s_barrier") if not noB0 else None)
    ws_setup(); diag_consts()
    I("s_waitcnt vmcnt(18)")
    for k in range(2): unpack2(T+2*k,T+2*k+1,CV+k)
    silu([T,T+1,T+2,T+3],[T+4,T+5,T+6,T+7])
    for r in range(4): dup(T+r,T+r)
    I(f"ds_write_b128 v164, {vr(T)} offset:{TL}")
    I("s_waitcnt vmcnt(0) lgkmcnt(0)")
    tag()
    stamp(1)
    matvec18(TILE,AV,A0,A1,ACC,TL)
    I(f"v_permlane32_swap_b32 v{ACC}, v{ACC+2}"); I(f"v_permlane32_swap_b32 v{ACC+1}, v{ACC+3}")
    I(f"v_mov_b32 v{A0}, v{ACC}"); I(f"v_mov_b32 v{A0+1}, s95"); I(f"v_mov_b32 v{A0+2}, v{ACC+1}"); I(f"v_mov_b32 v{A0+3}, s95")
    I(f"buffer_store_dwordx4 {vr(A0)}, v164, s[44:47], s85 offen offset:{P1} sc1")
    stamp(2)
    dstamp(11)
    finish()
    a.label(nomod)
    (I("s_barrier") if not noB0 else None)
    finish()

    a.label("L_ctrl")
    if pad: I("s_memrealtime s[42:43]")
    I("s_setprio 3")
    I("s_waitcnt lgkmcnt(0)")
    stamp(0)
    epoch_load()
    srd(48,16,None,1152)
    I("s_lshr_b32 s87, s6, 1"); I("s_mul_i32 s87, s87, 72")
    I("s_lshl_b32 s7, s87, 1")
    I("v_lshlrev_b32 v4, 3, v1")
    I(f"buffer_load_dwordx2 v[{XR}:{XR+1}], v4, s[48:51], s7 offen")
    I("v_lshlrev_b32 v5, 5, v1")
    I(f"buffer_load_dwordx4 {vr(XF)}, v5, s[48:51], 0 offen")
    I(f"buffer_load_dwordx4 {vr(XF+4)}, v5, s[48:51], 0 offen offset:16")
    I("s_lshl_b32 s7, s87, 13"); I("s_lshl_b32 s10, s5, 9"); I("s_add_u32 s7, s7, s10")
    I("s_and_b32 s10, s6, 1"); I("s_lshl_b32 s10, s10, 8"); I("s_add_u32 s7, s7, s10")
    srd_rem(52,22,7,4718592)
    I("v_lshlrev_b32 v4, 13, v2"); I("v_lshl_add_u32 v4, v3, 4, v4")
    for i in range(0 if notiles else 18):
        I(f"s_mov_b32 s84, {i*32768:#x}")
        I(f"buffer_load_dwordx4 {vr(TILE+4*i)}, v4, s[52:55], s84 offen {wflag}")
    (I("s_barrier") if not noB0 else None)
    ws_setup(); diag_consts()
    I("s_waitcnt vmcnt(18) lgkmcnt(0)")
    tag()
    stamp(1)
    S,S2=T,T+1
    I(f"v_mov_b32 v{S}, 0"); I(f"v_mov_b32 v{S2}, 0")
    for k in range(8):
        unpack2(T+2,T+3,XF+k)
        I(f"v_add_f32 v{S}, v{S}, v{T+2}"); I(f"v_fmac_f32 v{S2}, v{T+2}, v{T+2}")
        I(f"v_add_f32 v{S}, v{S}, v{T+3}"); I(f"v_fmac_f32 v{S2}, v{T+3}, v{T+3}")
    for k in (8,4,2,1): ror("v_add_f32",[S,S2],k)
    xswap("v_add_f32",[S,S2],[T+2,T+3],16); xswap("v_add_f32",[S,S2],[T+2,T+3],32)
    MB,INV=XF,XF+1
    ln_stats(S,S2,MB,INV)
    GA=92
    if nochain: I("s_branch L_skipchain")
    I("v_and_b32 v4, 31, v1"); I("v_lshl_add_u32 v4, v4, 2, s87")
    I("v_cmp_lt_u32 vcc, 31, v1"); I("v_mov_b32 v5, 576"); I("v_cndmask_b32 v5, 0, v5, vcc"); I("v_add_u32 v4, v4, v5")
    I("v_lshrrev_b32 v5, 7, v4"); I("v_lshlrev_b32 v5, 3, v5"); I("v_mul_u32_u24 v5, s86, v5")
    I("v_bfe_u32 v156, v4, 3, 4"); I("v_bfe_u32 v157, v4, 2, 1"); I("v_lshl_add_u32 v156, v157, 4, v156")
    I("v_lshl_add_u32 v4, v156, 4, v5")
    I("s_lshl_b32 s7, s5, 4"); I("v_add_u32 v158, s7, v1"); I("v_mul_u32_u24 v158, s86, v158")
    I("v_mov_b32 v159, s95")
    def soffs(n,step,base=88):
        res=["0"]
        for k in range(1,n):
            I(f"s_mov_b32 s{base+k-1}, {k*step}"); res.append(f"s{base+k-1}")
        return res
    so=soffs(8,STRIDE)
    def p1loads():
        l=[]
        for k in range(8):
            l.append(f"buffer_load_dwordx4 {vr(GA+8*k)}, v4, s[44:47], {so[k]} offen offset:{P1} sc1")
            l.append(f"buffer_load_dwordx4 {vr(GA+8*k+4)}, v4, s[44:47], {so[k]} offen offset:{P1+512} sc1")
        return l
    p1tags=[GA+8*k+o for k in range(8) for o in (1,3,5,7)]
    def p1sum(D):
        for r,o in enumerate((0,2,4,6)): I(f"v_add_f32 v{D+r}, v{GA+o}, v{GA+8+o}")
        for k in range(2,8):
            for r,o in enumerate((0,2,4,6)): I(f"v_add_f32 v{D+r}, v{D+r}, v{GA+8*k+o}")
    def sleep(nn):
        while nn>0:
            k=min(nn,120); I(f"s_sleep {k}"); nn-=k
    sleep(sl1)
    setexec(0x3ffff,0x3ffff)
    poll(p1loads()+["s_mov_b32 exec_lo, 0xffff","s_mov_b32 exec_hi, 0",f"buffer_load_dword v159, v158, s[44:47], 0 offen offset:{FL} sc1","s_mov_b32 exec_lo, 0x3ffff","s_mov_b32 exec_hi, 0x3ffff"],
         tags=p1tags+[159], name="m", tmp=160)
    fullexec()
    stamp(4)
    p1sum(156)
    for r in range(4): rnd(GB+r,156+r)
    for r in range(4): I(f"v_mov_b32 v{GB+4+r}, v{GB+r}")
    for r in range(4): I(f"v_permlane32_swap_b32 v{GB+r}, v{GB+4+r}")
    H=GB+8; Tt=GB+12
    unpack2(H,H+1,XR); unpack2(H+2,H+3,XR+1)
    for r in range(4): I(f"v_sub_f32 v{H+r}, v{H+r}, v{MB}")
    for r in range(4): I(f"v_add_f32 v{Tt+r}, 1.0, v{GB+4+r}")
    for r in range(4): rnd(H+r,H+r)
    for r in range(4): rnd(Tt+r,Tt+r)
    for r in range(4): I(f"v_mul_f32 v{H+r}, v{H+r}, v{INV}")
    for r in range(4): rnd(H+r,H+r)
    for r in range(4): I(f"v_mul_f32 v{H+r}, v{H+r}, v{Tt+r}")
    for r in range(4): rnd(H+r,H+r)
    for r in range(4): I(f"v_add_f32 v{H+r}, v{H+r}, v{GB+r}")
    for r in range(4): dup(H+r,H+r)
    I(f"ds_write_b128 v164, {vr(H)} offset:{TL2}")
    I("s_waitcnt lgkmcnt(0)")
    matvec18(TILE,AV,A0,A1,ACC,TL2)
    I("v_lshlrev_b32 v4, 5, v3"); I("v_lshl_add_u32 v4, v2, 4, v4")
    setexec(0xffffffff,0)
    I(f"buffer_store_dwordx4 {vr(ACC)}, v4, s[44:47], s85 offen offset:{P2} sc1")
    fullexec()
    stamp(5)
    nr=L("nored")
    I("s_sub_u32 s13, 6, s6"); I("s_lshl_b32 s13, s13, 4"); I("s_add_u32 s13, s13, s5"); I("s_cmp_lt_u32 s13, 18"); I(f"s_cbranch_scc0 {nr}")
    I("s_add_u32 s7, s13, 9"); I(f"s_mul_i32 s7, s7, {8*STRIDE}")
    I("v_and_b32 v4, 1, v1"); I("v_lshrrev_b32 v5, 1, v1"); I("v_lshl_add_u32 v4, v4, 4, v5"); I("v_lshl_add_u32 v4, v4, 4, s7")
    setexec(0xffffffff,0)
    poll(p1loads(), tags=p1tags, name="b", tmp=160)
    p1sum(156)
    for r in range(4): rnd(156+r,156+r)
    I("s_lshl_b32 s7, s13, 9"); I(f"s_add_u32 s7, s7, {P1BA:#x}")
    I(f"buffer_store_dwordx4 v[156:159], v164, s[44:47], s7 offen sc1")
    fullexec()
    a.label(nr)
    I("v_lshrrev_b32 v4, 5, v1"); I("s_lshl_b32 s7, s5, 4"); I("v_add_u32 v4, s7, v4"); I("v_mul_u32_u24 v4, s86, v4")
    I("v_and_b32 v5, 31, v1"); I("v_lshl_add_u32 v4, v5, 4, v4")
    I("v_lshlrev_b32 v158, 7, v1"); I("v_mov_b32 v159, s95"); I(f"s_mov_b32 s12, {GCLR_OFF:#x}")
    so=soffs(8,2*STRIDE)
    sleep(sl2)
    poll([f"buffer_load_dwordx4 {vr(GB+4*k)}, v4, s[44:47], {so[k]} offen offset:{P2} sc1" for k in range(8)]+
         ["s_mov_b32 exec_lo, 0xffff","s_mov_b32 exec_hi, 0","buffer_load_dword v159, v158, s[44:47], s12 offen sc1","s_mov_b64 exec, -1"],
         sent=list(range(GB,GB+32)), tags=[159], name="q", tmp=160)
    for k in (0,2,4,6):
        for r in range(4): I(f"v_add_f32 v{GB+4*k+r}, v{GB+4*k+r}, v{GB+4*k+4+r}")
    for k in (0,4):
        for r in range(4): I(f"v_add_f32 v{GB+4*k+r}, v{GB+4*k+r}, v{GB+4*k+8+r}")
    for r in range(4): I(f"v_add_f32 v{GB+r}, v{GB+r}, v{GB+16+r}")
    I(f"v_cvt_pk_bf16_f32 v{GB+4}, v{GB}, v{GB+1}"); I(f"v_cvt_pk_bf16_f32 v{GB+5}, v{GB+2}, v{GB+3}")
    I("v_lshlrev_b32 v4, 3, v1")
    I(f"ds_write_b64 v4, v[{GB+4}:{GB+5}] offset:{QL}")
    I("s_waitcnt lgkmcnt(0)")
    a.label("L_skipchain")
    stamp(6)
    dstamp(2)
    I("s_barrier")
    code_touch(8)
    I("s_mov_b32 s72, 0xffff0000"); I("s_mov_b32 s73, 0"); I("s_mov_b32 s74, 0"); I("s_mov_b32 s75, 0xffff"); I("s_mov_b32 s76, 0"); I("s_mov_b32 s77, 0xffff0000")
    I("s_barrier")
    I("v_lshlrev_b32 v152, 4, v1"); I("v_mov_b32 v4, 0")
    I(f"ds_read_b128 {vr(80)}, v4 offset:{WMAX}"); I(f"ds_read_b128 {vr(84)}, v4 offset:{WMAX+16}")
    I(f"ds_read_b128 {vr(88)}, v4 offset:{WMAX+32}"); I(f"ds_read_b128 {vr(92)}, v4 offset:{WMAX+48}")
    I("s_waitcnt lgkmcnt(0)")
    R=96
    for h in range(2):
        b=80+8*h
        I(f"v_max3_f32 v{R+2*h}, v{b}, v{b+1}, v{b+2}"); I(f"v_max3_f32 v{R+2*h}, v{R+2*h}, v{b+3}, v{b+4}")
        I(f"v_max3_f32 v{R+2*h}, v{R+2*h}, v{b+5}, v{b+6}"); I(f"v_max_f32 v{R+2*h}, v{R+2*h}, v{b+7}")
    I("s_barrier")
    I(f"ds_read_b64 v[100:101], v4 offset:{LSUM}")
    I("s_waitcnt lgkmcnt(0)")
    I(f"v_mov_b32 v{R+1}, v100"); I(f"v_mov_b32 v{R+3}, v101")
    setexec(0xff,0)
    I(f"buffer_store_dwordx4 {vr(R)}, v152, s[44:47], s85 offen offset:{ML} sc1")
    fullexec()
    I("s_barrier")
    stamp(7)
    O=104
    for k in range(8): I(f"ds_read_b128 {vr(O+4*k)}, v152 offset:{OBUF+1024*k}")
    for k in (0,2,4,6):
        I(f"s_waitcnt lgkmcnt({6-k})")
        for r in range(4): I(f"v_add_f32 v{O+4*k+r}, v{O+4*k+r}, v{O+4*k+4+r}")
    for k in (0,4):
        for r in range(4): I(f"v_add_f32 v{O+4*k+r}, v{O+4*k+r}, v{O+4*k+8+r}")
    for r in range(4): I(f"v_add_f32 v{O+r}, v{O+r}, v{O+16+r}")
    I(f"buffer_store_dwordx4 {vr(O)}, v152, s[44:47], s85 offen offset:{P3} sc1")
    stamp(8)
    dstamp(5)
    if notail: finish()
    I("s_cmp_eq_u32 s81, 2"); I("s_cbranch_scc1 L_mlp_tail")
    I("s_cmp_eq_u32 s81, 1"); cw=L("cwo"); I(f"s_cbranch_scc1 {cw}")
    finish()
    a.label(cw)
    a.C("wo role control: canary on the 16 ML lines, compute normalised split weights")
    I("s_lshl_b32 s7, s5, 4"); I("v_add_u32 v4, s7, v1"); I("v_mul_u32_u24 v4, s86, v4")
    setexec(0xffff,0)
    poll([f"buffer_load_dwordx4 {vr(80)}, v4, s[44:47], 0 offen offset:{ML} sc1"], sent=[80,81,82,83], name="ml", tmp=84)
    I("s_cmp_eq_u32 s6, 0"); nf=L("nof4"); I(f"s_cbranch_scc0 {nf}")
    fullexec()
    I("v_mov_b32 v5, s95"); I("v_lshlrev_b32 v6, 2, v1"); I("s_lshl_b32 s7, s5, 7"); I(f"s_add_u32 s7, s7, {F4A:#x}")
    setexec(0xffffffff,0)
    I("buffer_store_dword v5, v6, s[44:47], s7 offen sc1")
    setexec(0xffff,0)
    a.label(nf)
    I("v_mov_b32 v84, v80"); I("v_mov_b32 v85, v82")
    for k in (8,4,2,1): ror("v_max_f32",[84,85],k)
    I("v_sub_f32 v80, v80, v84"); I("v_sub_f32 v82, v82, v85")
    I(f"v_mul_f32 v80, {LOG2E:#x}, v80"); I(f"v_mul_f32 v82, {LOG2E:#x}, v82")
    I("v_exp_f32 v80, v80"); I("v_exp_f32 v82, v82")
    I("v_mul_f32 v84, v80, v81"); I("v_mul_f32 v85, v82, v83")
    for k in (8,4,2,1): ror("v_add_f32",[84,85],k)
    I("v_rcp_f32 v84, v84"); I("v_rcp_f32 v85, v85")
    I("v_mul_f32 v80, v80, v84"); I("v_mul_f32 v82, v82, v85")
    I("v_lshlrev_b32 v4, 2, v1")
    I(f"ds_write_b32 v4, v80 offset:{WGT}"); I(f"ds_write_b32 v4, v82 offset:{WGT+64}")
    I("s_waitcnt lgkmcnt(0)")
    fullexec()
    I("s_barrier")
    finish()
    a.label("L_end")
    I("s_endpgm")

    body=a.finish()
    out=HEADER
    out+=f"; @launch grid=(256,1,1) block=(704,1,1) lds={LDS_BYTES}\n"
    out+='.amdgcn_target "amdgcn-amd-amdhsa--gfx950"\n.text\n'
    out+=f".globl {NAME}_kernel\n.p2align 8\n.type {NAME}_kernel,@function\n"
    out+=body
    out+=f""".section .rodata,"a"
.p2align 6
.amdhsa_kernel {NAME}_kernel
  .amdhsa_next_free_vgpr 168
  .amdhsa_next_free_sgpr 100
  .amdhsa_accum_offset 168
  .amdhsa_group_segment_fixed_size 0
  .amdhsa_float_denorm_mode_32 3
  .amdhsa_kernarg_size 104
  .amdhsa_user_sgpr_count 2
  .amdhsa_user_sgpr_kernarg_segment_ptr 1
  .amdhsa_system_sgpr_workgroup_id_x 1
.end_amdhsa_kernel
"""
    return out

if __name__=="__main__":
    import argparse
    p=argparse.ArgumentParser()
    p.add_argument("-o",default="cdna_kernels/"+NAME+".s")
    p.add_argument("--W",type=int,default=4); p.add_argument("--Wwo",type=int,default=5)
    p.add_argument("--ld",default=""); p.add_argument("--wf",default=""); p.add_argument("--stamps",action="store_true")
    p.add_argument("--sl1",type=int,default=140); p.add_argument("--sl2",type=int,default=40); p.add_argument("--norot",action="store_true"); p.add_argument("--woearly",action="store_true"); p.add_argument("--W2",type=int,default=4); p.add_argument("--Ww",type=int,default=3); p.add_argument("--psleep",type=int,default=0); p.add_argument("--nowt",action="store_true"); p.add_argument("--notail",action="store_true"); p.add_argument("--gate",type=int,default=1); p.add_argument("--notlbw",action="store_true"); p.add_argument("--notiles",action="store_true"); p.add_argument("--nochain",action="store_true"); p.add_argument("--noclear",action="store_true"); p.add_argument("--noB0",action="store_true"); p.add_argument("--dbg",action="store_true"); p.add_argument("--pad",type=int,default=0)
    x=p.parse_args()
    open(x.o,"w").write(gen(W=x.W,Wwo=x.Wwo,ldflag=x.ld,wflag=x.wf,stamps=x.stamps,sl1=x.sl1,sl2=x.sl2,rot=not x.norot,wolate=not x.woearly,W2=x.W2,Ww=x.Ww,psleep=x.psleep,nowt=x.nowt,notail=x.notail,gate=x.gate,tlbw=not x.notlbw,notiles=x.notiles,nochain=x.nochain,noclear=x.noclear,noB0=x.noB0,dbg=x.dbg,pad=x.pad))
```

```python
import sys
from asmlib import Asm

NAME="adaLN_cond__gqa_block_cached__dense_activation_silu__decode"
STRIDE=5888
P1,P2,P3,ML,P4,P1B,FL,P5=0,1024,1536,2560,2688,2944,3456,3584
QL,TL,WMAX,WSUM,STAT,OBUF,SCR,RED,TL2=0,512,1536,1600,1664,2048,10240,12544,14848
LDS_BYTES=16384
CLRF=1792
CODE_SLICE=3072
SPIN=200000
LOG2E=0x3fb8aa3b
SCALE=0x3db504f3
EPS=0x3727c5ac
INV576=0x3ae38e39
STAMP_OFF=0x400000
FLAG_OFF=0x170000
EPOCH_OFF=0x171000
WS_SIZE=0x172000
HASH_A=0x9E3779B1
HASH_C=0x7F4A7C15

HEADER=open("cdna_kernels/"+NAME+".s.ref").read().split("; Override launch")[0]

def gen(W=4, VK=8, ldflag="", wflag="", stamps=False, B0=False, dry=True, nochain=False, notiles=False, noclear=False, rot=False, sl1=0, sl2=0, pvfirst=False, pad=0, ldsb=16384):
    a=Asm(); I=a.I
    uid=[0]
    def L(p):
        uid[0]+=1; return f"L_{p}_{uid[0]}"
    def vr(b,n=4): return f"v[{b}:{b+n-1}]"
    def rnd(d,s): I(f"v_cvt_pk_bf16_f32 v{d}, 0, v{s}")
    def dup(d,s): I(f"v_cvt_pk_bf16_f32 v{d}, v{s}, v{s}")
    def expand(A,val):
        for r in range(4): I(f"v_cndmask_b32 v{A+r}, 0, v{val}, s[{72+2*r}:{73+2*r}]")
    def ror(op,regs,k):
        for v in regs: I(f"{op}_dpp v{v}, v{v}, v{v} row_ror:{k} row_mask:0xf bank_mask:0xf")
    def xswap(op,regs,tmp,which):
        for v,t in zip(regs,tmp): I(f"v_mov_b32 v{t}, v{v}")
        for v,t in zip(regs,tmp): I(f"v_permlane{which}_swap_b32 v{v}, v{t}")
        for v,t in zip(regs,tmp): I(f"{op} v{v}, v{v}, v{t}")
    STV=7
    def stamp(i):
        if stamps:
            I(f"s_memrealtime s[96:97]"); I("s_waitcnt lgkmcnt(0)")
            I(f"v_writelane_b32 v{STV}, s96, {i}")
    def finish():
        if stamps:
            I("s_mov_b64 exec, -1")
            stamp(15)
            I("s_mul_i32 s7, s4, 11"); I("s_add_u32 s7, s7, s3"); I("s_lshl_b32 s7, s7, 8"); I(f"s_add_u32 s7, s7, {STAMP_OFF}")
            I("s_add_u32 s8, s40, s7"); I("s_addc_u32 s9, s41, 0")
            I("v_lshlrev_b32 v4, 2, v1")
            I(f"global_store_dword v4, v{STV}, s[8:9]")
        I("s_endpgm")
    def isz(t):
        t0=t.split()[0]
        if t0.startswith(("buffer_","global_","ds_")): return 8
        if "0x" in t or any(tok.strip(",").isdigit() and int(tok.strip(","))>64 for tok in t.split()[1:]): return 8
        return 4
    def guarded(lst):
        grp=[];sz=0
        def flush():
            nonlocal grp,sz
            if not grp: return
            if dry:
                sk=L("g"); I(f"s_cbranch_execz {sk}")
                for t in grp: I(t)
                a.label(sk)
            else:
                for t in grp: I(t)
            grp=[];sz=0
        for t in lst:
            z=isz(t)
            if sz+z>56: flush()
            grp.append(t); sz+=z
        flush()
    def barrier(): guarded(["s_barrier"])
    def poll(loads, regs, name, tmp):
        lo=L("poll"+name); dn=L("pd"+name)
        I("s_mov_b32 s80, 0")
        a.label(lo)
        guarded(loads)
        I("s_waitcnt vmcnt(0)")
        regs=list(regs); i=0; cur=None
        if len(regs)==1: cur=regs[0]
        else:
            while i<len(regs):
                if cur is None:
                    if len(regs)-i>=3: I(f"v_max3_u32 v{tmp}, v{regs[i]}, v{regs[i+1]}, v{regs[i+2]}"); i+=3
                    else: I(f"v_max_u32 v{tmp}, v{regs[i]}, v{regs[i+1]}"); i+=2
                    cur=tmp
                else:
                    if len(regs)-i>=2: I(f"v_max3_u32 v{tmp}, v{tmp}, v{regs[i]}, v{regs[i+1]}"); i+=2
                    else: I(f"v_max_u32 v{tmp}, v{tmp}, v{regs[i]}"); i+=1
        I(f"v_cmp_eq_u32 vcc, -1, v{cur}")
        I(f"s_cbranch_vccz {dn}")
        I("s_add_u32 s80, s80, 1"); I(f"s_cmp_lt_u32 s80, {SPIN}"); I(f"s_cbranch_scc1 {lo}")
        a.label(dn)
    def poll_tag(loads, tagregs, name, tmp):
        lo=L("poll"+name); dn=L("pd"+name)
        I("s_mov_b32 s80, 0")
        a.label(lo)
        guarded(loads)
        I("s_waitcnt vmcnt(0)")
        I(f"v_xor_b32 v{tmp}, s95, v{tagregs[0]}")
        for r in tagregs[1:]: I(f"v_xad_u32 v{tmp}, v{r}, s95, v{tmp}")
        I(f"v_cmp_ne_u32 vcc, 0, v{tmp}")
        I(f"s_cbranch_vccz {dn}")
        I("s_add_u32 s80, s80, 1"); I(f"s_cmp_lt_u32 s80, {SPIN}"); I(f"s_cbranch_scc1 {lo}")
        a.label(dn)
    def setexec(lo,hi):
        I(f"s_and_b32 exec_lo, s98, {lo:#x}")
        if hi==0: I("s_mov_b32 exec_hi, 0")
        else: I(f"s_and_b32 exec_hi, s99, {hi:#x}")
    def fullexec(): I("s_mov_b64 exec, s[98:99]")
    def srd(dst, base, off, size):
        if off is None:
            I(f"s_mov_b32 s{dst}, s{base}"); I(f"s_mov_b32 s{dst+1}, s{base+1}")
        else:
            I(f"s_add_u32 s{dst}, s{base}, s{off}"); I(f"s_addc_u32 s{dst+1}, s{base+1}, 0")
        I(f"s_mov_b32 s{dst+2}, {size}"); I(f"s_mov_b32 s{dst+3}, 0x20000")
    def srd_rem(dst, base, off, total):
        I(f"s_add_u32 s{dst}, s{base}, s{off}"); I(f"s_addc_u32 s{dst+1}, s{base+1}, 0")
        I(f"s_sub_u32 s{dst+2}, {total}, s{off}"); I(f"s_mov_b32 s{dst+3}, 0x20000")
    def halves_add(D,tmp):
        for r in range(4): I(f"v_mov_b32 v{tmp+r}, v{D+r}")
        for r in range(4): I(f"v_permlane32_swap_b32 v{D+r}, v{tmp+r}")
        for r in range(4): I(f"v_add_f32_dpp v{D+r}, v{tmp+r}, v{D+r} row_ror:8 row_mask:0xf bank_mask:0xf")
    def silu(vs,ts):
        for v,t in zip(vs,ts): I(f"v_mul_f32 v{t}, 0xbfb8aa3b, v{v}")
        for v,t in zip(vs,ts): I(f"v_exp_f32 v{t}, v{t}")
        for v,t in zip(vs,ts): I(f"v_add_f32 v{t}, 1.0, v{t}")
        for v,t in zip(vs,ts): I(f"v_rcp_f32 v{t}, v{t}")
        for v,t in zip(vs,ts): I(f"v_mul_f32 v{v}, v{v}, v{t}")
    def ln_stats(S,S2,mean_b,inv):
        I(f"v_mul_f32 v{S}, {INV576:#x}, v{S}")
        I(f"v_mul_f32 v{S2}, {INV576:#x}, v{S2}")
        I(f"v_fma_f32 v{S2}, -v{S}, v{S}, v{S2}")
        I(f"v_max_f32 v{S2}, 0, v{S2}")
        rnd(mean_b,S)
        rnd(S2,S2)
        I(f"v_add_f32 v{S2}, {EPS:#x}, v{S2}")
        rnd(S2,S2)
        I(f"v_sqrt_f32 v{S2}, v{S2}")
        rnd(S2,S2)
        I(f"v_rcp_f32 v{inv}, v{S2}")
    def unpack2(d0,d1,s):
        I(f"v_and_b32 v{d1}, 0xffff0000, v{s}")
        I(f"v_lshlrev_b32 v{d0}, 16, v{s}")
    def modulate(x4, mean_b, inv, ca4, sa4, t4):
        for r in range(4): I(f"v_sub_f32 v{x4+r}, v{x4+r}, v{mean_b}")
        for r in range(4): rnd(x4+r,x4+r)
        for r in range(4): I(f"v_mul_f32 v{x4+r}, v{x4+r}, v{inv}")
        for r in range(4): rnd(x4+r,x4+r)
        for r in range(4): I(f"v_add_f32 v{t4+r}, 1.0, v{ca4+r}")
        for r in range(4): rnd(t4+r,t4+r)
        for r in range(4): I(f"v_mul_f32 v{x4+r}, v{x4+r}, v{t4+r}")
        for r in range(4): rnd(x4+r,x4+r)
        for r in range(4): I(f"v_add_f32 v{x4+r}, v{x4+r}, v{sa4+r}")
    def consts():
        for r,m in enumerate((0x03030303,0x0c0c0c0c,0x30303030,0xc0c0c0c0)):
            I(f"s_mov_b32 s{72+2*r}, {m:#x}"); I(f"s_mov_b32 s{73+2*r}, {m:#x}")
        I("v_and_b32 v6, 1, v1"); I("v_cmp_eq_u32 vcc, 1, v6")
        I("v_mov_b32 v6, 0xffff"); I("v_mov_b32 v4, 0xffff0000"); I("v_cndmask_b32 v6, v6, v4, vcc")
        I("s_sub_u32 s82, s6, 9"); I("s_lshl_b32 s82, s82, 4"); I("s_add_u32 s82, s82, s5")
        I("s_cmp_lt_u32 s82, 72"); I("s_cselect_b32 s81, 2, 0")
        I("s_cmp_lt_u32 s6, 9"); I("s_cselect_b32 s81, 1, s81")
        srd(44,40,None,WS_SIZE)
        I(f"s_mul_i32 s85, s4, {STRIDE}")
        I(f"s_mov_b32 s86, {STRIDE}")
    def rho(dst,tmp):
        I(f"v_lshrrev_b32 v{dst}, 3, v3"); I(f"v_lshl_add_u32 v{dst}, v{dst}, 2, v2")
    def mlp_prefetch():
        rho(4,None)
        I("v_and_b32 v5, 7, v3"); I("v_lshlrev_b32 v5, 4, v5")
        I("s_movk_i32 s7, 0x2400"); I("v_mad_u32_u24 v152, v4, s7, v5")
        I("s_movk_i32 s7, 0x480"); I("v_mad_u32_u24 v153, v4, s7, v5")
        I("s_mul_i32 s7, s3, 589824"); I("s_lshl_b32 s8, s82, 7"); I("s_add_u32 s7, s7, s8")
        srd_rem(56,28,7,5308416)
        I("s_mul_i32 s7, s82, 73728"); I("s_lshl_b32 s8, s3, 7"); I("s_add_u32 s7, s7, s8")
        srd_rem(60,30,7,5308416)
        l=[]
        for i in range(8):
            l+=[f"s_mov_b32 s84, {i*73728:#x}", f"buffer_load_dwordx4 {vr(8+4*i)}, v152, s[56:59], s84 offen {wflag}"]
        for i in range(8):
            l+=[f"s_mov_b32 s84, {i*9216:#x}", f"buffer_load_dwordx4 {vr(40+4*i)}, v153, s[60:63], s84 offen {wflag}"]
        guarded(l)
    def wo_prefetch():
        rho(4,None)
        I("v_and_b32 v5, 7, v3"); I("v_lshlrev_b32 v5, 4, v5")
        I("s_movk_i32 s7, 0x480"); I("v_mad_u32_u24 v153, v4, s7, v5")
        I("s_lshl_b32 s7, s5, 8"); I("s_lshl_b32 s8, s83, 5"); I("s_add_u32 s7, s7, s8"); I("s_mul_i32 s7, s7, 1152")
        I("s_lshl_b32 s8, s6, 7"); I("s_add_u32 s7, s7, s8")
        srd_rem(56,24,7,4718592)
        l=[]
        for i in range(4):
            l+=[f"s_mov_b32 s84, {i*9216:#x}", f"buffer_load_dwordx4 {vr(8+4*i)}, v153, s[56:59], s84 offen {wflag}"]
        guarded(l)
    def matvec(tile, nt, vals, A0, A1, acc):
        for i in range(nt):
            A = A0 if i%2==0 else A1
            expand(A, vals+i)
            src = "0" if i==0 else vr(acc)
            I(f"v_mfma_f32_16x16x32_bf16 {vr(acc)}, {vr(A)}, {vr(tile+4*i)}, {src}")

    a.raw(f"{NAME}_kernel:")
    I("s_cmp_ge_u32 s2, 256"); I("s_cbranch_scc1 L_end")
    I("s_load_dwordx16 s[16:31], s[0:1], 0")
    I("s_load_dwordx8 s[32:39], s[0:1], 64")
    I("s_load_dwordx2 s[40:41], s[0:1], 96")
    I("v_lshrrev_b32 v4, 6, v0")
    I("v_and_b32 v1, 63, v0")
    I("v_readfirstlane_b32 s3, v4")
    I("v_lshrrev_b32 v2, 4, v1")
    I("v_and_b32 v3, 15, v1")
    I("s_and_b32 s5, s2, 7"); I("s_lshl_b32 s5, s5, 1"); I("s_bfe_u32 s7, s2, 0x10003"); I("s_or_b32 s5, s5, s7")
    I("s_lshr_b32 s6, s2, 4")
    I("s_lshl_b32 s4, s5, 4"); I("s_or_b32 s4, s4, s6")
    I("s_mov_b32 s68, 4096"); I("s_mov_b32 s69, 8192"); I("s_mov_b32 s70, 12288")
    if stamps: I("v_mov_b32 v7, 0")
    I("s_mov_b64 s[98:99], -1")
    I("s_cmp_eq_u32 s3, 0"); I("s_cbranch_scc1 L_ctrl")
    I("s_cmp_eq_u32 s3, 9"); I("s_cbranch_scc1 L_jan")
    I("s_cmp_eq_u32 s3, 10"); I("s_cbranch_scc1 L_warm")

    a.C("================ worker waves (1..8) ================")
    KB,VB,SB,TB=8,72,136,152
    I("s_sub_u32 s83, s3, 1")
    I("v_lshlrev_b32 v4, 8, v3"); I("v_lshl_add_u32 v4, v2, 4, v4")
    I("v_lshlrev_b32 v5, 10, v2"); I("v_lshl_add_u32 v5, v3, 4, v5")
    I("s_lshl_b32 s7, s4, 17"); I("s_lshl_b32 s8, s83, 14"); I("s_add_u32 s7, s7, s8")
    I("s_waitcnt lgkmcnt(0)")
    stamp(0)
    srd(48,18,7,16384); srd(52,20,7,16384)
    I("s_barrier")
    if rot:
        I("s_add_u32 s10, s4, s83")
        for t in range(4):
            I(f"s_add_u32 s11, s10, {t}"); I("s_and_b32 s11, s11, 3"); I(f"s_lshl_b32 s{68+t}, s11, 12")
        soff=["s68","s69","s70","s71"]
    else:
        soff=["0","s68","s69","s70"]
    n=[0]
    def win():
        n[0]+=1
        if n[0]>=W: I(f"s_waitcnt vmcnt({W-1})")
    for t in range(4):
        for c in range(4):
            I(f"buffer_load_dwordx4 {vr(KB+(4*t+c)*4)}, v4, s[48:51], {soff[t]} offen offset:{c*64} {ldflag}")
            win()
    def vload_s(idx):
        t,r=divmod(idx,4)
        return f"buffer_load_dwordx4 {vr(VB+idx*4)}, v5, s[52:55], {soff[t]} offen offset:{r*256} {ldflag}"
    def vload(idx): I(vload_s(idx))
    for idx in range(VK):
        vload(idx); win()
    consts()
    stamp(1)
    a.label("L_w_B1")
    barrier()
    stamp(2)
    I("v_lshrrev_b32 v4, 3, v3"); I("v_lshlrev_b32 v4, 8, v4"); I("v_lshl_add_u32 v4, v2, 4, v4")
    for c in range(4): I(f"ds_read_b128 {vr(TB+4*c)}, v4 offset:{QL+c*64}")
    I(f"s_waitcnt vmcnt({VK})")
    I("s_waitcnt lgkmcnt(0)")
    for c in range(4):
        for t in range(4):
            src = "0" if c==0 else vr(SB+4*t)
            I(f"v_mfma_f32_16x16x32_bf16 {vr(SB+4*t)}, {vr(KB+(4*t+c)*4)}, {vr(TB+4*c)}, {src}")
    a.C("scores -> bf16 -> scale -> bf16")
    for i in range(16): rnd(SB+i,SB+i)
    for i in range(16): I(f"v_mul_f32 v{SB+i}, {SCALE:#x}, v{SB+i}")
    for i in range(16): rnd(SB+i,SB+i)
    T=TB
    I(f"v_max3_f32 v{T}, v{SB}, v{SB+1}, v{SB+2}")
    I(f"v_max3_f32 v{T+1}, v{SB+3}, v{SB+4}, v{SB+5}")
    I(f"v_max3_f32 v{T}, v{T}, v{SB+6}, v{SB+7}")
    I(f"v_max3_f32 v{T+1}, v{T+1}, v{SB+8}, v{SB+9}")
    I(f"v_max3_f32 v{T}, v{T}, v{SB+10}, v{SB+11}")
    I(f"v_max3_f32 v{T+1}, v{T+1}, v{SB+12}, v{SB+13}")
    I(f"v_max3_f32 v{T}, v{T}, v{SB+14}, v{SB+15}")
    I(f"v_max_f32 v{T}, v{T}, v{T+1}")
    xswap("v_max_f32",[T],[T+1],16); xswap("v_max_f32",[T],[T+1],32)
    I(f"v_lshrrev_b32 v{T+3}, 3, v3"); I(f"v_lshlrev_b32 v{T+3}, 5, v{T+3}")
    I("s_lshl_b32 s7, s83, 2"); I(f"v_add_u32 v{T+2}, s7, v{T+3}")
    I(f"ds_write_b32 v{T+2}, v{T} offset:{WMAX}")
    I("s_waitcnt lgkmcnt(0)")
    barrier()
    I(f"ds_read_b128 {vr(T+4)}, v{T+3} offset:{WMAX}")
    I(f"ds_read_b128 {vr(T+8)}, v{T+3} offset:{WMAX+16}")
    I("s_waitcnt lgkmcnt(0)")
    I(f"v_max3_f32 v{T}, v{T+4}, v{T+5}, v{T+6}")
    I(f"v_max3_f32 v{T+1}, v{T+7}, v{T+8}, v{T+9}")
    I(f"v_max3_f32 v{T}, v{T}, v{T+10}, v{T+11}")
    I(f"v_max_f32 v{T}, v{T}, v{T+1}")
    I(f"v_mul_f32 v{T}, 0xbfb8aa3b, v{T}")
    I(f"s_mov_b32 s7, {LOG2E:#x}")
    for i in range(16): I(f"v_fma_f32 v{SB+i}, v{SB+i}, s7, v{T}")
    for i in range(16): I(f"v_exp_f32 v{SB+i}, v{SB+i}")
    I(f"v_add_f32 v{T}, v{SB}, v{SB+1}"); I(f"v_add_f32 v{T+1}, v{SB+2}, v{SB+3}")
    for i in range(4,16,2):
        I(f"v_add_f32 v{T}, v{T}, v{SB+i}"); I(f"v_add_f32 v{T+1}, v{T+1}, v{SB+i+1}")
    I(f"v_add_f32 v{T}, v{T}, v{T+1}")
    for i in range(16): dup(SB+i,SB+i)
    xswap("v_add_f32",[T],[T+1],16); xswap("v_add_f32",[T],[T+1],32)
    for i in range(16): I(f"v_and_b32 v{SB+i}, v{SB+i}, v6")
    I(f"ds_write_b32 v{T+2}, v{T} offset:{WSUM}")
    stamp(3)
    guarded([vload_s(idx) for idx in range(VK,16)])
    I("s_cmp_eq_u32 s81, 1"); I("s_cbranch_scc1 L_w_wo")
    I("s_cmp_eq_u32 s81, 2"); I("s_cbranch_scc1 L_w_mlp")

    def softmax_pv(nW, pf=None):
        T=TB
        if pvfirst: nW=0
        elif pf: pf()
        ACC=T+12; A0,A1=T+4,T+8
        for idx in range(16):
            A=A0 if idx%2==0 else A1
            expand(A,SB+idx)
            I(f"s_waitcnt vmcnt({15-idx+nW})")
            src="0" if idx==0 else vr(ACC)
            I(f"v_mfma_f32_16x16x32_bf16 {vr(ACC)}, {vr(A)}, {vr(VB+4*idx)}, {src}")
        I(f"v_lshrrev_b32 v4, 1, v2"); I("v_lshlrev_b32 v4, 9, v4"); I("v_lshl_add_u32 v4, v3, 5, v4")
        I("v_and_b32 v5, 1, v2"); I("v_lshl_add_u32 v4, v5, 4, v4")
        I("s_lshl_b32 s7, s83, 10"); I("v_add_u32 v4, s7, v4")
        I(f"ds_write_b128 v4, {vr(ACC)} offset:{OBUF}")
        I("s_waitcnt lgkmcnt(0)")
        stamp(4)
        barrier()
        if pvfirst and pf: pf()

    softmax_pv(0)
    finish()

    a.label("L_w_wo")
    softmax_pv(4, wo_prefetch)
    a.C("wo tail: gather 16 partial o (32 dims of this wave) + (m,l)")
    O1,O2,M1,M2,T=72,76,80,82,88
    I("v_lshrrev_b32 v4, 3, v1")
    I("s_lshl_b32 s7, s5, 4"); I("v_add_u32 v4, s7, v4")
    I("v_mul_u32_u24 v4, s86, v4")
    I("v_and_b32 v5, 7, v1"); I("v_lshlrev_b32 v5, 4, v5")
    I("s_lshl_b32 s7, s83, 7"); I("v_add3_u32 v84, v4, v5, s7")
    I("s_lshr_b32 s7, s83, 2"); I("s_lshl_b32 s7, s7, 3"); I("v_add_u32 v85, s7, v4")
    I(f"s_mov_b32 s84, {8*STRIDE}")
    poll([f"buffer_load_dwordx2 v[{M1}:{M1+1}], v85, s[44:47], 0 offen offset:{ML} sc1",
          f"buffer_load_dwordx2 v[{M2}:{M2+1}], v85, s[44:47], s84 offen offset:{ML} sc1",
          f"buffer_load_dwordx4 {vr(O1)}, v84, s[44:47], 0 offen offset:{P3} sc1",
          f"buffer_load_dwordx4 {vr(O2)}, v84, s[44:47], s84 offen offset:{P3} sc1"],
         list(range(72,84)), "o", 86)
    stamp(5)
    I(f"v_max_f32 v{T}, v{M1}, v{M2}")
    ror("v_max_f32",[T],8); xswap("v_max_f32",[T],[T+1],16); xswap("v_max_f32",[T],[T+1],32)
    I(f"v_sub_f32 v{M1}, v{M1}, v{T}"); I(f"v_sub_f32 v{M2}, v{M2}, v{T}")
    I(f"v_mul_f32 v{M1}, {LOG2E:#x}, v{M1}"); I(f"v_mul_f32 v{M2}, {LOG2E:#x}, v{M2}")
    I(f"v_exp_f32 v{M1}, v{M1}"); I(f"v_exp_f32 v{M2}, v{M2}")
    I(f"v_mul_f32 v{T+4}, v{M1}, v{M1+1}"); I(f"v_fmac_f32 v{T+4}, v{M2}, v{M2+1}")
    for r in range(4): I(f"v_mul_f32 v{T+r}, v{M1}, v{O1+r}")
    for r in range(4): I(f"v_fmac_f32 v{T+r}, v{M2}, v{O2+r}")
    R5=[T,T+1,T+2,T+3,T+4]; Tm=[T+5,T+6,T+7,T+8,T+9]
    ror("v_add_f32",R5,8); xswap("v_add_f32",R5,Tm,16); xswap("v_add_f32",R5,Tm,32)
    I(f"v_rcp_f32 v{T+4}, v{T+4}")
    for r in range(4): I(f"v_mul_f32 v{T+r}, v{T+r}, v{T+4}")
    for r in range(4): dup(T+r,T+r)
    I("s_lshl_b32 s7, s3, 8"); I("v_add_u32 v5, s7, v5")
    I(f"ds_write_b128 v5, {vr(T)} offset:{SCR}")
    rho(4,None); I("v_lshlrev_b32 v4, 2, v4"); I("v_add_u32 v4, s7, v4")
    for i in range(4): I(f"ds_read_b32 v{T+10+i}, v4 offset:{SCR+32*i}")
    I("s_waitcnt lgkmcnt(0)")
    for i in range(4): I(f"v_and_b32 v{T+10+i}, v{T+10+i}, v6")
    ACC=T+24
    matvec(8,4,T+10,T+16,T+20,ACC)
    halves_add(ACC,T+16)
    I("v_lshlrev_b32 v4, 5, v3"); I("v_lshl_add_u32 v4, v2, 4, v4"); I("s_lshl_b32 s7, s83, 8"); I("v_add_u32 v4, s7, v4")
    setexec(0x00ff00ff,0)
    I(f"ds_write_b128 v4, {vr(ACC)} offset:{RED}")
    fullexec()
    I("s_waitcnt lgkmcnt(0)")
    barrier()
    I("s_cmp_eq_u32 s83, 0"); sk=L("wo_done"); I(f"s_cbranch_scc0 {sk}")
    I("v_lshlrev_b32 v4, 2, v1")
    for i in range(8): I(f"ds_read_b32 v{T+i}, v4 offset:{RED+256*i}")
    I("s_waitcnt lgkmcnt(0)")
    I(f"v_add_f32 v{T}, v{T}, v{T+1}"); I(f"v_add_f32 v{T+2}, v{T+2}, v{T+3}"); I(f"v_add_f32 v{T+4}, v{T+4}, v{T+5}"); I(f"v_add_f32 v{T+6}, v{T+6}, v{T+7}")
    I(f"v_add_f32 v{T}, v{T}, v{T+2}"); I(f"v_add_f32 v{T+4}, v{T+4}, v{T+6}"); I(f"v_add_f32 v{T}, v{T}, v{T+4}")
    guarded([f"buffer_store_dword v{T}, v4, s[44:47], s85 offen offset:{P4} sc1"])
    stamp(6)
    a.label(sk)
    finish()

    a.label("L_w_mlp")
    softmax_pv(16, mlp_prefetch)
    a.label("L_mlp_tail")
    a.C("mlp tail (9 waves): gather attn partials + mod vectors + x")
    G=72
    GA,SBv,CBv,GBv,XV=88,92,96,100,104
    T=112
    I("v_lshlrev_b32 v4, 4, v2")
    I("v_add_u32 v4, s3, v4")
    I("v_mul_u32_u24 v4, s86, v4")
    I("v_lshl_add_u32 v106, v3, 4, v4")
    I("s_lshl_b32 s7, s3, 6"); I("v_lshl_add_u32 v5, v3, 2, s7")
    for k,base in enumerate((1152,1728,2304,2880)):
        I(f"v_add_u32 v4, {base}, v5")
        I(f"v_lshrrev_b32 v{107+k}, 7, v4"); I(f"v_add_u32 v{107+k}, {216-9}, v{107+k}")
        I(f"v_mul_u32_u24 v{107+k}, s86, v{107+k}")
        I("v_and_b32 v4, 127, v4"); I(f"v_lshl_add_u32 v{107+k}, v4, 2, v{107+k}")
    I("v_lshlrev_b32 v111, 1, v5")
    srd(64,16,None,1152)
    guarded([f"buffer_load_dwordx2 v[{XV}:{XV+1}], v111, s[64:67], 0 offen"])
    lds_=[]
    for k in range(4):
        lds_.append(f"buffer_load_dwordx4 {vr(GA+4*k)}, v{107+k}, s[44:47], 0 offen offset:{P1B} sc1")
    I(f"s_mov_b32 s88, {64*STRIDE}"); I(f"s_mov_b32 s89, {128*STRIDE}"); I(f"s_mov_b32 s90, {192*STRIDE}")
    for k,so in enumerate(("0","s88","s89","s90")):
        lds_.append(f"buffer_load_dwordx4 {vr(G+4*k)}, v106, s[44:47], {so} offen offset:{P4} sc1")
    poll(lds_, list(range(72,104)), "x", T)
    stamp(9)
    for r in range(4): I(f"v_add_f32 v{G+r}, v{G+r}, v{G+4+r}")
    for r in range(4): I(f"v_add_f32 v{G+8+r}, v{G+8+r}, v{G+12+r}")
    for r in range(4): I(f"v_add_f32 v{G+r}, v{G+r}, v{G+8+r}")
    R4=[G,G+1,G+2,G+3]; Tm=[G+4,G+5,G+6,G+7]
    xswap("v_add_f32",R4,Tm,16); xswap("v_add_f32",R4,Tm,32)
    X1=G+8
    unpack2(X1,X1+1,XV); unpack2(X1+2,X1+3,XV+1)
    for r in range(4): rnd(G+r,G+r)
    for r in range(4): I(f"v_mul_f32 v{G+r}, v{G+r}, v{GA+r}")
    for r in range(4): rnd(G+r,G+r)
    for r in range(4): I(f"v_add_f32 v{X1+r}, v{X1+r}, v{G+r}")
    for r in range(4): rnd(X1+r,X1+r)
    S,S2=T,T+1
    I(f"v_add_f32 v{S}, v{X1}, v{X1+1}"); I(f"v_mul_f32 v{S2}, v{X1}, v{X1}")
    I(f"v_add_f32 v{S}, v{S}, v{X1+2}"); I(f"v_fmac_f32 v{S2}, v{X1+1}, v{X1+1}")
    I(f"v_add_f32 v{S}, v{S}, v{X1+3}"); I(f"v_fmac_f32 v{S2}, v{X1+2}, v{X1+2}")
    I(f"v_fmac_f32 v{S2}, v{X1+3}, v{X1+3}")
    for k in (8,4,2,1): ror("v_add_f32",[S,S2],k)
    I("s_lshl_b32 s7, s3, 3"); I("v_mov_b32 v4, s7")
    I(f"ds_write_b64 v4, v[{S}:{S+1}] offset:{STAT}")
    I("s_waitcnt lgkmcnt(0)")
    barrier()
    I("v_mov_b32 v4, 0")
    for i in range(4): I(f"ds_read_b128 {vr(T+4+4*i)}, v4 offset:{STAT+16*i}")
    I(f"ds_read_b64 v[{T+20}:{T+21}], v4 offset:{STAT+64}")
    I("s_waitcnt lgkmcnt(0)")
    I(f"v_add_f32 v{S}, v{T+4}, v{T+6}"); I(f"v_add_f32 v{S2}, v{T+5}, v{T+7}")
    for i in range(2,9):
        I(f"v_add_f32 v{S}, v{S}, v{T+4+2*i}"); I(f"v_add_f32 v{S2}, v{S2}, v{T+5+2*i}")
    ln_stats(S,S2,T+2,T+3)
    H=G
    for r in range(4): I(f"v_mov_b32 v{H+r}, v{X1+r}")
    modulate(H,T+2,T+3,CBv,SBv,T+4)
    for r in range(4): dup(H+r,H+r)
    I("s_lshl_b32 s7, s3, 8"); I("v_lshl_add_u32 v5, v3, 4, s7")
    I(f"ds_write_b128 v5, {vr(H)} offset:{SCR}")
    rho(4,None); I("v_lshlrev_b32 v4, 2, v4"); I("v_add_u32 v110, s7, v4")
    for i in range(8): I(f"ds_read_b32 v{T+4+i}, v110 offset:{SCR+32*i}")
    I("s_waitcnt lgkmcnt(0)")
    for i in range(8): I(f"v_and_b32 v{T+4+i}, v{T+4+i}, v6")
    ACC=T+20
    matvec(8,8,T+4,T+12,T+16,ACC)
    halves_add(ACC,T+12)
    I("v_lshlrev_b32 v109, 5, v3"); I("v_lshl_add_u32 v109, v2, 4, v109")
    I("v_add_u32 v4, s7, v109")
    setexec(0x00ff00ff,0)
    I(f"ds_write_b128 v4, {vr(ACC)} offset:{RED}")
    fullexec()
    I("s_waitcnt lgkmcnt(0)")
    barrier()
    I("v_lshlrev_b32 v4, 2, v1")
    for i in range(9): I(f"ds_read_b32 v{T+4+i}, v4 offset:{RED+256*i}")
    I("s_waitcnt lgkmcnt(0)")
    Y=T+4
    I(f"v_add_f32 v{Y}, v{Y}, v{Y+1}"); I(f"v_add_f32 v{Y+2}, v{Y+2}, v{Y+3}"); I(f"v_add_f32 v{Y+4}, v{Y+4}, v{Y+5}"); I(f"v_add_f32 v{Y+6}, v{Y+6}, v{Y+7}")
    I(f"v_add_f32 v{Y}, v{Y}, v{Y+2}"); I(f"v_add_f32 v{Y+4}, v{Y+4}, v{Y+6}"); I(f"v_add_f32 v{Y}, v{Y}, v{Y+8}"); I(f"v_add_f32 v{Y}, v{Y}, v{Y+4}")
    rnd(Y,Y)
    silu([Y],[Y+1])
    dup(Y,Y)
    I("v_add_u32 v4, s7, v4")
    I(f"ds_write_b32 v4, v{Y} offset:{SCR}")
    for i in range(8): I(f"ds_read_b32 v{T+4+i}, v110 offset:{SCR+32*i}")
    I("s_waitcnt lgkmcnt(0)")
    for i in range(8): I(f"v_and_b32 v{T+4+i}, v{T+4+i}, v6")
    matvec(40,8,T+4,T+12,T+16,ACC)
    halves_add(ACC,T+12)
    I("s_lshl_b32 s7, s3, 8"); I("s_add_u32 s7, s7, s85")
    setexec(0x00ff00ff,0)
    guarded([f"buffer_store_dwordx4 {vr(ACC)}, v109, s[44:47], s7 offen offset:{P5} sc1"])
    fullexec()
    stamp(10)
    I("s_cmp_lt_u32 s82, 4"); sk=L("mlp_done"); I(f"s_cbranch_scc0 {sk}")
    a.C("final reducers: u<4, wave wv -> columns 64wv+16u..+16")
    I("v_and_b32 v5, 3, v1"); I("s_lshl_b32 s7, s82, 2"); I("v_add_u32 v4, s7, v5"); I("v_lshlrev_b32 v4, 2, v4")
    for r in range(4): I(f"ds_bpermute_b32 v{T+24+r}, v4, v{X1+r}")
    for r in range(4): I(f"ds_bpermute_b32 v{T+28+r}, v4, v{GBv+r}")
    I("v_lshrrev_b32 v4, 2, v1"); I("v_lshlrev_b32 v4, 4, v4"); I("v_add_u32 v4, 9, v4"); I("v_mul_u32_u24 v4, s86, v4")
    I("s_lshl_b32 s7, s3, 6"); I("s_lshl_b32 s8, s82, 4"); I("s_add_u32 s7, s7, s8")
    I("v_lshl_add_u32 v5, v5, 2, s7")
    I("v_lshl_add_u32 v106, v5, 2, v4")
    I("v_lshlrev_b32 v107, 1, v5")
    F=72
    for r in range(4): I(f"v_mov_b32 v{F+16+r}, 0")
    I(f"s_mov_b32 s88, {2*STRIDE}"); I(f"s_mov_b32 s89, {3*STRIDE}"); I(f"s_mov_b32 s90, {4*STRIDE}")
    lds_=[f"buffer_load_dwordx4 {vr(F+4*k)}, v106, s[44:47], {so} offen offset:{P5} sc1" for k,so in enumerate(("0","s86","s88","s89"))]
    lds_+=["s_mov_b32 exec_hi, 0", f"buffer_load_dwordx4 {vr(F+16)}, v106, s[44:47], s90 offen offset:{P5} sc1", "s_mov_b32 exec_hi, s99"]
    poll(lds_, list(range(F,F+20)), "f", T)
    stamp(11)
    for r in range(4): I(f"v_add_f32 v{F+r}, v{F+r}, v{F+4+r}")
    for r in range(4): I(f"v_add_f32 v{F+8+r}, v{F+8+r}, v{F+12+r}")
    for r in range(4): I(f"v_add_f32 v{F+r}, v{F+r}, v{F+16+r}")
    for r in range(4): I(f"v_add_f32 v{F+r}, v{F+r}, v{F+8+r}")
    R4=[F,F+1,F+2,F+3]; Tm=[F+4,F+5,F+6,F+7]
    ror("v_add_f32",R4,4); ror("v_add_f32",R4,8); xswap("v_add_f32",R4,Tm,16); xswap("v_add_f32",R4,Tm,32)
    I("s_waitcnt lgkmcnt(0)")
    for r in range(4): rnd(F+r,F+r)
    for r in range(4): I(f"v_mul_f32 v{F+r}, v{F+r}, v{T+28+r}")
    for r in range(4): rnd(F+r,F+r)
    for r in range(4): I(f"v_add_f32 v{F+r}, v{F+r}, v{T+24+r}")
    I(f"v_cvt_pk_bf16_f32 v{F+4}, v{F}, v{F+1}"); I(f"v_cvt_pk_bf16_f32 v{F+5}, v{F+2}, v{F+3}")
    srd(64,36,None,1152)
    setexec(0xf,0)
    guarded([f"buffer_store_dwordx2 v[{F+4}:{F+5}], v107, s[64:67], 0 offen"])
    I("s_or_b32 s7, s82, s3"); I("s_cmp_eq_u32 s7, 0"); I(f"s_cbranch_scc0 {sk}")
    if pad:
        pl=L("pad"); a.label(pl)
        I("s_memrealtime s[96:97]"); I("s_waitcnt lgkmcnt(0)"); I("s_sub_u32 s96, s96, s42"); I(f"s_cmp_lt_u32 s96, {pad}"); I(f"s_cbranch_scc1 {pl}")
    I("v_mov_b32 v4, s95"); I(f"v_mov_b32 v5, {EPOCH_OFF:#x}")
    setexec(1,0)
    guarded(["buffer_store_dword v4, v5, s[44:47], 0 offen sc1"])
    a.label(sk)
    finish()

    a.label("L_jan")
    a.C("================ janitor wave (9): mod tile, clears, flag, then I-cache warm-up dry run ================")
    TILE,XF,CV,XR,AV,A0,A1,ACC,GB,T=8,80,88,90,92,110,114,118,122,154
    I("s_setprio 2")
    I("s_waitcnt lgkmcnt(0)")
    stamp(0)
    I(f"s_add_u32 s8, s40, {EPOCH_OFF:#x}"); I("s_addc_u32 s9, s41, 0"); I("s_load_dword s94, s[8:9], 0")
    srd(64,32,None,1152)
    I("s_and_b32 s7, s4, 7"); I("s_mul_i32 s7, s7, 144")
    I("v_lshlrev_b32 v4, 3, v1")
    I(f"buffer_load_dwordx2 v[{CV}:{CV+1}], v4, s[64:67], s7 offen")
    I("s_cmp_lt_u32 s4, 216"); nomod=L("nomod"); I(f"s_cbranch_scc0 {nomod}")
    I("s_and_b32 s7, s4, 7"); I("s_mul_i32 s7, s7, 497664")
    I("s_lshr_b32 s10, s4, 3"); I("s_lshl_b32 s10, s10, 8"); I("s_add_u32 s7, s7, s10")
    srd_rem(52,34,7,3981312)
    I("s_movk_i32 s7, 0x1b00"); I("v_mul_u32_u24 v4, s7, v2"); I("v_lshl_add_u32 v4, v3, 4, v4")
    for i_ in range(0 if notiles else 18):
        I(f"s_mov_b32 s84, {i_*27648}")
        I(f"buffer_load_dwordx4 {vr(TILE+4*i_)}, v4, s[52:55], s84 offen {wflag}")
    a.label(nomod)
    I("s_barrier")
    consts()
    I("v_cmp_gt_u32 vcc, 8, v3"); I("v_cndmask_b32 v162, 0, v6, vcc")
    I("v_lshlrev_b32 v163, 2, v2")
    I("v_lshlrev_b32 v164, 4, v1")
    I("s_waitcnt vmcnt(0) lgkmcnt(0)")
    I(f"s_mul_i32 s95, s94, {HASH_A:#x}"); I(f"s_add_u32 s95, s95, {HASH_C:#x}")
    stamp(1)
    a.label("L_jan_dry")
    for k in range(2): unpack2(T+2*k,T+2*k+1,CV+k)
    silu([T,T+1,T+2,T+3],[T+4,T+5,T+6,T+7])
    for r in range(4): dup(T+r,T+r)
    I(f"ds_write_b128 v164, {vr(T)} offset:{TL}")
    I("s_cmp_lt_u32 s4, 216"); nomod2=L("nomod2"); I(f"s_cbranch_scc0 {nomod2}")
    for i_ in range(18): I(f"ds_read_b32 v{AV+i_}, v163 offset:{TL+16*i_}")
    I("s_waitcnt lgkmcnt(0)")
    for i_ in range(18): I(f"v_and_b32 v{AV+i_}, v{AV+i_}, v162")
    matvec(TILE,18,AV,A0,A1,ACC)
    I(f"v_permlane32_swap_b32 v{ACC}, v{ACC+2}"); I(f"v_permlane32_swap_b32 v{ACC+1}, v{ACC+3}")
    I(f"v_mov_b32 v{A0}, v{ACC}"); I(f"v_mov_b32 v{A0+1}, s95"); I(f"v_mov_b32 v{A0+2}, v{ACC+1}"); I(f"v_mov_b32 v{A0+3}, s95")
    guarded([f"buffer_store_dwordx4 {vr(A0)}, v164, s[44:47], s85 offen offset:{P1} sc1"])
    a.label(nomod2)
    stamp(2)
    if dry: I("s_cbranch_execz L_ctrl_dry")
    finish()

    a.label("L_warm")
    a.C("================ warm wave (10): code prefetch, clears, flag, I-cache dry run ================")
    I("s_getpc_b64 s[8:9]")
    a.label("L_pc")
    I("s_bfe_u32 s7, s2, 0x30003"); I(f"s_mul_i32 s7, s7, {CODE_SLICE}")
    I(f"s_sub_u32 s8, s8, L_pc-{NAME}_kernel"); I("s_subb_u32 s9, s9, 0")
    I("v_lshlrev_b32 v5, 4, v1")
    for k in range(CODE_SLICE//1024):
        I(f"v_add_u32 v4, s7, v5"); I(f"s_add_u32 s7, s7, 0x400")
        I(f"v_min_u32 v4, L_end-{NAME}_kernel-16, v4")
        I(f"global_load_dwordx4 {vr(8+4*k)}, v4, s[8:9]")
    I("s_waitcnt lgkmcnt(0)")
    stamp(0)
    consts()
    I("v_mov_b32 v156, -1"); I("v_mov_b32 v157, -1"); I("v_mov_b32 v158, -1"); I("v_mov_b32 v159, -1")
    if noclear: I("s_branch L_skipclr")
    for k in range(2): I(f"buffer_store_dwordx4 v[156:159], v5, s[44:47], s85 offen offset:{P2+1024*k} sc1")
    setexec(0xffffff,0)
    I(f"buffer_store_dwordx4 v[156:159], v5, s[44:47], s85 offen offset:{P2+2048} sc1")
    fullexec()
    I("s_cmp_eq_u32 s81, 2"); nc=L("noclr"); I(f"s_cbranch_scc0 {nc}")
    I(f"s_add_u32 s7, s85, {P5}")
    for k in range(2): I(f"buffer_store_dwordx4 v[156:159], v5, s[44:47], s7 offen offset:{1024*k} sc1")
    setexec(0xffff,0)
    I(f"buffer_store_dwordx4 v[156:159], v5, s[44:47], s7 offen offset:2048 sc1")
    fullexec()
    a.label(nc)
    a.label("L_skipclr")
    I(f"s_add_u32 s8, s40, {EPOCH_OFF:#x}"); I("s_addc_u32 s9, s41, 0"); I("s_load_dword s94, s[8:9], 0")
    I("s_barrier")
    I("s_waitcnt vmcnt(0) lgkmcnt(0)")
    I(f"s_mul_i32 s95, s94, {HASH_A:#x}"); I(f"s_add_u32 s95, s95, {HASH_C:#x}")
    I("v_mov_b32 v4, s95"); I("v_lshlrev_b32 v5, 2, v1")
    setexec(0xffffffff,0)
    I(f"buffer_store_dword v4, v5, s[44:47], s85 offen offset:{FL} sc1")
    fullexec()
    stamp(1)
    I("s_cmp_eq_u32 s6, 15"); na=L("noagg"); I(f"s_cbranch_scc0 {na}")
    I("s_lshl_b32 s7, s5, 4"); I("v_add_u32 v4, s7, v1"); I("v_mul_u32_u24 v4, s86, v4")
    setexec(0xffff,0)
    poll_tag([f"buffer_load_dword v8, v4, s[44:47], 0 offen offset:{FL} sc1","s_sleep 4"],[8],"agg",9)
    I("v_mov_b32 v4, s95"); I("v_lshlrev_b32 v5, 2, v1"); I(f"s_lshl_b32 s7, s5, 7"); I(f"s_add_u32 s7, s7, {FLAG_OFF:#x}")
    setexec(0xffffffff,0)
    I(f"buffer_store_dword v4, v5, s[44:47], s7 offen sc1")
    fullexec()
    a.label(na)
    if dry:
        I("s_mov_b32 s83, 0"); I("s_mov_b32 s87, 0")
        for r in [84,85,106,107,108,109,110,111,152,153,162,163,164]: I(f"v_mov_b32 v{r}, 0")
        I("s_mov_b64 s[98:99], 0")
        I("s_mov_b64 exec, 0")
        I("s_branch L_jan_dry")
    else:
        finish()

    a.label("L_ctrl")
    if pad: I("s_memrealtime s[42:43]")
    a.C("================ control wave (0) ================")
    I("s_setprio 3")
    I("s_waitcnt lgkmcnt(0)")
    stamp(0)
    I(f"s_add_u32 s8, s40, {EPOCH_OFF:#x}"); I("s_addc_u32 s9, s41, 0"); I("s_load_dword s94, s[8:9], 0")
    srd(48,16,None,1152)
    I("s_lshr_b32 s87, s6, 1"); I("s_mul_i32 s87, s87, 72")
    I("s_lshl_b32 s7, s87, 1")
    I("v_lshlrev_b32 v4, 3, v1")
    I(f"buffer_load_dwordx2 v[{XR}:{XR+1}], v4, s[48:51], s7 offen")
    I("v_lshlrev_b32 v5, 5, v1")
    I(f"buffer_load_dwordx4 {vr(XF)}, v5, s[48:51], 0 offen")
    I(f"buffer_load_dwordx4 {vr(XF+4)}, v5, s[48:51], 0 offen offset:16")
    I("s_lshl_b32 s7, s87, 13"); I("s_lshl_b32 s10, s5, 9"); I("s_add_u32 s7, s7, s10")
    I("s_and_b32 s10, s6, 1"); I("s_lshl_b32 s10, s10, 8"); I("s_add_u32 s7, s7, s10")
    srd_rem(52,22,7,4718592)
    I("v_lshlrev_b32 v4, 13, v2"); I("v_lshl_add_u32 v4, v3, 4, v4")
    for i_ in range(0 if notiles else 18):
        I(f"s_mov_b32 s84, {i_*32768:#x}")
        I(f"buffer_load_dwordx4 {vr(TILE+4*i_)}, v4, s[52:55], s84 offen {wflag}")
    I("s_barrier")
    consts()
    I("v_cmp_gt_u32 vcc, 8, v3"); I("v_cndmask_b32 v162, 0, v6, vcc")
    I("v_lshlrev_b32 v163, 2, v2")
    I("v_lshlrev_b32 v164, 4, v1")
    I("s_waitcnt vmcnt(18) lgkmcnt(0)")
    I(f"s_mul_i32 s95, s94, {HASH_A:#x}"); I(f"s_add_u32 s95, s95, {HASH_C:#x}")
    stamp(1)
    a.label("L_ctrl_dry")
    S,S2=T,T+1
    I(f"v_mov_b32 v{S}, 0"); I(f"v_mov_b32 v{S2}, 0")
    for k in range(8):
        unpack2(T+2,T+3,XF+k)
        I(f"v_add_f32 v{S}, v{S}, v{T+2}"); I(f"v_fmac_f32 v{S2}, v{T+2}, v{T+2}")
        I(f"v_add_f32 v{S}, v{S}, v{T+3}"); I(f"v_fmac_f32 v{S2}, v{T+3}, v{T+3}")
    for k in (8,4,2,1): ror("v_add_f32",[S,S2],k)
    xswap("v_add_f32",[S,S2],[T+2,T+3],16); xswap("v_add_f32",[S,S2],[T+2,T+3],32)
    MB,INV=XF,XF+1
    ln_stats(S,S2,MB,INV)
    if nochain: I("s_branch L_skipchain")
    GA=92
    I("v_and_b32 v4, 31, v1"); I("v_lshl_add_u32 v4, v4, 2, s87")
    I("v_cmp_lt_u32 vcc, 31, v1"); I("v_mov_b32 v5, 576"); I("v_cndmask_b32 v5, 0, v5, vcc"); I("v_add_u32 v4, v4, v5")
    I("v_lshrrev_b32 v5, 7, v4"); I("v_lshlrev_b32 v5, 3, v5"); I("v_mul_u32_u24 v5, s86, v5")
    I("v_bfe_u32 v156, v4, 3, 4"); I("v_bfe_u32 v157, v4, 2, 1"); I("v_lshl_add_u32 v156, v157, 4, v156")
    I("v_lshl_add_u32 v4, v156, 4, v5")
    I("s_lshl_b32 s7, s5, 4"); I("v_add_u32 v158, s7, v1"); I("v_mul_u32_u24 v158, s86, v158")
    I("v_mov_b32 v159, s95")
    def soffs(n,step,base=88):
        res=["0"]
        for k in range(1,n):
            I(f"s_mov_b32 s{base+k-1}, {k*step}"); res.append(f"s{base+k-1}")
        return res
    so=soffs(8,STRIDE)
    def p1loads():
        l=[]
        for k in range(8):
            l.append(f"buffer_load_dwordx4 {vr(GA+8*k)}, v4, s[44:47], {so[k]} offen offset:{P1} sc1")
            l.append(f"buffer_load_dwordx4 {vr(GA+8*k+4)}, v4, s[44:47], {so[k]} offen offset:{P1+512} sc1")
        return l
    p1tags=[GA+8*k+o for k in range(8) for o in (1,3,5,7)]
    def p1sum(D):
        for r,o in enumerate((0,2,4,6)):
            I(f"v_add_f32 v{D+r}, v{GA+o}, v{GA+8+o}")
        for k in range(2,8):
            for r,o in enumerate((0,2,4,6)): I(f"v_add_f32 v{D+r}, v{D+r}, v{GA+8*k+o}")
    for _ in range(sl1//100): I("s_sleep 100")
    if sl1%100: I(f"s_sleep {sl1%100}")
    setexec(0x3ffff,0x3ffff)
    poll_tag(p1loads()+["s_and_b32 exec_lo, s98, 0xffff","s_mov_b32 exec_hi, 0",f"buffer_load_dword v159, v158, s[44:47], 0 offen offset:{FL} sc1","s_and_b32 exec_lo, s98, 0x3ffff","s_and_b32 exec_hi, s99, 0x3ffff"], p1tags+[159], "m", 160)
    fullexec()
    stamp(4)
    def sum8(G):
        for k in (0,2,4,6):
            for r in range(4): I(f"v_add_f32 v{G+4*k+r}, v{G+4*k+r}, v{G+4*k+4+r}")
        for k in (0,4):
            for r in range(4): I(f"v_add_f32 v{G+4*k+r}, v{G+4*k+r}, v{G+4*k+8+r}")
        for r in range(4): I(f"v_add_f32 v{G+r}, v{G+r}, v{G+16+r}")
    p1sum(156)
    for r in range(4): rnd(GB+r,156+r)
    for r in range(4): I(f"v_mov_b32 v{GB+4+r}, v{GB+r}")
    for r in range(4): I(f"v_permlane32_swap_b32 v{GB+r}, v{GB+4+r}")
    H=GB+8
    unpack2(H,H+1,XR); unpack2(H+2,H+3,XR+1)
    modulate(H,MB,INV,GB+4,GB,GB+12)
    for r in range(4): dup(H+r,H+r)
    I(f"ds_write_b128 v164, {vr(H)} offset:{TL2}")
    for i in range(18): I(f"ds_read_b32 v{AV+i}, v163 offset:{TL2+16*i}")
    I("s_waitcnt lgkmcnt(0)")
    for i in range(18): I(f"v_and_b32 v{AV+i}, v{AV+i}, v162")
    matvec(TILE,18,AV,A0,A1,ACC)
    I("v_lshlrev_b32 v4, 5, v3"); I("v_lshl_add_u32 v4, v2, 4, v4")
    setexec(0xffffffff,0)
    guarded([f"buffer_store_dwordx4 {vr(ACC)}, v4, s[44:47], s85 offen offset:{P2} sc1"])
    fullexec()
    stamp(5)
    I("s_sub_u32 s7, s4, 216"); I("s_cmp_lt_u32 s7, 18"); nr=L("nored"); I(f"s_cbranch_scc0 {nr}")
    I("s_add_u32 s7, s7, 9"); I(f"s_mul_i32 s7, s7, {8*STRIDE}")
    I("v_and_b32 v4, 1, v1"); I("v_lshrrev_b32 v5, 1, v1"); I("v_lshl_add_u32 v4, v4, 4, v5"); I("v_lshl_add_u32 v4, v4, 4, s7")
    setexec(0xffffffff,0)
    poll_tag(p1loads(), p1tags, "b", 160)
    p1sum(156)
    for r in range(4): rnd(156+r,156+r)
    guarded([f"buffer_store_dwordx4 v[156:159], v164, s[44:47], s85 offen offset:{P1B} sc1"])
    fullexec()
    a.label(nr)
    I("v_lshrrev_b32 v4, 5, v1"); I("s_lshl_b32 s7, s5, 4"); I("v_add_u32 v4, s7, v4"); I("v_mul_u32_u24 v4, s86, v4")
    I("v_and_b32 v5, 31, v1"); I("v_lshl_add_u32 v4, v5, 4, v4")
    so=soffs(8,2*STRIDE)
    if sl2: I(f"s_sleep {sl2}")
    poll([f"buffer_load_dwordx4 {vr(GB+4*k)}, v4, s[44:47], {so[k]} offen offset:{P2} sc1" for k in range(8)], list(range(GB,GB+32)), "q", T)
    sum8(GB)
    I(f"v_cvt_pk_bf16_f32 v{GB+4}, v{GB}, v{GB+1}"); I(f"v_cvt_pk_bf16_f32 v{GB+5}, v{GB+2}, v{GB+3}")
    I("v_lshlrev_b32 v4, 3, v1")
    I(f"ds_write_b64 v4, v[{GB+4}:{GB+5}] offset:{QL}")
    I("s_waitcnt lgkmcnt(0)")
    a.label("L_skipchain")
    stamp(6)
    barrier()
    I("s_cmp_eq_u32 s81, 2"); nm=L("nomlp"); I(f"s_cbranch_scc0 {nm}")
    mlp_prefetch()
    a.label(nm)
    barrier()
    I("v_lshlrev_b32 v4, 7, v1"); I(f"s_mov_b32 s7, {FLAG_OFF:#x}")
    setexec(0xffff,0)
    poll_tag([f"buffer_load_dword v72, v4, s[44:47], s7 offen sc1"],[72],"gc",73)
    fullexec()
    I("v_lshlrev_b32 v152, 4, v1")
    stamp(2)
    barrier()
    stamp(7)
    O=72
    for k in range(8): I(f"ds_read_b128 {vr(O+4*k)}, v152 offset:{OBUF+1024*k}")
    I("v_mov_b32 v4, 0")
    for k in range(4): I(f"ds_read_b128 {vr(O+32+4*k)}, v4 offset:{WMAX+16*k}")
    for k in range(4): I(f"ds_read_b128 {vr(O+48+4*k)}, v4 offset:{WSUM+16*k}")
    I("s_waitcnt lgkmcnt(8)")
    sum8(O)
    guarded([f"buffer_store_dwordx4 {vr(O)}, v152, s[44:47], s85 offen offset:{P3} sc1"])
    I("s_waitcnt lgkmcnt(0)")
    M=O+32; Sx=O+48; R=O+64
    for h in range(2):
        b=M+8*h
        I(f"v_max3_f32 v{R+2*h}, v{b}, v{b+1}, v{b+2}"); I(f"v_max3_f32 v{R+2*h}, v{R+2*h}, v{b+3}, v{b+4}")
        I(f"v_max3_f32 v{R+2*h}, v{R+2*h}, v{b+5}, v{b+6}"); I(f"v_max_f32 v{R+2*h}, v{R+2*h}, v{b+7}")
        b=Sx+8*h
        I(f"v_add_f32 v{b}, v{b}, v{b+1}"); I(f"v_add_f32 v{b+2}, v{b+2}, v{b+3}"); I(f"v_add_f32 v{b+4}, v{b+4}, v{b+5}"); I(f"v_add_f32 v{b+6}, v{b+6}, v{b+7}")
        I(f"v_add_f32 v{b}, v{b}, v{b+2}"); I(f"v_add_f32 v{b+4}, v{b+4}, v{b+6}"); I(f"v_add_f32 v{R+2*h+1}, v{b}, v{b+4}")
    I("v_mov_b32 v4, 0")
    setexec(1,0)
    guarded([f"buffer_store_dwordx4 {vr(R)}, v4, s[44:47], s85 offen offset:{ML} sc1"])
    fullexec()
    stamp(8)
    if dry: I("s_cbranch_execz L_w_B1")
    I("s_cmp_eq_u32 s81, 2"); I("s_cbranch_scc1 L_mlp_tail")
    finish()
    a.label("L_end")
    I("s_endpgm")

    body=a.finish()
    out=HEADER
    out+=f"; @launch grid=(256,1,1) block=(704,1,1) lds={ldsb}\n"
    out+='.amdgcn_target "amdgcn-amd-amdhsa--gfx950"\n.text\n'
    out+=f".globl {NAME}_kernel\n.p2align 8\n.type {NAME}_kernel,@function\n"
    out+=body
    out+=f""".section .rodata,"a"
.p2align 6
.amdhsa_kernel {NAME}_kernel
  .amdhsa_next_free_vgpr 168
  .amdhsa_next_free_sgpr 100
  .amdhsa_accum_offset 168
  .amdhsa_group_segment_fixed_size 0
  .amdhsa_float_denorm_mode_32 3
  .amdhsa_kernarg_size 104
  .amdhsa_user_sgpr_count 2
  .amdhsa_user_sgpr_kernarg_segment_ptr 1
  .amdhsa_system_sgpr_workgroup_id_x 1
.end_amdhsa_kernel
"""
    return out

if __name__=="__main__":
    import argparse
    p=argparse.ArgumentParser()
    p.add_argument("-o",default="cdna_kernels/"+NAME+".s")
    p.add_argument("--W",type=int,default=4); p.add_argument("--VK",type=int,default=8)
    p.add_argument("--B0",action="store_true"); p.add_argument("--nochain",action="store_true"); p.add_argument("--notiles",action="store_true"); p.add_argument("--noclear",action="store_true"); p.add_argument("--rot",action="store_true"); p.add_argument("--sl1",type=int,default=0); p.add_argument("--sl2",type=int,default=0); p.add_argument("--pvfirst",action="store_true"); p.add_argument("--pad",type=int,default=0); p.add_argument("--ldsb",type=int,default=16384); p.add_argument("--nodry",action="store_true")
    p.add_argument("--ld",default=""); p.add_argument("--wf",default=""); p.add_argument("--stamps",action="store_true")
    x=p.parse_args()
    open(x.o,"w").write(gen(W=x.W,VK=x.VK,ldflag=x.ld,wflag=x.wf,stamps=x.stamps,B0=x.B0,dry=not x.nodry,nochain=x.nochain,notiles=x.notiles,noclear=x.noclear,rot=x.rot,sl1=x.sl1,sl2=x.sl2,pvfirst=x.pvfirst,pad=x.pad,ldsb=x.ldsb))
```

```python
from asmlib import Asm

NAME="adaLN_cond__gqa_block_cached__dense_activation_silu__decode"
STRIDE=2816
P1,P2,P3,ML,FL=0,1024,1536,2560,2688
P4A,P5A,P1BA,F4A=0xB0000,0xBA000,0x10B000,0x10D400
GCLR_OFF=0x10E000; EPOCH_OFF=0x10F000; WS_SIZE=0x110000
QL,TL,TL2,WMAX,LSUM,STAT,WGT,RED,SCR,OBUF,WAREA=0,512,1536,2560,2624,2632,2688,2816,7424,12032,20224
WOA=WAREA
LDS_BYTES=WAREA+9*8192
SPIN=200000
LOG2E=0x3fb8aa3b
SCALE=0x3db504f3
EPS=0x3727c5ac
INV576=0x3ae38e39
STAMP_OFF=0x400000
HASH_A=0x9E3779B1; HASH_C=0x7F4A7C15
CODE_SLICE=2048
HEADER=open("cdna_kernels/"+NAME+".s.ref").read().split("; Override launch")[0]

def gen(W=4, Wwo=5, ldflag="", wflag="", stamps=False, sl1=140, sl2=40, rot=True, wolate=True, W2=4, Ww=3, psleep=0, nowt=False, notail=False, gate=1, tlbw=True, notiles=False, nochain=False, noclear=False, noB0=False, dbg=False, pad=0):
    a=Asm(); I=a.I
    uid=[0]
    def L(p):
        uid[0]+=1; return f"L_{p}_{uid[0]}"
    def vr(b,n=4): return f"v[{b}:{b+n-1}]"
    def rnd(d,s): I(f"v_cvt_pk_bf16_f32 v{d}, 0, v{s}")
    def dup(d,s): I(f"v_cvt_pk_bf16_f32 v{d}, v{s}, v{s}")
    def dpp(op,d,s0,s1,ctl): I(f"{op}_dpp v{d}, v{s0}, v{s1} {ctl} row_mask:0xf bank_mask:0xf")
    def ror(op,regs,k):
        for v in regs: dpp(op,v,v,v,f"row_ror:{k}")
    def xswap(op,regs,tmp,which):
        for v,t in zip(regs,tmp): I(f"v_mov_b32 v{t}, v{v}")
        for v,t in zip(regs,tmp): I(f"v_permlane{which}_swap_b32 v{v}, v{t}")
        for v,t in zip(regs,tmp): I(f"{op} v{v}, v{v}, v{t}")
    STV=7
    _I=I
    def I(t):
        if nowt and " lds" in t and "buffer_load" in t: return
        _I(t)
    DBGMAP={}
    def dstamp(slot, inv=False, only=None, wg=7):
        if not dbg or inv: return
        sk=L("ds")
        I(f"s_cmp_eq_u32 s4, {wg}"); I(f"s_cbranch_scc0 {sk}")
        if only is not None:
            I(f"s_cmp_eq_u32 s3, {only}"); I(f"s_cbranch_scc0 {sk}")
        I("s_memrealtime s[96:97]"); I("s_waitcnt lgkmcnt(0)")
        I("s_mov_b64 s[92:93], exec"); I("s_mov_b64 exec, 1")
        I("v_mov_b32 v7, s96"); I(f"v_mov_b32 v0, {slot*4}")
        I("global_store_dword v0, v7, s[38:39]")
        I("s_mov_b64 exec, s[92:93]")
        a.label(sk)
    def stamp(i):
        if dbg and i in DBGMAP: dstamp(*DBGMAP[i])
        if stamps:
            I("s_memrealtime s[96:97]"); I("s_waitcnt lgkmcnt(0)")
            I(f"v_writelane_b32 v{STV}, s96, {i}")
    def finish():
        if stamps:
            I("s_mov_b64 exec, -1")
            stamp(15)
            I("s_mul_i32 s7, s4, 11"); I("s_add_u32 s7, s7, s3"); I("s_lshl_b32 s7, s7, 8"); I(f"s_add_u32 s7, s7, {STAMP_OFF}")
            I("s_add_u32 s8, s40, s7"); I("s_addc_u32 s9, s41, 0")
            I("v_lshlrev_b32 v8, 2, v1")
            I(f"global_store_dword v8, v{STV}, s[8:9]")
        I("s_endpgm")
    def spin_tail(lo,dn):
        I(f"s_cbranch_vccz {dn}")
        if psleep: I(f"s_sleep {psleep}")
        I("s_add_u32 s80, s80, 1"); I(f"s_cmp_lt_u32 s80, {SPIN}"); I(f"s_cbranch_scc1 {lo}")
        a.label(dn)
    def check_sent(regs,tmp):
        regs=list(regs); i=0; cur=None
        if len(regs)==1: cur=regs[0]
        else:
            while i<len(regs):
                if cur is None:
                    if len(regs)-i>=3: I(f"v_max3_u32 v{tmp}, v{regs[i]}, v{regs[i+1]}, v{regs[i+2]}"); i+=3
                    else: I(f"v_max_u32 v{tmp}, v{regs[i]}, v{regs[i+1]}"); i+=2
                    cur=tmp
                else:
                    if len(regs)-i>=2: I(f"v_max3_u32 v{tmp}, v{tmp}, v{regs[i]}, v{regs[i+1]}"); i+=2
                    else: I(f"v_max_u32 v{tmp}, v{tmp}, v{regs[i]}"); i+=1
        I(f"v_cmp_eq_u32 vcc, -1, v{cur}")
    def check_tags(tagregs,tmp,first=True):
        for k,r in enumerate(tagregs):
            if k==0 and first: I(f"v_xor_b32 v{tmp}, s95, v{r}")
            else: I(f"v_xad_u32 v{tmp}, v{r}, s95, v{tmp}")
    def poll(loads, sent=(), tags=(), name="p", tmp=0, mid=None):
        lo=L("poll"+name); dn=L("pd"+name)
        I("s_mov_b32 s80, 0")
        a.label(lo)
        for t in loads: I(t)
        I("s_waitcnt vmcnt(0)")
        if mid: mid()
        if sent and tags:
            check_tags(tags,tmp+1)
            check_sent(sent,tmp)
            I(f"v_cmp_ne_u32 s[10:11], 0, v{tmp+1}")
            I("s_or_b64 vcc, vcc, s[10:11]")
        elif tags:
            check_tags(tags,tmp); I(f"v_cmp_ne_u32 vcc, 0, v{tmp}")
        else:
            check_sent(sent,tmp)
        spin_tail(lo,dn)
    def setexec(lo,hi):
        I(f"s_mov_b32 exec_lo, {lo:#x}"); I(f"s_mov_b32 exec_hi, {hi:#x}")
    def fullexec(): I("s_mov_b64 exec, -1")
    def srd(dst, base, off, size):
        if off is None:
            I(f"s_mov_b32 s{dst}, s{base}"); I(f"s_mov_b32 s{dst+1}, s{base+1}")
        else:
            I(f"s_add_u32 s{dst}, s{base}, s{off}"); I(f"s_addc_u32 s{dst+1}, s{base+1}, 0")
        I(f"s_mov_b32 s{dst+2}, {size}"); I(f"s_mov_b32 s{dst+3}, 0x20000")
    def srd_rem(dst, base, off, total):
        I(f"s_add_u32 s{dst}, s{base}, s{off}"); I(f"s_addc_u32 s{dst+1}, s{base+1}, 0")
        I(f"s_sub_u32 s{dst+2}, {total}, s{off}"); I(f"s_mov_b32 s{dst+3}, 0x20000")
    def silu(vs,ts):
        for v,t in zip(vs,ts): I(f"v_mul_f32 v{t}, 0xbfb8aa3b, v{v}")
        for v,t in zip(vs,ts): I(f"v_exp_f32 v{t}, v{t}")
        for v,t in zip(vs,ts): I(f"v_add_f32 v{t}, 1.0, v{t}")
        for v,t in zip(vs,ts): I(f"v_rcp_f32 v{t}, v{t}")
        for v,t in zip(vs,ts): I(f"v_mul_f32 v{v}, v{v}, v{t}")
    def ln_stats(S,S2,mean_b,inv):
        I(f"v_mul_f32 v{S}, {INV576:#x}, v{S}")
        I(f"v_mul_f32 v{S2}, {INV576:#x}, v{S2}")
        I(f"v_fma_f32 v{S2}, -v{S}, v{S}, v{S2}")
        rnd(mean_b,S)
        I(f"v_max_f32 v{S2}, 0, v{S2}")
        rnd(S2,S2)
        I(f"v_add_f32 v{S2}, {EPS:#x}, v{S2}")
        rnd(S2,S2)
        I(f"v_sqrt_f32 v{S2}, v{S2}")
        rnd(S2,S2)
        I(f"v_rcp_f32 v{inv}, v{S2}")
    def unpack2(d0,d1,s):
        I(f"v_and_b32 v{d1}, 0xffff0000, v{s}")
        I(f"v_lshlrev_b32 v{d0}, 16, v{s}")
    def roles():
        I("s_mul_i32 s14, s5, 6"); I("s_add_u32 s14, s14, s6")
        I("s_mul_i32 s82, s5, 9"); I("s_add_u32 s82, s82, s6"); I("s_sub_u32 s82, s82, 7")
        I("s_cmp_lt_u32 s6, 6"); I("s_cselect_b32 s81, 1, 0")
        I("s_cmp_ge_u32 s6, 7"); I("s_cselect_b32 s81, 2, s81")
    def ws_setup():
        srd(44,40,None,WS_SIZE)
        I(f"s_mul_i32 s85, s4, {STRIDE}")
        I(f"s_movk_i32 s86, {STRIDE}")
    def tag():
        I(f"s_mul_i32 s95, s94, {HASH_A:#x}"); I(f"s_add_u32 s95, s95, {HASH_C:#x}")
    def epoch_load():
        I(f"s_add_u32 s8, s40, {EPOCH_OFF:#x}"); I("s_addc_u32 s9, s41, 0"); I("s_load_dword s94, s[8:9], 0")
    def diag_consts():
        for r,m in enumerate((0x03030303,0x0c0c0c0c,0x30303030,0xc0c0c0c0)):
            I(f"s_mov_b32 s{72+2*r}, {m:#x}"); I(f"s_mov_b32 s{73+2*r}, {m:#x}")
        I("v_and_b32 v162, 1, v1"); I("v_cmp_eq_u32 vcc, 1, v162")
        I("v_mov_b32 v162, 0xffff"); I("v_mov_b32 v163, 0xffff0000"); I("v_cndmask_b32 v162, v162, v163, vcc")
        I("v_cmp_gt_u32 vcc, 8, v3"); I("v_cndmask_b32 v162, 0, v162, vcc")
        I("v_lshlrev_b32 v163, 2, v2"); I("v_lshlrev_b32 v164, 4, v1")
    def matvec18(tile, AV, A0, A1, acc, tl):
        for i in range(18): I(f"ds_read_b32 v{AV+i}, v163 offset:{tl+16*i}")
        for i in range(18):
            if i in (0,6,12): I(f"s_waitcnt lgkmcnt({12-i if i<12 else 0})")
            A = A0 if i%2==0 else A1
            I(f"v_and_b32 v{AV+i}, v{AV+i}, v162")
            for r in range(4): I(f"v_cndmask_b32 v{A+r}, 0, v{AV+i}, s[{72+2*r}:{73+2*r}]")
            src = "0" if i==0 else vr(acc)
            I(f"v_mfma_f32_16x16x32_bf16 {vr(acc)}, {vr(A)}, {vr(tile+4*i)}, {src}")
    def code_touch(dst):
        I("s_getpc_b64 s[8:9]")
        lb=L("pc"); a.label(lb)
        I("s_bfe_u32 s7, s2, 0x30003"); I(f"s_mul_i32 s7, s7, {CODE_SLICE}")
        I(f"s_sub_u32 s8, s8, {lb}-{NAME}_kernel"); I("s_subb_u32 s9, s9, 0")
        I(f"v_lshlrev_b32 v{dst}, 4, v1")
        for k in range(CODE_SLICE//1024):
            I(f"v_add_u32 v{dst+1}, s7, v{dst}"); I(f"s_add_u32 s7, s7, 0x400")
            I(f"v_min_u32 v{dst+1}, L_end-{NAME}_kernel-16, v{dst+1}")
            I(f"global_load_dwordx4 {vr(dst+4+4*k)}, v{dst+1}, s[8:9]")

    a.raw(f"{NAME}_kernel:")
    I("s_cmp_ge_u32 s2, 256"); I("s_cbranch_scc1 L_end")
    I("s_load_dwordx16 s[16:31], s[0:1], 0")
    I("s_load_dwordx8 s[32:39], s[0:1], 64")
    I("s_load_dwordx2 s[40:41], s[0:1], 96")
    I("v_lshrrev_b32 v4, 6, v0")
    I("v_and_b32 v1, 63, v0")
    I("v_readfirstlane_b32 s3, v4")
    I("v_lshrrev_b32 v2, 4, v1")
    I("v_and_b32 v3, 15, v1")
    I("s_and_b32 s5, s2, 7"); I("s_lshl_b32 s5, s5, 1"); I("s_bfe_u32 s7, s2, 0x10003"); I("s_or_b32 s5, s5, s7")
    I("s_lshr_b32 s6, s2, 4")
    I("s_lshl_b32 s4, s5, 4"); I("s_or_b32 s4, s4, s6")
    if stamps: I("v_mov_b32 v7, 0")
    roles()
    I("s_cmp_eq_u32 s3, 0"); I("s_cbranch_scc1 L_ctrl")
    I("s_cmp_eq_u32 s3, 9"); I("s_cbranch_scc1 L_mod")
    I("s_cmp_eq_u32 s3, 10"); I("s_cbranch_scc1 L_clean")

    a.C("================ worker waves (1..8) ================")
    KB,VB,SB,TB=8,72,136,152
    I("s_sub_u32 s83, s3, 1")
    I("v_lshlrev_b32 v4, 8, v3"); I("v_lshl_add_u32 v4, v2, 4, v4")
    I("v_lshlrev_b32 v5, 10, v2"); I("v_lshl_add_u32 v5, v3, 4, v5")
    I("s_lshl_b32 s7, s4, 17"); I("s_lshl_b32 s8, s83, 14"); I("s_add_u32 s7, s7, s8")
    if rot:
        I("s_add_u32 s10, s4, s83")
        for t in range(4):
            I(f"s_add_u32 s11, s10, {t}"); I("s_and_b32 s11, s11, 3"); I(f"s_lshl_b32 s{68+t}, s11, 12")
    else:
        for t in range(4): I(f"s_mov_b32 s{68+t}, {t*4096}")
    soff=["s68","s69","s70","s71"]
    I("s_cmp_eq_u32 s81, 1"); nw_=L("dw1"); dd_=L("dwd"); I(f"s_cbranch_scc0 {nw_}")
    I("s_lshl_b32 s12, s5, 8"); I("s_lshl_b32 s13, s83, 5"); I("s_add_u32 s12, s12, s13"); I("s_mul_i32 s12, s12, 1152")
    I("s_mul_i32 s13, s6, 192"); I("s_add_u32 s12, s12, s13")
    I("s_mul_i32 s13, s83, 6144"); I(f"s_add_u32 s13, s13, {WAREA}"); I("s_mov_b32 s79, 0")
    I("s_movk_i32 s10, 0x1556"); I("s_movk_i32 s11, 0x480")
    for i_ in range(3):
        I(f"v_add_u32 v0, {64*i_}, v1"); I("v_mul_u32_u24 v6, s10, v0"); I("v_lshrrev_b32 v6, 16, v6")
        I("v_mul_u32_u24 v164, 12, v6"); I("v_sub_u32 v0, v0, v164")
        I("v_mul_u32_u24 v6, s11, v6"); I(f"v_lshl_add_u32 v{165+i_}, v0, 4, v6")
    I("s_mov_b32 s88, 0"); I("s_mov_b32 s89, 0"); I("s_mov_b32 s90, 0"); I("s_movk_i32 s91, 0x4800"); I("s_movk_i32 s92, 0x4800"); I("s_movk_i32 s93, 0x4800")
    I(f"s_branch {dd_}")
    a.label(nw_)
    I("s_mul_i32 s12, s3, 589824"); I("s_lshl_b32 s13, s82, 6"); I("s_add_u32 s12, s12, s13")
    I("s_mul_i32 s79, s82, 36864"); I("s_lshl_b32 s13, s3, 7"); I("s_add_u32 s79, s79, s13")
    I("s_lshl_b32 s13, s3, 13"); I(f"s_add_u32 s13, s13, {WAREA}")
    I("v_lshrrev_b32 v165, 2, v1"); I("s_movk_i32 s10, 0x2400"); I("v_mul_u32_u24 v165, s10, v165"); I("v_and_b32 v0, 3, v1"); I("v_lshl_add_u32 v165, v0, 4, v165")
    I("v_mov_b32 v166, v165")
    I("v_lshrrev_b32 v167, 3, v1"); I("s_movk_i32 s10, 0x480"); I("v_mul_u32_u24 v167, s10, v167"); I("v_and_b32 v0, 7, v1"); I("v_lshl_add_u32 v167, v0, 4, v167")
    I("s_mov_b32 s88, 0"); I("s_mov_b32 s89, 147456"); I("s_mov_b32 s90, 0"); I("s_mov_b32 s91, 294912"); I("s_mov_b32 s92, 442368"); I("s_movk_i32 s93, 0x2400")
    I("s_cmp_eq_u32 s81, 0"); I("s_cselect_b32 s12, 0, s12"); I("s_cselect_b32 s79, 0, s79")
    a.label(dd_)
    I("s_waitcnt lgkmcnt(0)")
    stamp(0)
    dstamp(0,True,1); dstamp(1,False,1)
    srd(48,18,7,16384); srd(52,20,7,16384)
    I("s_cmp_eq_u32 s81, 1"); I("s_cselect_b32 s56, s24, s28"); I("s_cselect_b32 s57, s25, s29"); I("s_mov_b32 s58, 5308416"); I("s_cselect_b32 s58, 4718592, s58")
    I("s_add_u32 s56, s56, s12"); I("s_addc_u32 s57, s57, 0"); I("s_sub_u32 s58, s58, s12"); I("s_mov_b32 s59, 0x20000")
    srd_rem(60,30,79,5308416)
    I("s_cmp_eq_u32 s81, 1"); I("s_cselect_b32 s60, s56, s60"); I("s_cselect_b32 s61, s57, s61"); I("s_cselect_b32 s62, s58, s62")
    I("s_cmp_eq_u32 s81, 0"); I("s_cselect_b32 s58, 0, s58"); I("s_cselect_b32 s62, 0, s62")
    (I("s_barrier") if not noB0 else None)
    def consts_w():
        ws_setup()
        I("v_and_b32 v152, 1, v1"); I("v_cmp_eq_u32 vcc, 1, v152")
        I("v_mov_b32 v152, 0xffff"); I("v_mov_b32 v153, 0xffff0000"); I("v_cndmask_b32 v152, v152, v153, vcc")
        I("v_bfe_u32 v153, v1, 1, 2")
        for r in range(4):
            I(f"v_cmp_eq_u32 vcc, {r}, v153"); I(f"v_cndmask_b32 v{160+r}, 0, v152, vcc")
        I("s_mov_b32 s72, 0xffff0000"); I("s_mov_b32 s73, 0"); I("s_mov_b32 s74, 0"); I("s_mov_b32 s75, 0xffff"); I("s_mov_b32 s76, 0"); I("s_mov_b32 s77, 0xffff0000")
    def stream(Wn, wo):
        if wo:
            I("v_lshlrev_b32 v0, 1, v2"); I("v_xor_b32 v0, v0, v3"); I("s_movk_i32 s10, 0x480"); I("v_mul_u32_u24 v6, s10, v2")
            I("v_lshl_add_u32 v164, v0, 4, v6"); I("v_xor_b32 v0, 8, v0"); I("v_lshl_add_u32 v165, v0, 4, v6")
            for i in range(8):
                I(f"s_add_u32 m0, s13, {i*1024}"); I(f"s_mov_b32 s84, {i*4608}")
                I(f"buffer_load_dwordx4 v{164+(i&1)}, s[56:59], s84 offen lds {wflag}".replace(" lds nt"," nt lds"))
                if i>=Wn-1: I(f"s_waitcnt vmcnt({Wn-1})")
        for t in range(4):
            for c in range(4):
                I(f"buffer_load_dwordx4 {vr(KB+(4*t+c)*4)}, v4, s[48:51], {soff[t]} offen offset:{c*64} {ldflag}")
                if wo or 4*t+c>=Wn-1: I(f"s_waitcnt vmcnt({Wn-1})")
        for idx in range(16):
            t,r=divmod(idx,4)
            I(f"buffer_load_dwordx4 {vr(VB+idx*4)}, v5, s[52:55], {soff[t]} offen offset:{r*256} {ldflag}")
            if idx<15: I(f"s_waitcnt vmcnt({(Wn if idx<6 else max(Wn,W2))-1})")
            if idx==3: consts_w()
    stream(W,False)
    MK=160; Q=152; ACC=8+40
    stamp(1)
    dstamp(3,False,8)
    I("s_barrier")
    stamp(2)
    I("v_lshrrev_b32 v5, 3, v3"); I("v_lshlrev_b32 v5, 8, v5"); I("v_lshl_add_u32 v5, v2, 4, v5")
    I(f"ds_read_b128 {vr(Q)}, v5 offset:{QL}"); I(f"ds_read_b128 {vr(Q+4)}, v5 offset:{QL+64}")
    I("s_waitcnt vmcnt(16)")
    for c in range(4):
        I(f"s_waitcnt lgkmcnt({1 if c<3 else 0})")
        qb=Q+4*(c%2)
        for t in range(4):
            src = "0" if c==0 else vr(SB+4*t)
            I(f"v_mfma_f32_16x16x32_bf16 {vr(SB+4*t)}, {vr(qb)}, {vr(KB+(4*t+c)*4)}, {src}")
        if c<2: I(f"ds_read_b128 {vr(qb)}, v5 offset:{QL+(c+2)*64}")
    S=[SB,SB+4,SB+8,SB+12]
    I("v_lshrrev_b32 v6, 1, v2"); I("v_lshlrev_b32 v0, 8, v6"); I("v_lshlrev_b32 v6, 5, v6")
    I("s_lshl_b32 s7, s83, 2"); I("v_add_u32 v4, s7, v6")
    I("s_lshl_b32 s9, s83, 9"); I(f"s_add_u32 s9, s9, {SCR}")
    I("v_lshl_add_u32 v0, v3, 2, v0"); I("v_add_u32 v0, s9, v0")
    for x in S: rnd(x,x)
    for x in S: I(f"v_mul_f32 v{x}, {SCALE:#x}, v{x}")
    for x in S: rnd(x,x)
    M=SB+1; M2=SB+2
    I(f"v_max3_f32 v{M}, v{S[0]}, v{S[1]}, v{S[2]}"); I(f"v_max_f32 v{M}, v{M}, v{S[3]}")
    for k in (8,4,2,1): ror("v_max_f32",[M],k)
    I(f"ds_write_b32 v4, v{M} offset:{WMAX}")
    I("s_waitcnt lgkmcnt(0)")
    I("s_barrier")
    I(f"ds_read_b128 {vr(Q)}, v6 offset:{WMAX}"); I(f"ds_read_b128 {vr(Q+4)}, v6 offset:{WMAX+16}")
    I("v_lshrrev_b32 v5, 3, v3"); I("v_lshlrev_b32 v5, 8, v5"); I("v_lshl_add_u32 v5, v2, 4, v5"); I("v_add_u32 v5, s9, v5")
    I(f"s_mov_b32 s7, {LOG2E:#x}")
    I("s_waitcnt lgkmcnt(0)")
    I(f"v_max3_f32 v{M}, v{Q}, v{Q+1}, v{Q+2}"); I(f"v_max3_f32 v{M2}, v{Q+3}, v{Q+4}, v{Q+5}")
    I(f"v_max3_f32 v{M}, v{M}, v{Q+6}, v{Q+7}"); I(f"v_max_f32 v{M}, v{M}, v{M2}")
    I(f"v_mul_f32 v{M}, 0xbfb8aa3b, v{M}")
    for x in S: I(f"v_fma_f32 v{x}, v{x}, s7, v{M}")
    for x in S: I(f"v_exp_f32 v{x}, v{x}")
    I(f"v_add_f32 v{M}, v{S[0]}, v{S[1]}"); I(f"v_add_f32 v{M2}, v{S[2]}, v{S[3]}")
    for x in S: dup(x,x)
    I(f"v_add_f32 v{M}, v{M}, v{M2}")
    for t,x in enumerate(S): I(f"ds_write_b32 v0, v{x} offset:{64*t}")
    for k in (8,4,2,1): ror("v_add_f32",[M],k)
    for t in range(4): I(f"ds_read_b128 {vr(SB+4*t) if t else vr(Q)}, v5 offset:{64*t}")
    I("v_lshrrev_b32 v6, 3, v6")
    setexec(1,1)
    I(f"ds_add_f32 v6, v{M} offset:{LSUM}")
    fullexec()
    I("s_waitcnt lgkmcnt(0)")
    I("s_barrier")
    for r in range(4): I(f"v_mov_b32 v{SB+r}, v{Q+r}")
    stamp(3)
    A0,A1=Q,Q+4
    I("v_lshrrev_b32 v4, 1, v2"); I("v_lshlrev_b32 v4, 9, v4"); I("v_lshl_add_u32 v4, v3, 5, v4")
    I("v_and_b32 v5, 1, v2"); I("v_lshl_add_u32 v4, v5, 4, v4")
    I("s_lshl_b32 s7, s83, 10"); I("v_add_u32 v4, s7, v4")
    for idx in range(16):
        A=A0 if idx%2==0 else A1
        for r in range(4): I(f"v_and_b32 v{A+r}, v{SB+idx}, v{MK+r}")
        I(f"s_waitcnt vmcnt({15-idx if idx<=10 else 5})")
        src="0" if idx==0 else vr(ACC)
        I(f"v_mfma_f32_16x16x32_bf16 {vr(ACC)}, {vr(A)}, {vr(VB+4*idx)}, {src}")
        if idx>=10:
            k=idx-10
            I(f"s_add_u32 m0, s13, {k*1024}"); I("s_nop 0")
            sr=60 if k%3==2 else 56
            I(f"buffer_load_dwordx4 v{165+k%3}, s[{sr}:{sr+3}], s{88+k} offen lds {wflag}".replace(" lds nt"," nt lds"))
    I(f"ds_write_b128 v4, {vr(ACC)} offset:{OBUF}")
    I("s_waitcnt lgkmcnt(0)")
    stamp(4)
    dstamp(4,False,8)
    I("s_barrier")
    if notail: finish()
    I("s_cmp_eq_u32 s81, 2"); I("s_cbranch_scc1 L_mlp_tail")
    I("s_cmp_eq_u32 s81, 1"); I("s_cbranch_scc1 L_wo_tail")
    finish()

    a.label("L_wo_tail")
    O1,O2,M1,T=72,76,80,88
    I("v_lshrrev_b32 v6, 2, v3"); I("v_lshl_add_u32 v4, v2, 3, v6"); I("s_movk_i32 s7, 192"); I("v_mul_u32_u24 v4, s7, v4")
    I("v_and_b32 v6, 3, v3"); I("v_lshl_add_u32 v4, v6, 3, v4"); I("v_add_u32 v86, s13, v4")
    I("v_bfe_u32 v6, v1, 1, 3"); I("s_lshl_b32 s7, s5, 4"); I("v_add_u32 v4, s7, v6"); I("v_mul_u32_u24 v4, s86, v4")
    I("v_and_b32 v5, 1, v1"); I("v_lshlrev_b32 v5, 4, v5"); I("v_lshl_add_u32 v5, v2, 5, v5")
    I("s_lshl_b32 s7, s83, 7"); I("v_add3_u32 v84, v4, v5, s7")
    I("s_lshr_b32 s7, s83, 2"); I("s_lshl_b32 s7, s7, 6"); I("v_lshl_add_u32 v85, v6, 2, s7")
    I(f"s_mov_b32 s84, {8*STRIDE}")
    I("s_waitcnt vmcnt(0)"); stamp(12)
    for c in range(6):
        I(f"ds_read_b64_tr_b16 v[{KB+4*c}:{KB+4*c+1}], v86 offset:{c*32}")
        I(f"ds_read_b64_tr_b16 v[{KB+4*c+2}:{KB+4*c+3}], v86 offset:{c*32+768}")
    I("s_barrier")
    I(f"ds_read_b32 v{M1}, v85 offset:{WGT}"); I(f"ds_read_b32 v{M1+1}, v85 offset:{WGT+32}")
    poll([f"buffer_load_dwordx4 {vr(O1)}, v84, s[44:47], 0 offen offset:{P3} sc1",
          f"buffer_load_dwordx4 {vr(O2)}, v84, s[44:47], s84 offen offset:{P3} sc1"],
         sent=list(range(72,80)), name="o", tmp=87)
    stamp(5)
    def red8(op,regs):
        for v in regs: dpp(op,v,v,v,"quad_perm:[2,3,0,1]")
        for v in regs: dpp(op,v,v,v,"row_ror:4")
        for v in regs: dpp(op,v,v,v,"row_ror:8")
    I("s_waitcnt lgkmcnt(0)")
    for r in range(4): I(f"v_mul_f32 v{O1+r}, v{M1}, v{O1+r}")
    for r in range(4): I(f"v_fmac_f32 v{O1+r}, v{M1+1}, v{O2+r}")
    red8("v_add_f32",[O1,O1+1,O1+2,O1+3])
    I(f"v_cvt_pk_bf16_f32 v{T}, v{O1}, v{O1+1}"); I(f"v_cvt_pk_bf16_f32 v{T+1}, v{O1+2}, v{O1+3}")
    AO=T+8
    I(f"v_mov_b32_dpp v{AO}, v{T} quad_perm:[0,0,2,2] row_mask:0xf bank_mask:0xf"); I(f"v_mov_b32_dpp v{AO+1}, v{T+1} quad_perm:[0,0,2,2] row_mask:0xf bank_mask:0xf")
    I(f"v_mov_b32_dpp v{AO+2}, v{T} quad_perm:[1,1,3,3] row_mask:0xf bank_mask:0xf"); I(f"v_mov_b32_dpp v{AO+3}, v{T+1} quad_perm:[1,1,3,3] row_mask:0xf bank_mask:0xf")
    D=100
    for c in range(6): I(f"v_mfma_f32_16x16x32_bf16 {vr(D+4*c)}, {vr(AO)}, {vr(KB+4*c)}, 0")
    I("v_lshlrev_b32 v4, 2, v1")
    I("s_lshl_b32 s7, s83, 9"); I("v_add_u32 v5, s7, v4")
    def sel4(dst,D0):
        I(f"v_cndmask_b32 v{dst}, v{D0}, v{D0+4}, s[72:73]")
        I(f"v_cndmask_b32 v{dst}, v{dst}, v{D0+8}, s[74:75]")
        I(f"v_cndmask_b32 v{dst}, v{dst}, v{D0+12}, s[76:77]")
    sel4(T,D)
    I(f"v_cndmask_b32 v{T+1}, v{D+16}, v{D+20}, s[72:73]")
    I(f"ds_write_b32 v5, v{T} offset:{RED}"); I(f"ds_write_b32 v5, v{T+1} offset:{RED+256}")
    I("s_waitcnt lgkmcnt(0)")
    I("s_barrier")
    I("s_cmp_lt_u32 s83, 2"); sk=L("wo_done"); I(f"s_cbranch_scc0 {sk}")
    I("s_lshl_b32 s7, s83, 8"); I("v_add_u32 v4, s7, v4")
    for k in range(4): I(f"ds_read2st64_b32 v[{T+2*k}:{T+2*k+1}], v4 offset0:{RED//256+4*k} offset1:{RED//256+4*k+2}")
    I("s_mul_i32 s7, s14, 384"); I(f"s_add_u32 s7, s7, {P4A:#x}")
    I("s_cmp_eq_u32 s83, 0"); I("s_cselect_b32 exec_hi, -1, 0")
    I("s_waitcnt lgkmcnt(0)")
    I(f"v_add_f32 v{T}, v{T}, v{T+1}"); I(f"v_add_f32 v{T+2}, v{T+2}, v{T+3}"); I(f"v_add_f32 v{T+4}, v{T+4}, v{T+5}"); I(f"v_add_f32 v{T+6}, v{T+6}, v{T+7}")
    I(f"v_add_f32 v{T}, v{T}, v{T+2}"); I(f"v_add_f32 v{T+4}, v{T+4}, v{T+6}"); I(f"v_add_f32 v{T}, v{T}, v{T+4}")
    I(f"buffer_store_dword v{T}, v4, s[44:47], s7 offen sc1")
    stamp(6)
    dstamp(6,False,1,0)
    a.label(sk)
    finish()

    a.label("L_mlp_tail")
    I("s_lshl_b32 s13, s3, 13"); I(f"s_add_u32 s13, s13, {WAREA}")
    I("v_lshrrev_b32 v4, 2, v1"); I("s_movk_i32 s7, 0x2400"); I("v_mul_u32_u24 v4, s7, v4"); I("v_and_b32 v5, 3, v1"); I("v_lshl_add_u32 v96, v5, 4, v4")
    I("s_mul_i32 s7, s3, 589824"); I("s_lshl_b32 s8, s82, 6"); I("s_add_u32 s7, s7, s8")
    srd_rem(56,28,7,5308416)
    I("v_lshrrev_b32 v4, 3, v1"); I("s_movk_i32 s7, 0x480"); I("v_mul_u32_u24 v4, s7, v4"); I("v_and_b32 v5, 7, v1"); I("v_lshl_add_u32 v97, v5, 4, v4")
    I("s_mul_i32 s7, s82, 36864"); I("s_lshl_b32 s8, s3, 7"); I("s_add_u32 s7, s7, s8")
    srd_rem(60,30,7,5308416)
    def mlp_dma():
        sk1=L("w1done")
        I("s_cmp_lg_u32 s3, 0"); I(f"s_cbranch_scc1 {sk1}")
        for i,off in enumerate((0,1024,3072,4096)):
            I(f"s_add_u32 m0, s13, {off}"); I(f"s_mov_b32 s84, {i*147456}")
            I(f"buffer_load_dwordx4 v96, s[56:59], s84 offen lds {wflag}".replace(" lds nt"," nt lds"))
        for i,off in enumerate((2048,5120)):
            I(f"s_add_u32 m0, s13, {off}"); I(f"s_mov_b32 s84, {i*9216}")
            I(f"buffer_load_dwordx4 v97, s[60:63], s84 offen lds {wflag}".replace(" lds nt"," nt lds"))
        a.label(sk1)
        for i,off in ((2,6144),(3,7168)):
            I(f"s_add_u32 m0, s13, {off}"); I(f"s_mov_b32 s84, {i*9216}")
            I(f"buffer_load_dwordx4 v97, s[60:63], s84 offen lds {wflag}".replace(" lds nt"," nt lds"))
    if not gate: mlp_dma()
    XV,GA,SBv,CBv,GBv=72,73,74,75,76
    I("v_lshlrev_b32 v77, 2, v1")
    I("s_lshl_b32 s7, s3, 7"); I("v_lshl_add_u32 v4, v1, 1, s7")
    srd(64,16,None,1152)
    I(f"buffer_load_ushort v{XV}, v4, s[64:67], 0 offen")
    for k,base in enumerate((1152,1728,2304,2880)):
        I(f"s_lshl_b32 s7, s3, 6"); I(f"s_add_u32 s7, s7, {base-1152}")
        I("s_lshr_b32 s8, s7, 7"); I("s_lshl_b32 s8, s8, 9")
        I("s_and_b32 s7, s7, 127"); I("s_lshl_b32 s7, s7, 2"); I("s_add_u32 s8, s8, s7"); I(f"s_add_u32 s{88+k}, s8, {P1BA:#x}")
    I("s_lshl_b32 s7, s3, 8"); I(f"s_add_u32 s15, s7, {P4A:#x}")
    G=80
    T=100
    I("v_lshrrev_b32 v4, 2, v3"); I("v_lshl_add_u32 v4, v2, 3, v4")
    I("v_and_b32 v5, 3, v3"); I("v_lshlrev_b32 v5, 3, v5")
    I("v_lshl_add_u32 v98, v4, 6, v5"); I("v_add_u32 v98, s13, v98")
    I("v_lshrrev_b32 v4, 2, v3"); I("v_lshl_add_u32 v99, v4, 7, v5"); I("v_lshl_add_u32 v99, v2, 10, v99")
    I("v_cmp_eq_u32 vcc, 0, v2"); I("v_mov_b32 v4, 4096"); I("v_mov_b32 v5, 2048"); I("v_cndmask_b32 v4, v4, v5, vcc"); I("v_add3_u32 v99, v99, v4, s13")
    B1,B2=8,24
    def trreads():
        for kk in range(2):
            for c in range(2):
                b=B1+4*(2*kk+c)
                I(f"ds_read_b64_tr_b16 v[{b}:{b+1}], v98 offset:{kk*3072+c*32}")
                I(f"ds_read_b64_tr_b16 v[{b+2}:{b+3}], v98 offset:{kk*3072+c*32+256}")
        for c in range(4):
            b=B2+4*c
            I(f"ds_read_b64_tr_b16 v[{b}:{b+1}], v99 offset:{c*32}")
            I(f"ds_read_b64_tr_b16 v[{b+2}:{b+3}], v99 offset:{c*32+512}")
    poll([f"buffer_load_dword v{GA+k}, v77, s[44:47], s{88+k} offen sc1" for k in range(4)], sent=list(range(GA,GA+4)), name="s", tmp=T)
    if not gate: trreads()
    I(f"v_lshlrev_b32 v{XV}, 16, v{XV}")
    I(f"v_add_f32 v{CBv}, 1.0, v{CBv}"); rnd(CBv,CBv)
    if gate==2:
        I("s_cmp_eq_u32 s3, 0"); ng_=L("nog"); I(f"s_cbranch_scc0 {ng_}")
        I(f"s_lshl_b32 s12, s5, 7"); I(f"s_add_u32 s12, s12, {F4A:#x}"); I("v_mov_b32 v4, 0")
        setexec(1,0)
        poll([f"buffer_load_dword v{T}, v4, s[44:47], s12 offen sc1","s_sleep 2"], tags=[T], name="c3", tmp=T+1)
        fullexec()
        a.label(ng_)
        I("s_barrier")
        mlp_dma()
    I("s_cmp_eq_u32 s3, 0"); nc_=L("nocan"); I(f"s_cbranch_scc0 {nc_}")
    I("v_lshlrev_b32 v4, 7, v1"); I(f"s_mov_b32 s12, {F4A:#x}")
    setexec(0xffff,0)
    poll([f"buffer_load_dword v{T}, v4, s[44:47], s12 offen sc1","s_sleep 1"], tags=[T], name="c4", tmp=T+1)
    fullexec()
    a.label(nc_)
    I("s_waitcnt lgkmcnt(0)")
    I("s_barrier")
    if gate==1: mlp_dma()
    lds_=["s_mov_b32 s84, s15"]
    for k in range(16):
        lds_.append(f"buffer_load_dword v{G+k}, v77, s[44:47], s84 offen sc1")
        if k<15: lds_.append(f"s_add_u32 s84, s84, 2304")
    poll(lds_, sent=list(range(G,G+16)), name="x", tmp=T, mid=(trreads if gate else None))
    stamp(9)
    dstamp(7,False,1)
    if stamps: I(f"v_writelane_b32 v{STV}, s80, 14")
    for k in (0,2,4,6,8,10,12,14): I(f"v_add_f32 v{G+k}, v{G+k}, v{G+k+1}")
    for k in (0,4,8,12): I(f"v_add_f32 v{G+k}, v{G+k}, v{G+k+2}")
    I(f"v_add_f32 v{G}, v{G}, v{G+4}"); I(f"v_add_f32 v{G+8}, v{G+8}, v{G+12}")
    I(f"v_add_f32 v{G}, v{G}, v{G+8}")
    rnd(G,G); I(f"v_mul_f32 v{G}, v{G}, v{GA}"); rnd(G,G); I(f"v_add_f32 v{G}, v{G}, v{XV}")
    X1=G+1; rnd(X1,G)
    S,S2=T,T+1
    I(f"v_mov_b32 v{S}, v{X1}"); I(f"v_mul_f32 v{S2}, v{X1}, v{X1}")
    for k in (8,4,2,1): ror("v_add_f32",[S,S2],k)
    for v_ in (S,S2): I(f"v_add_f32_dpp v{v_}, v{v_}, v{v_} row_bcast:15 row_mask:0xa bank_mask:0xf")
    for v_ in (S,S2): I(f"v_add_f32_dpp v{v_}, v{v_}, v{v_} row_bcast:31 row_mask:0xc bank_mask:0xf")
    I("v_mov_b32 v4, 0")
    setexec(0,0x80000000)
    I(f"ds_add_f32 v4, v{S} offset:{STAT}"); I(f"ds_add_f32 v4, v{S2} offset:{STAT+4}")
    fullexec()
    I("s_lshl_b32 s9, s3, 9"); I(f"s_add_u32 s9, s9, {SCR}")
    I("v_lshl_add_u32 v5, v1, 1, s9")
    I("v_lshl_add_u32 v6, v2, 4, s9")
    I("s_waitcnt lgkmcnt(0)")
    I("s_barrier")
    I(f"ds_read_b64 v[{S}:{S+1}], v4 offset:{STAT}")
    I("s_waitcnt lgkmcnt(0)")
    ln_stats(S,S2,T+2,T+3)
    H=G+2
    I(f"v_sub_f32 v{H}, v{X1}, v{T+2}"); rnd(H,H); I(f"v_mul_f32 v{H}, v{H}, v{T+3}"); rnd(H,H)
    I(f"v_mul_f32 v{H}, v{H}, v{CBv}"); rnd(H,H); I(f"v_add_f32 v{H}, v{H}, v{SBv}")
    I(f"v_cvt_pk_bf16_f32 v{H}, v{H}, v{H}")
    I(f"ds_write_b16 v5, v{H}")
    AH=T+4
    I(f"ds_read_b128 {vr(AH)}, v6"); I(f"ds_read_b128 {vr(AH+4)}, v6 offset:64")
    D=T+12
    I("s_waitcnt lgkmcnt(1)")
    I(f"v_mfma_f32_16x16x32_bf16 {vr(D)}, {vr(AH)}, {vr(B1)}, 0"); I(f"v_mfma_f32_16x16x32_bf16 {vr(D+4)}, {vr(AH)}, {vr(B1+4)}, 0")
    I("s_waitcnt lgkmcnt(0)")
    I(f"v_mfma_f32_16x16x32_bf16 {vr(D)}, {vr(AH+4)}, {vr(B1+8)}, {vr(D)}"); I(f"v_mfma_f32_16x16x32_bf16 {vr(D+4)}, {vr(AH+4)}, {vr(B1+12)}, {vr(D+4)}")
    I(f"v_cndmask_b32 v{T}, v{D}, v{D+4}, s[72:73]")
    I("s_lshl_b32 s7, s3, 8"); I("v_add_u32 v4, s7, v77")
    I(f"ds_write_b32 v4, v{T} offset:{RED}")
    I("s_waitcnt lgkmcnt(0)")
    I("s_barrier")
    for k in range(4): I(f"ds_read2st64_b32 v[{T+2*k}:{T+2*k+1}], v77 offset0:{RED//256+2*k} offset1:{RED//256+2*k+1}")
    I(f"ds_read_b32 v{T+8}, v77 offset:{RED+8*256}")
    I("s_waitcnt lgkmcnt(0)")
    I(f"v_add_f32 v{T}, v{T}, v{T+1}"); I(f"v_add_f32 v{T+2}, v{T+2}, v{T+3}"); I(f"v_add_f32 v{T+4}, v{T+4}, v{T+5}"); I(f"v_add_f32 v{T+6}, v{T+6}, v{T+7}")
    I(f"v_add_f32 v{T}, v{T}, v{T+2}"); I(f"v_add_f32 v{T+4}, v{T+4}, v{T+6}"); I(f"v_add_f32 v{T}, v{T}, v{T+8}"); I(f"v_add_f32 v{T}, v{T}, v{T+4}")
    rnd(T,T); silu([T],[T+1])
    I(f"v_cvt_pk_bf16_f32 v{T}, v{T}, v{T}")
    I(f"ds_write_b16 v5, v{T} offset:256")
    I(f"ds_read_b128 {vr(AH)}, v6 offset:256")
    I("s_waitcnt lgkmcnt(0)")
    for c in range(4): I(f"v_mfma_f32_16x16x32_bf16 {vr(D+4*c)}, {vr(AH)}, {vr(B2+4*c)}, 0")
    I("s_lshl_b32 s7, s3, 8"); I("s_mul_i32 s8, s82, 2304"); I("s_add_u32 s7, s7, s8"); I(f"s_add_u32 s7, s7, {P5A:#x}")
    sel4(T,D)
    I(f"buffer_store_dword v{T}, v77, s[44:47], s7 offen sc1")
    stamp(10)
    dstamp(8,False,1)
    I("s_cmp_lt_u32 s82, 9"); sk=L("mlp_done"); I(f"s_cbranch_scc0 {sk}")
    a.C("final reducers: CU u<9 handles column block u; wave wv gathers partials 16wv+pp+4k")
    F=84
    I(f"s_mul_i32 s7, s3, {16*2304}"); I("s_lshl_b32 s8, s82, 8"); I("s_add_u32 s12, s7, s8"); I(f"s_add_u32 s12, s12, {P5A:#x}")
    lds_=["s_mov_b32 s84, s12"]
    for k in range(16):
        lds_.append(f"buffer_load_dword v{F+k}, v77, s[44:47], s84 offen sc1")
        if k<15: lds_.append(f"s_add_u32 s84, s84, 2304")
    poll(lds_, sent=list(range(F,F+16)), name="f", tmp=T)
    stamp(11)
    dstamp(10,False,1)
    for k in (0,2,4,6,8,10,12,14): I(f"v_add_f32 v{F+k}, v{F+k}, v{F+k+1}")
    for k in (0,4,8,12): I(f"v_add_f32 v{F+k}, v{F+k}, v{F+k+2}")
    I(f"v_add_f32 v{F}, v{F}, v{F+4}"); I(f"v_add_f32 v{F+8}, v{F+8}, v{F+12}"); I(f"v_add_f32 v{F}, v{F}, v{F+8}")
    I("s_lshl_b32 s7, s3, 8"); I("v_add_u32 v4, s7, v77")
    I(f"ds_write_b32 v4, v{F} offset:{RED+2304}")
    I("s_waitcnt lgkmcnt(0)")
    I("s_barrier")
    I("s_cmp_eq_u32 s3, s82"); I(f"s_cbranch_scc0 {sk}")
    FB=(RED+2304)//256
    for k in range(4): I(f"ds_read2st64_b32 v[{T+2*k}:{T+2*k+1}], v77 offset0:{FB+2*k} offset1:{FB+2*k+1}")
    I(f"ds_read_b32 v{T+8}, v77 offset:{RED+2304+8*256}")
    I("s_lshl_b32 s7, s82, 7"); I("v_lshl_add_u32 v4, v1, 1, s7")
    srd(64,36,None,1152)
    I("s_waitcnt lgkmcnt(0)")
    I(f"v_add_f32 v{T}, v{T}, v{T+1}"); I(f"v_add_f32 v{T+2}, v{T+2}, v{T+3}"); I(f"v_add_f32 v{T+4}, v{T+4}, v{T+5}"); I(f"v_add_f32 v{T+6}, v{T+6}, v{T+7}")
    I(f"v_add_f32 v{T}, v{T}, v{T+2}"); I(f"v_add_f32 v{T+4}, v{T+4}, v{T+6}"); I(f"v_add_f32 v{T}, v{T}, v{T+8}"); I(f"v_add_f32 v{T}, v{T}, v{T+4}")
    rnd(T,T); I(f"v_mul_f32 v{T}, v{T}, v{GBv}"); rnd(T,T); I(f"v_add_f32 v{T}, v{T}, v{X1}")
    I(f"v_cvt_pk_bf16_f32 v{T}, v{T}, v{T}")
    I(f"buffer_store_short v{T}, v4, s[64:67], 0 offen")
    dstamp(9,False,0)
    I("s_cmp_eq_u32 s82, 0"); I(f"s_cbranch_scc0 {sk}")
    if pad:
        pl=L("pad"); a.label(pl)
        I("s_memrealtime s[96:97]"); I("s_waitcnt lgkmcnt(0)"); I("s_sub_u32 s96, s96, s42"); I(f"s_cmp_lt_u32 s96, {pad}"); I(f"s_cbranch_scc1 {pl}")
    I("v_mov_b32 v4, s95"); I("v_lshlrev_b32 v5, 2, v1"); I(f"s_mov_b32 s7, {EPOCH_OFF:#x}")
    setexec(0xffffffff,0)
    I("buffer_store_dword v4, v5, s[44:47], s7 offen sc1")
    a.label(sk)
    finish()

    a.label("L_clean")
    code_touch(8)
    I("v_mov_b32 v156, 0"); I("v_mov_b32 v157, 0"); I("v_mov_b32 v158, 0"); I("v_mov_b32 v159, 0")
    I("v_lshlrev_b32 v5, 4, v1")
    I("v_lshlrev_b32 v4, 2, v1"); I(f"ds_write_b32 v4, v156 offset:{WMAX}")
    I("s_waitcnt lgkmcnt(0)")
    stamp(0)
    epoch_load()
    ws_setup()
    if tlbw:
        I("s_mov_b32 s7, 82944"); I("v_mul_u32_u24 v20, s7, v1")
        srd(48,28,None,5308416); srd(52,30,None,5308416); srd(56,24,None,4718592)
        I("buffer_load_dword v21, v20, s[48:51], 0 offen"); I("buffer_load_dword v22, v20, s[52:55], 0 offen"); I("buffer_load_dword v23, v20, s[56:59], 0 offen")
    I("v_mov_b32 v156, -1"); I("v_mov_b32 v157, -1"); I("v_mov_b32 v158, -1"); I("v_mov_b32 v159, -1")
    if noclear: I("s_branch L_skipclr")
    I(f"buffer_store_dwordx4 v[156:159], v5, s[44:47], s85 offen offset:{P2} sc1")
    setexec(0xffffffff,0xff)
    I(f"buffer_store_dwordx4 v[156:159], v5, s[44:47], s85 offen offset:{P2+1024} sc1")
    fullexec()
    I("s_cmp_eq_u32 s81, 2"); nc=L("noclr"); I(f"s_cbranch_scc0 {nc}")
    I("s_mul_i32 s7, s82, 2304"); I(f"s_add_u32 s7, s7, {P5A:#x}")
    for k in range(2): I(f"buffer_store_dwordx4 v[156:159], v5, s[44:47], s7 offen offset:{1024*k} sc1")
    setexec(0xffff,0)
    I(f"buffer_store_dwordx4 v[156:159], v5, s[44:47], s7 offen offset:2048 sc1")
    fullexec()
    a.label(nc)
    I("s_cmp_eq_u32 s81, 1"); nc2=L("noclr2"); I(f"s_cbranch_scc0 {nc2}")
    I("s_mul_i32 s7, s14, 384"); I(f"s_add_u32 s7, s7, {P4A:#x}")
    setexec(0xffffff,0)
    I(f"buffer_store_dwordx4 v[156:159], v5, s[44:47], s7 offen sc1")
    fullexec()
    a.label(nc2)
    I("s_sub_u32 s8, 6, s6"); I("s_lshl_b32 s8, s8, 4"); I("s_add_u32 s8, s8, s5"); I("s_cmp_lt_u32 s8, 18"); I("s_cbranch_scc0 L_skipclr")
    I("s_lshl_b32 s7, s8, 9"); I(f"s_add_u32 s7, s7, {P1BA:#x}")
    setexec(0xffffffff,0)
    I(f"buffer_store_dwordx4 v[156:159], v5, s[44:47], s7 offen sc1")
    fullexec()
    a.label("L_skipclr")
    (I("s_barrier") if not noB0 else None)
    I("s_waitcnt vmcnt(0) lgkmcnt(0)")
    tag()
    I("v_mov_b32 v4, s95"); I("v_lshlrev_b32 v5, 2, v1")
    setexec(0xffffffff,0)
    I(f"buffer_store_dword v4, v5, s[44:47], s85 offen offset:{FL} sc1")
    stamp(1)
    I("s_cmp_eq_u32 s6, 6"); na=L("noagg"); I(f"s_cbranch_scc0 {na}")
    fullexec()
    I("s_lshl_b32 s7, s5, 4"); I("v_add_u32 v4, s7, v1"); I("v_mul_u32_u24 v4, s86, v4")
    setexec(0xffff,0)
    poll([f"buffer_load_dword v8, v4, s[44:47], 0 offen offset:{FL} sc1","s_sleep 8"],tags=[8],name="agg",tmp=9)
    fullexec()
    I("v_mov_b32 v4, s95"); I(f"s_lshl_b32 s7, s5, 7"); I(f"s_add_u32 s7, s7, {GCLR_OFF:#x}")
    setexec(0xffffffff,0)
    I(f"buffer_store_dword v4, v5, s[44:47], s7 offen sc1")
    a.label(na)
    finish()

    a.label("L_mod")
    TILE,XF,CV,XR,AV,A0,A1,ACC,GB,T=8,80,88,90,92,110,114,118,122,154
    I("s_setprio 2")
    I("s_waitcnt lgkmcnt(0)")
    stamp(0)
    epoch_load()
    srd(64,32,None,1152)
    I("s_and_b32 s7, s4, 7"); I("s_mul_i32 s7, s7, 144")
    I("v_lshlrev_b32 v4, 3, v1")
    I(f"buffer_load_dwordx2 v[{CV}:{CV+1}], v4, s[64:67], s7 offen")
    I("s_cmp_lt_u32 s4, 216"); nomod=L("nomod"); I(f"s_cbranch_scc0 {nomod}")
    I("s_and_b32 s7, s4, 7"); I("s_mul_i32 s7, s7, 497664")
    I("s_lshr_b32 s10, s4, 3"); I("s_lshl_b32 s10, s10, 8"); I("s_add_u32 s7, s7, s10")
    srd_rem(52,34,7,3981312)
    I("s_movk_i32 s7, 0x1b00"); I("v_mul_u32_u24 v4, s7, v2"); I("v_lshl_add_u32 v4, v3, 4, v4")
    for i in range(0 if notiles else 18):
        I(f"s_mov_b32 s84, {i*27648}")
        I(f"buffer_load_dwordx4 {vr(TILE+4*i)}, v4, s[52:55], s84 offen {wflag}")
    (I("s_barrier") if not noB0 else None)
    ws_setup(); diag_consts()
    I("s_waitcnt vmcnt(18)")
    for k in range(2): unpack2(T+2*k,T+2*k+1,CV+k)
    silu([T,T+1,T+2,T+3],[T+4,T+5,T+6,T+7])
    for r in range(4): dup(T+r,T+r)
    I(f"ds_write_b128 v164, {vr(T)} offset:{TL}")
    I("s_waitcnt vmcnt(0) lgkmcnt(0)")
    tag()
    stamp(1)
    matvec18(TILE,AV,A0,A1,ACC,TL)
    I(f"v_permlane32_swap_b32 v{ACC}, v{ACC+2}"); I(f"v_permlane32_swap_b32 v{ACC+1}, v{ACC+3}")
    I(f"v_mov_b32 v{A0}, v{ACC}"); I(f"v_mov_b32 v{A0+1}, s95"); I(f"v_mov_b32 v{A0+2}, v{ACC+1}"); I(f"v_mov_b32 v{A0+3}, s95")
    I(f"buffer_store_dwordx4 {vr(A0)}, v164, s[44:47], s85 offen offset:{P1} sc1")
    stamp(2)
    dstamp(11)
    finish()
    a.label(nomod)
    (I("s_barrier") if not noB0 else None)
    finish()

    a.label("L_ctrl")
    if pad: I("s_memrealtime s[42:43]")
    I("s_setprio 3")
    I("s_waitcnt lgkmcnt(0)")
    stamp(0)
    epoch_load()
    srd(48,16,None,1152)
    I("s_lshr_b32 s87, s6, 1"); I("s_mul_i32 s87, s87, 72")
    I("s_lshl_b32 s7, s87, 1")
    I("v_lshlrev_b32 v4, 3, v1")
    I(f"buffer_load_dwordx2 v[{XR}:{XR+1}], v4, s[48:51], s7 offen")
    I("v_lshlrev_b32 v5, 5, v1")
    I(f"buffer_load_dwordx4 {vr(XF)}, v5, s[48:51], 0 offen")
    I(f"buffer_load_dwordx4 {vr(XF+4)}, v5, s[48:51], 0 offen offset:16")
    I("s_lshl_b32 s7, s87, 13"); I("s_lshl_b32 s10, s5, 9"); I("s_add_u32 s7, s7, s10")
    I("s_and_b32 s10, s6, 1"); I("s_lshl_b32 s10, s10, 8"); I("s_add_u32 s7, s7, s10")
    srd_rem(52,22,7,4718592)
    I("v_lshlrev_b32 v4, 13, v2"); I("v_lshl_add_u32 v4, v3, 4, v4")
    for i in range(0 if notiles else 18):
        I(f"s_mov_b32 s84, {i*32768:#x}")
        I(f"buffer_load_dwordx4 {vr(TILE+4*i)}, v4, s[52:55], s84 offen {wflag}")
    (I("s_barrier") if not noB0 else None)
    ws_setup(); diag_consts()
    I("s_waitcnt vmcnt(18) lgkmcnt(0)")
    tag()
    stamp(1)
    S,S2=T,T+1
    I(f"v_mov_b32 v{S}, 0"); I(f"v_mov_b32 v{S2}, 0")
    for k in range(8):
        unpack2(T+2,T+3,XF+k)
        I(f"v_add_f32 v{S}, v{S}, v{T+2}"); I(f"v_fmac_f32 v{S2}, v{T+2}, v{T+2}")
        I(f"v_add_f32 v{S}, v{S}, v{T+3}"); I(f"v_fmac_f32 v{S2}, v{T+3}, v{T+3}")
    for k in (8,4,2,1): ror("v_add_f32",[S,S2],k)
    xswap("v_add_f32",[S,S2],[T+2,T+3],16); xswap("v_add_f32",[S,S2],[T+2,T+3],32)
    MB,INV=XF,XF+1
    ln_stats(S,S2,MB,INV)
    GA=92
    if nochain: I("s_branch L_skipchain")
    I("v_and_b32 v4, 31, v1"); I("v_lshl_add_u32 v4, v4, 2, s87")
    I("v_cmp_lt_u32 vcc, 31, v1"); I("v_mov_b32 v5, 576"); I("v_cndmask_b32 v5, 0, v5, vcc"); I("v_add_u32 v4, v4, v5")
    I("v_lshrrev_b32 v5, 7, v4"); I("v_lshlrev_b32 v5, 3, v5"); I("v_mul_u32_u24 v5, s86, v5")
    I("v_bfe_u32 v156, v4, 3, 4"); I("v_bfe_u32 v157, v4, 2, 1"); I("v_lshl_add_u32 v156, v157, 4, v156")
    I("v_lshl_add_u32 v4, v156, 4, v5")
    I("s_lshl_b32 s7, s5, 4"); I("v_add_u32 v158, s7, v1"); I("v_mul_u32_u24 v158, s86, v158")
    I("v_mov_b32 v159, s95")
    def soffs(n,step,base=88):
        res=["0"]
        for k in range(1,n):
            I(f"s_mov_b32 s{base+k-1}, {k*step}"); res.append(f"s{base+k-1}")
        return res
    so=soffs(8,STRIDE)
    def p1loads():
        l=[]
        for k in range(8):
            l.append(f"buffer_load_dwordx4 {vr(GA+8*k)}, v4, s[44:47], {so[k]} offen offset:{P1} sc1")
            l.append(f"buffer_load_dwordx4 {vr(GA+8*k+4)}, v4, s[44:47], {so[k]} offen offset:{P1+512} sc1")
        return l
    p1tags=[GA+8*k+o for k in range(8) for o in (1,3,5,7)]
    def p1sum(D):
        for r,o in enumerate((0,2,4,6)): I(f"v_add_f32 v{D+r}, v{GA+o}, v{GA+8+o}")
        for k in range(2,8):
            for r,o in enumerate((0,2,4,6)): I(f"v_add_f32 v{D+r}, v{D+r}, v{GA+8*k+o}")
    def sleep(nn):
        while nn>0:
            k=min(nn,120); I(f"s_sleep {k}"); nn-=k
    sleep(sl1)
    setexec(0x3ffff,0x3ffff)
    poll(p1loads()+["s_mov_b32 exec_lo, 0xffff","s_mov_b32 exec_hi, 0",f"buffer_load_dword v159, v158, s[44:47], 0 offen offset:{FL} sc1","s_mov_b32 exec_lo, 0x3ffff","s_mov_b32 exec_hi, 0x3ffff"],
         tags=p1tags+[159], name="m", tmp=160)
    fullexec()
    stamp(4)
    p1sum(156)
    for r in range(4): rnd(GB+r,156+r)
    for r in range(4): I(f"v_mov_b32 v{GB+4+r}, v{GB+r}")
    for r in range(4): I(f"v_permlane32_swap_b32 v{GB+r}, v{GB+4+r}")
    H=GB+8; Tt=GB+12
    unpack2(H,H+1,XR); unpack2(H+2,H+3,XR+1)
    for r in range(4): I(f"v_sub_f32 v{H+r}, v{H+r}, v{MB}")
    for r in range(4): I(f"v_add_f32 v{Tt+r}, 1.0, v{GB+4+r}")
    for r in range(4): rnd(H+r,H+r)
    for r in range(4): rnd(Tt+r,Tt+r)
    for r in range(4): I(f"v_mul_f32 v{H+r}, v{H+r}, v{INV}")
    for r in range(4): rnd(H+r,H+r)
    for r in range(4): I(f"v_mul_f32 v{H+r}, v{H+r}, v{Tt+r}")
    for r in range(4): rnd(H+r,H+r)
    for r in range(4): I(f"v_add_f32 v{H+r}, v{H+r}, v{GB+r}")
    for r in range(4): dup(H+r,H+r)
    I(f"ds_write_b128 v164, {vr(H)} offset:{TL2}")
    I("s_waitcnt lgkmcnt(0)")
    matvec18(TILE,AV,A0,A1,ACC,TL2)
    I("v_lshlrev_b32 v4, 5, v3"); I("v_lshl_add_u32 v4, v2, 4, v4")
    setexec(0xffffffff,0)
    I(f"buffer_store_dwordx4 {vr(ACC)}, v4, s[44:47], s85 offen offset:{P2} sc1")
    fullexec()
    stamp(5)
    nr=L("nored")
    I("s_sub_u32 s13, 6, s6"); I("s_lshl_b32 s13, s13, 4"); I("s_add_u32 s13, s13, s5"); I("s_cmp_lt_u32 s13, 18"); I(f"s_cbranch_scc0 {nr}")
    I("s_add_u32 s7, s13, 9"); I(f"s_mul_i32 s7, s7, {8*STRIDE}")
    I("v_and_b32 v4, 1, v1"); I("v_lshrrev_b32 v5, 1, v1"); I("v_lshl_add_u32 v4, v4, 4, v5"); I("v_lshl_add_u32 v4, v4, 4, s7")
    setexec(0xffffffff,0)
    poll(p1loads(), tags=p1tags, name="b", tmp=160)
    p1sum(156)
    for r in range(4): rnd(156+r,156+r)
    I("s_lshl_b32 s7, s13, 9"); I(f"s_add_u32 s7, s7, {P1BA:#x}")
    I(f"buffer_store_dwordx4 v[156:159], v164, s[44:47], s7 offen sc1")
    fullexec()
    a.label(nr)
    I("v_lshrrev_b32 v4, 5, v1"); I("s_lshl_b32 s7, s5, 4"); I("v_add_u32 v4, s7, v4"); I("v_mul_u32_u24 v4, s86, v4")
    I("v_and_b32 v5, 31, v1"); I("v_lshl_add_u32 v4, v5, 4, v4")
    I("v_lshlrev_b32 v158, 7, v1"); I("v_mov_b32 v159, s95"); I(f"s_mov_b32 s12, {GCLR_OFF:#x}")
    so=soffs(8,2*STRIDE)
    sleep(sl2)
    poll([f"buffer_load_dwordx4 {vr(GB+4*k)}, v4, s[44:47], {so[k]} offen offset:{P2} sc1" for k in range(8)]+
         ["s_mov_b32 exec_lo, 0xffff","s_mov_b32 exec_hi, 0","buffer_load_dword v159, v158, s[44:47], s12 offen sc1","s_mov_b64 exec, -1"],
         sent=list(range(GB,GB+32)), tags=[159], name="q", tmp=160)
    for k in (0,2,4,6):
        for r in range(4): I(f"v_add_f32 v{GB+4*k+r}, v{GB+4*k+r}, v{GB+4*k+4+r}")
    for k in (0,4):
        for r in range(4): I(f"v_add_f32 v{GB+4*k+r}, v{GB+4*k+r}, v{GB+4*k+8+r}")
    for r in range(4): I(f"v_add_f32 v{GB+r}, v{GB+r}, v{GB+16+r}")
    I(f"v_cvt_pk_bf16_f32 v{GB+4}, v{GB}, v{GB+1}"); I(f"v_cvt_pk_bf16_f32 v{GB+5}, v{GB+2}, v{GB+3}")
    I("v_lshlrev_b32 v4, 3, v1")
    I(f"ds_write_b64 v4, v[{GB+4}:{GB+5}] offset:{QL}")
    I("s_waitcnt lgkmcnt(0)")
    a.label("L_skipchain")
    stamp(6)
    dstamp(2)
    I("s_barrier")
    code_touch(8)
    I("s_mov_b32 s72, 0xffff0000"); I("s_mov_b32 s73, 0"); I("s_mov_b32 s74, 0"); I("s_mov_b32 s75, 0xffff"); I("s_mov_b32 s76, 0"); I("s_mov_b32 s77, 0xffff0000")
    I("s_barrier")
    I("v_lshlrev_b32 v152, 4, v1"); I("v_mov_b32 v4, 0")
    I(f"ds_read_b128 {vr(80)}, v4 offset:{WMAX}"); I(f"ds_read_b128 {vr(84)}, v4 offset:{WMAX+16}")
    I(f"ds_read_b128 {vr(88)}, v4 offset:{WMAX+32}"); I(f"ds_read_b128 {vr(92)}, v4 offset:{WMAX+48}")
    I("s_waitcnt lgkmcnt(0)")
    R=96
    for h in range(2):
        b=80+8*h
        I(f"v_max3_f32 v{R+2*h}, v{b}, v{b+1}, v{b+2}"); I(f"v_max3_f32 v{R+2*h}, v{R+2*h}, v{b+3}, v{b+4}")
        I(f"v_max3_f32 v{R+2*h}, v{R+2*h}, v{b+5}, v{b+6}"); I(f"v_max_f32 v{R+2*h}, v{R+2*h}, v{b+7}")
    I("s_barrier")
    I(f"ds_read_b64 v[100:101], v4 offset:{LSUM}")
    I("s_waitcnt lgkmcnt(0)")
    I(f"v_mov_b32 v{R+1}, v100"); I(f"v_mov_b32 v{R+3}, v101")
    setexec(0xff,0)
    I(f"buffer_store_dwordx4 {vr(R)}, v152, s[44:47], s85 offen offset:{ML} sc1")
    fullexec()
    I("s_barrier")
    stamp(7)
    O=104
    for k in range(8): I(f"ds_read_b128 {vr(O+4*k)}, v152 offset:{OBUF+1024*k}")
    for k in (0,2,4,6):
        I(f"s_waitcnt lgkmcnt({6-k})")
        for r in range(4): I(f"v_add_f32 v{O+4*k+r}, v{O+4*k+r}, v{O+4*k+4+r}")
    for k in (0,4):
        for r in range(4): I(f"v_add_f32 v{O+4*k+r}, v{O+4*k+r}, v{O+4*k+8+r}")
    for r in range(4): I(f"v_add_f32 v{O+r}, v{O+r}, v{O+16+r}")
    I(f"buffer_store_dwordx4 {vr(O)}, v152, s[44:47], s85 offen offset:{P3} sc1")
    stamp(8)
    dstamp(5)
    if notail: finish()
    I("s_cmp_eq_u32 s81, 2"); I("s_cbranch_scc1 L_mlp_tail")
    I("s_cmp_eq_u32 s81, 1"); cw=L("cwo"); I(f"s_cbranch_scc1 {cw}")
    finish()
    a.label(cw)
    a.C("wo role control: canary on the 16 ML lines, compute normalised split weights")
    I("s_lshl_b32 s7, s5, 4"); I("v_add_u32 v4, s7, v1"); I("v_mul_u32_u24 v4, s86, v4")
    setexec(0xffff,0)
    poll([f"buffer_load_dwordx4 {vr(80)}, v4, s[44:47], 0 offen offset:{ML} sc1"], sent=[80,81,82,83], name="ml", tmp=84)
    I("s_cmp_eq_u32 s6, 0"); nf=L("nof4"); I(f"s_cbranch_scc0 {nf}")
    fullexec()
    I("v_mov_b32 v5, s95"); I("v_lshlrev_b32 v6, 2, v1"); I("s_lshl_b32 s7, s5, 7"); I(f"s_add_u32 s7, s7, {F4A:#x}")
    setexec(0xffffffff,0)
    I("buffer_store_dword v5, v6, s[44:47], s7 offen sc1")
    setexec(0xffff,0)
    a.label(nf)
    I("v_mov_b32 v84, v80"); I("v_mov_b32 v85, v82")
    for k in (8,4,2,1): ror("v_max_f32",[84,85],k)
    I("v_sub_f32 v80, v80, v84"); I("v_sub_f32 v82, v82, v85")
    I(f"v_mul_f32 v80, {LOG2E:#x}, v80"); I(f"v_mul_f32 v82, {LOG2E:#x}, v82")
    I("v_exp_f32 v80, v80"); I("v_exp_f32 v82, v82")
    I("v_mul_f32 v84, v80, v81"); I("v_mul_f32 v85, v82, v83")
    for k in (8,4,2,1): ror("v_add_f32",[84,85],k)
    I("v_rcp_f32 v84, v84"); I("v_rcp_f32 v85, v85")
    I("v_mul_f32 v80, v80, v84"); I("v_mul_f32 v82, v82, v85")
    I("v_lshlrev_b32 v4, 2, v1")
    I(f"ds_write_b32 v4, v80 offset:{WGT}"); I(f"ds_write_b32 v4, v82 offset:{WGT+64}")
    I("s_waitcnt lgkmcnt(0)")
    fullexec()
    I("s_barrier")
    finish()
    a.label("L_end")
    I("s_endpgm")

    body=a.finish()
    out=HEADER
    out+=f"; @launch grid=(256,1,1) block=(704,1,1) lds={LDS_BYTES}\n"
    out+='.amdgcn_target "amdgcn-amd-amdhsa--gfx950"\n.text\n'
    out+=f".globl {NAME}_kernel\n.p2align 8\n.type {NAME}_kernel,@function\n"
    out+=body
    out+=f""".section .rodata,"a"
.p2align 6
.amdhsa_kernel {NAME}_kernel
  .amdhsa_next_free_vgpr 168
  .amdhsa_next_free_sgpr 100
  .amdhsa_accum_offset 168
  .amdhsa_group_segment_fixed_size 0
  .amdhsa_float_denorm_mode_32 3
  .amdhsa_kernarg_size 104
  .amdhsa_user_sgpr_count 2
  .amdhsa_user_sgpr_kernarg_segment_ptr 1
  .amdhsa_system_sgpr_workgroup_id_x 1
.end_amdhsa_kernel
"""
    return out

if __name__=="__main__":
    import argparse
    p=argparse.ArgumentParser()
    p.add_argument("-o",default="cdna_kernels/"+NAME+".s")
    p.add_argument("--W",type=int,default=4); p.add_argument("--Wwo",type=int,default=5)
    p.add_argument("--ld",default=""); p.add_argument("--wf",default=""); p.add_argument("--stamps",action="store_true")
    p.add_argument("--sl1",type=int,default=140); p.add_argument("--sl2",type=int,default=40); p.add_argument("--norot",action="store_true"); p.add_argument("--woearly",action="store_true"); p.add_argument("--W2",type=int,default=4); p.add_argument("--Ww",type=int,default=3); p.add_argument("--psleep",type=int,default=0); p.add_argument("--nowt",action="store_true"); p.add_argument("--notail",action="store_true"); p.add_argument("--gate",type=int,default=1); p.add_argument("--notlbw",action="store_true"); p.add_argument("--notiles",action="store_true"); p.add_argument("--nochain",action="store_true"); p.add_argument("--noclear",action="store_true"); p.add_argument("--noB0",action="store_true"); p.add_argument("--dbg",action="store_true"); p.add_argument("--pad",type=int,default=0)
    x=p.parse_args()
    open(x.o,"w").write(gen(W=x.W,Wwo=x.Wwo,ldflag=x.ld,wflag=x.wf,stamps=x.stamps,sl1=x.sl1,sl2=x.sl2,rot=not x.norot,wolate=not x.woearly,W2=x.W2,Ww=x.Ww,psleep=x.psleep,nowt=x.nowt,notail=x.notail,gate=x.gate,tlbw=not x.notlbw,notiles=x.notiles,nochain=x.nochain,noclear=x.noclear,noB0=x.noB0,dbg=x.dbg,pad=x.pad))
```

```python
from asmlib import Asm

NAME="adaLN_cond__gqa_block_cached__dense_activation_silu__decode"
STRIDE=2816
P1,P2,P3,ML,FL=0,1024,1536,2560,2688
P4A,P5A,P1BA,F4A=0xB0000,0xBA000,0x10B000,0x10D400
GCLR_OFF=0x10E000; EPOCH_OFF=0x10F000; WS_SIZE=0x110000
QL,TL,TL2,WMAX,LSUM,STAT,WGT,RED,SCR,OBUF,WAREA=0,512,1536,2560,2624,2632,2688,2816,7424,12032,20224
WOA=WAREA
LDS_BYTES=WAREA+9*8192
SPIN=200000
LOG2E=0x3fb8aa3b
SCALE=0x3db504f3
EPS=0x3727c5ac
INV576=0x3ae38e39
STAMP_OFF=0x400000
HASH_A=0x9E3779B1; HASH_C=0x7F4A7C15
CODE_SLICE=2048
HEADER=open("cdna_kernels/"+NAME+".s.ref").read().split("; Override launch")[0]

def gen(W=4, Wwo=5, ldflag="", wflag="", stamps=False, sl1=140, sl2=40, rot=True, wolate=True, W2=4, Ww=3, psleep=0, nowt=False, notail=False, gate=1, tlbw=True, notiles=False, nochain=False, noclear=False, noB0=False, dbg=False, pad=0, padat='start'):
    a=Asm(); I=a.I
    uid=[0]
    def L(p):
        uid[0]+=1; return f"L_{p}_{uid[0]}"
    def vr(b,n=4): return f"v[{b}:{b+n-1}]"
    def rnd(d,s): I(f"v_cvt_pk_bf16_f32 v{d}, 0, v{s}")
    def dup(d,s): I(f"v_cvt_pk_bf16_f32 v{d}, v{s}, v{s}")
    def dpp(op,d,s0,s1,ctl): I(f"{op}_dpp v{d}, v{s0}, v{s1} {ctl} row_mask:0xf bank_mask:0xf")
    def ror(op,regs,k):
        for v in regs: dpp(op,v,v,v,f"row_ror:{k}")
    def xswap(op,regs,tmp,which):
        for v,t in zip(regs,tmp): I(f"v_mov_b32 v{t}, v{v}")
        for v,t in zip(regs,tmp): I(f"v_permlane{which}_swap_b32 v{v}, v{t}")
        for v,t in zip(regs,tmp): I(f"{op} v{v}, v{v}, v{t}")
    STV=7
    _I=I
    def I(t):
        if nowt and " lds" in t and "buffer_load" in t: return
        _I(t)
    DBGMAP={}
    def dstamp(slot, inv=False, only=None, wg=7):
        if not dbg or inv: return
        sk=L("ds")
        I(f"s_cmp_eq_u32 s4, {wg}"); I(f"s_cbranch_scc0 {sk}")
        if only is not None:
            I(f"s_cmp_eq_u32 s3, {only}"); I(f"s_cbranch_scc0 {sk}")
        I("s_memrealtime s[96:97]"); I("s_waitcnt lgkmcnt(0)")
        I("s_mov_b64 s[92:93], exec"); I("s_mov_b64 exec, 1")
        I("v_mov_b32 v7, s96"); I(f"v_mov_b32 v0, {slot*4}")
        I("global_store_dword v0, v7, s[38:39]")
        I("s_mov_b64 exec, s[92:93]")
        a.label(sk)
    def stamp(i):
        if dbg and i in DBGMAP: dstamp(*DBGMAP[i])
        if stamps:
            I("s_memrealtime s[96:97]"); I("s_waitcnt lgkmcnt(0)")
            I(f"v_writelane_b32 v{STV}, s96, {i}")
    def finish():
        if stamps:
            I("s_mov_b64 exec, -1")
            stamp(15)
            I("s_mul_i32 s7, s4, 11"); I("s_add_u32 s7, s7, s3"); I("s_lshl_b32 s7, s7, 8"); I(f"s_add_u32 s7, s7, {STAMP_OFF}")
            I("s_add_u32 s8, s40, s7"); I("s_addc_u32 s9, s41, 0")
            I("v_lshlrev_b32 v8, 2, v1")
            I(f"global_store_dword v8, v{STV}, s[8:9]")
        I("s_endpgm")
    def spin_tail(lo,dn):
        I(f"s_cbranch_vccz {dn}")
        if psleep: I(f"s_sleep {psleep}")
        I("s_add_u32 s80, s80, 1"); I(f"s_cmp_lt_u32 s80, {SPIN}"); I(f"s_cbranch_scc1 {lo}")
        a.label(dn)
    def check_sent(regs,tmp):
        regs=list(regs); i=0; cur=None
        if len(regs)==1: cur=regs[0]
        else:
            while i<len(regs):
                if cur is None:
                    if len(regs)-i>=3: I(f"v_max3_u32 v{tmp}, v{regs[i]}, v{regs[i+1]}, v{regs[i+2]}"); i+=3
                    else: I(f"v_max_u32 v{tmp}, v{regs[i]}, v{regs[i+1]}"); i+=2
                    cur=tmp
                else:
                    if len(regs)-i>=2: I(f"v_max3_u32 v{tmp}, v{tmp}, v{regs[i]}, v{regs[i+1]}"); i+=2
                    else: I(f"v_max_u32 v{tmp}, v{tmp}, v{regs[i]}"); i+=1
        I(f"v_cmp_eq_u32 vcc, -1, v{cur}")
    def check_tags(tagregs,tmp,first=True):
        for k,r in enumerate(tagregs):
            if k==0 and first: I(f"v_xor_b32 v{tmp}, s95, v{r}")
            else: I(f"v_xad_u32 v{tmp}, v{r}, s95, v{tmp}")
    def poll(loads, sent=(), tags=(), name="p", tmp=0, mid=None):
        lo=L("poll"+name); dn=L("pd"+name)
        I("s_mov_b32 s80, 0")
        a.label(lo)
        for t in loads: I(t)
        I("s_waitcnt vmcnt(0)")
        if mid: mid()
        if sent and tags:
            check_tags(tags,tmp+1)
            check_sent(sent,tmp)
            I(f"v_cmp_ne_u32 s[10:11], 0, v{tmp+1}")
            I("s_or_b64 vcc, vcc, s[10:11]")
        elif tags:
            check_tags(tags,tmp); I(f"v_cmp_ne_u32 vcc, 0, v{tmp}")
        else:
            check_sent(sent,tmp)
        spin_tail(lo,dn)
    def setexec(lo,hi):
        I(f"s_mov_b32 exec_lo, {lo:#x}"); I(f"s_mov_b32 exec_hi, {hi:#x}")
    def fullexec(): I("s_mov_b64 exec, -1")
    def srd(dst, base, off, size):
        if off is None:
            I(f"s_mov_b32 s{dst}, s{base}"); I(f"s_mov_b32 s{dst+1}, s{base+1}")
        else:
            I(f"s_add_u32 s{dst}, s{base}, s{off}"); I(f"s_addc_u32 s{dst+1}, s{base+1}, 0")
        I(f"s_mov_b32 s{dst+2}, {size}"); I(f"s_mov_b32 s{dst+3}, 0x20000")
    def srd_rem(dst, base, off, total):
        I(f"s_add_u32 s{dst}, s{base}, s{off}"); I(f"s_addc_u32 s{dst+1}, s{base+1}, 0")
        I(f"s_sub_u32 s{dst+2}, {total}, s{off}"); I(f"s_mov_b32 s{dst+3}, 0x20000")
    def silu(vs,ts):
        for v,t in zip(vs,ts): I(f"v_mul_f32 v{t}, 0xbfb8aa3b, v{v}")
        for v,t in zip(vs,ts): I(f"v_exp_f32 v{t}, v{t}")
        for v,t in zip(vs,ts): I(f"v_add_f32 v{t}, 1.0, v{t}")
        for v,t in zip(vs,ts): I(f"v_rcp_f32 v{t}, v{t}")
        for v,t in zip(vs,ts): I(f"v_mul_f32 v{v}, v{v}, v{t}")
    def ln_stats(S,S2,mean_b,inv):
        I(f"v_mul_f32 v{S}, {INV576:#x}, v{S}")
        I(f"v_mul_f32 v{S2}, {INV576:#x}, v{S2}")
        I(f"v_fma_f32 v{S2}, -v{S}, v{S}, v{S2}")
        rnd(mean_b,S)
        I(f"v_max_f32 v{S2}, 0, v{S2}")
        rnd(S2,S2)
        I(f"v_add_f32 v{S2}, {EPS:#x}, v{S2}")
        rnd(S2,S2)
        I(f"v_sqrt_f32 v{S2}, v{S2}")
        rnd(S2,S2)
        I(f"v_rcp_f32 v{inv}, v{S2}")
    def unpack2(d0,d1,s):
        I(f"v_and_b32 v{d1}, 0xffff0000, v{s}")
        I(f"v_lshlrev_b32 v{d0}, 16, v{s}")
    def roles():
        I("s_mul_i32 s14, s5, 6"); I("s_add_u32 s14, s14, s6")
        I("s_mul_i32 s82, s5, 9"); I("s_add_u32 s82, s82, s6"); I("s_sub_u32 s82, s82, 7")
        I("s_cmp_lt_u32 s6, 6"); I("s_cselect_b32 s81, 1, 0")
        I("s_cmp_ge_u32 s6, 7"); I("s_cselect_b32 s81, 2, s81")
    def ws_setup():
        srd(44,40,None,WS_SIZE)
        I(f"s_mul_i32 s85, s4, {STRIDE}")
        I(f"s_movk_i32 s86, {STRIDE}")
    def tag():
        I(f"s_mul_i32 s95, s94, {HASH_A:#x}"); I(f"s_add_u32 s95, s95, {HASH_C:#x}")
    def epoch_load():
        I(f"s_add_u32 s8, s40, {EPOCH_OFF:#x}"); I("s_addc_u32 s9, s41, 0"); I("s_load_dword s94, s[8:9], 0")
    def diag_consts():
        for r,m in enumerate((0x03030303,0x0c0c0c0c,0x30303030,0xc0c0c0c0)):
            I(f"s_mov_b32 s{72+2*r}, {m:#x}"); I(f"s_mov_b32 s{73+2*r}, {m:#x}")
        I("v_and_b32 v162, 1, v1"); I("v_cmp_eq_u32 vcc, 1, v162")
        I("v_mov_b32 v162, 0xffff"); I("v_mov_b32 v163, 0xffff0000"); I("v_cndmask_b32 v162, v162, v163, vcc")
        I("v_cmp_gt_u32 vcc, 8, v3"); I("v_cndmask_b32 v162, 0, v162, vcc")
        I("v_lshlrev_b32 v163, 2, v2"); I("v_lshlrev_b32 v164, 4, v1")
    def matvec18(tile, AV, A0, A1, acc, tl):
        for i in range(18): I(f"ds_read_b32 v{AV+i}, v163 offset:{tl+16*i}")
        for i in range(18):
            if i in (0,6,12): I(f"s_waitcnt lgkmcnt({12-i if i<12 else 0})")
            A = A0 if i%2==0 else A1
            I(f"v_and_b32 v{AV+i}, v{AV+i}, v162")
            for r in range(4): I(f"v_cndmask_b32 v{A+r}, 0, v{AV+i}, s[{72+2*r}:{73+2*r}]")
            src = "0" if i==0 else vr(acc)
            I(f"v_mfma_f32_16x16x32_bf16 {vr(acc)}, {vr(A)}, {vr(tile+4*i)}, {src}")
    def code_touch(dst):
        I("s_getpc_b64 s[8:9]")
        lb=L("pc"); a.label(lb)
        I("s_bfe_u32 s7, s2, 0x30003"); I(f"s_mul_i32 s7, s7, {CODE_SLICE}")
        I(f"s_sub_u32 s8, s8, {lb}-{NAME}_kernel"); I("s_subb_u32 s9, s9, 0")
        I(f"v_lshlrev_b32 v{dst}, 4, v1")
        for k in range(CODE_SLICE//1024):
            I(f"v_add_u32 v{dst+1}, s7, v{dst}"); I(f"s_add_u32 s7, s7, 0x400")
            I(f"v_min_u32 v{dst+1}, L_end-{NAME}_kernel-16, v{dst+1}")
            I(f"global_load_dwordx4 {vr(dst+4+4*k)}, v{dst+1}, s[8:9]")

    a.raw(f"{NAME}_kernel:")
    I("s_cmp_ge_u32 s2, 256"); I("s_cbranch_scc1 L_end")
    I("s_load_dwordx16 s[16:31], s[0:1], 0")
    I("s_load_dwordx8 s[32:39], s[0:1], 64")
    I("s_load_dwordx2 s[40:41], s[0:1], 96")
    I("v_lshrrev_b32 v4, 6, v0")
    I("v_and_b32 v1, 63, v0")
    I("v_readfirstlane_b32 s3, v4")
    I("v_lshrrev_b32 v2, 4, v1")
    I("v_and_b32 v3, 15, v1")
    I("s_and_b32 s5, s2, 7"); I("s_lshl_b32 s5, s5, 1"); I("s_bfe_u32 s7, s2, 0x10003"); I("s_or_b32 s5, s5, s7")
    I("s_lshr_b32 s6, s2, 4")
    I("s_lshl_b32 s4, s5, 4"); I("s_or_b32 s4, s4, s6")
    if stamps: I("v_mov_b32 v7, 0")
    roles()
    I("s_cmp_eq_u32 s3, 0"); I("s_cbranch_scc1 L_ctrl")
    I("s_cmp_eq_u32 s3, 9"); I("s_cbranch_scc1 L_mod")
    I("s_cmp_eq_u32 s3, 10"); I("s_cbranch_scc1 L_clean")

    a.C("================ worker waves (1..8) ================")
    KB,VB,SB,TB=8,72,136,152
    I("s_sub_u32 s83, s3, 1")
    I("v_lshlrev_b32 v4, 8, v3"); I("v_lshl_add_u32 v4, v2, 4, v4")
    I("v_lshlrev_b32 v5, 10, v2"); I("v_lshl_add_u32 v5, v3, 4, v5")
    I("s_lshl_b32 s7, s4, 17"); I("s_lshl_b32 s8, s83, 14"); I("s_add_u32 s7, s7, s8")
    if rot:
        I("s_add_u32 s10, s4, s83")
        for t in range(4):
            I(f"s_add_u32 s11, s10, {t}"); I("s_and_b32 s11, s11, 3"); I(f"s_lshl_b32 s{68+t}, s11, 12")
    else:
        for t in range(4): I(f"s_mov_b32 s{68+t}, {t*4096}")
    soff=["s68","s69","s70","s71"]
    I("s_cmp_eq_u32 s81, 1"); nw_=L("dw1"); dd_=L("dwd"); I(f"s_cbranch_scc0 {nw_}")
    I("s_lshl_b32 s12, s5, 8"); I("s_lshl_b32 s13, s83, 5"); I("s_add_u32 s12, s12, s13"); I("s_mul_i32 s12, s12, 1152")
    I("s_mul_i32 s13, s6, 192"); I("s_add_u32 s12, s12, s13")
    I("s_mul_i32 s13, s83, 6144"); I(f"s_add_u32 s13, s13, {WAREA}"); I("s_mov_b32 s79, 0")
    I("s_movk_i32 s10, 0x1556"); I("s_movk_i32 s11, 0x480")
    for i_ in range(3):
        I(f"v_add_u32 v0, {64*i_}, v1"); I("v_mul_u32_u24 v6, s10, v0"); I("v_lshrrev_b32 v6, 16, v6")
        I("v_mul_u32_u24 v164, 12, v6"); I("v_sub_u32 v0, v0, v164")
        I("v_mul_u32_u24 v6, s11, v6"); I(f"v_lshl_add_u32 v{165+i_}, v0, 4, v6")
    I("s_mov_b32 s88, 0"); I("s_mov_b32 s89, 0"); I("s_mov_b32 s90, 0"); I("s_movk_i32 s91, 0x4800"); I("s_movk_i32 s92, 0x4800"); I("s_movk_i32 s93, 0x4800")
    I(f"s_branch {dd_}")
    a.label(nw_)
    I("s_mul_i32 s12, s3, 589824"); I("s_lshl_b32 s13, s82, 6"); I("s_add_u32 s12, s12, s13")
    I("s_mul_i32 s79, s82, 36864"); I("s_lshl_b32 s13, s3, 7"); I("s_add_u32 s79, s79, s13")
    I("s_lshl_b32 s13, s3, 13"); I(f"s_add_u32 s13, s13, {WAREA}")
    I("v_lshrrev_b32 v165, 2, v1"); I("s_movk_i32 s10, 0x2400"); I("v_mul_u32_u24 v165, s10, v165"); I("v_and_b32 v0, 3, v1"); I("v_lshl_add_u32 v165, v0, 4, v165")
    I("v_mov_b32 v166, v165")
    I("v_lshrrev_b32 v167, 3, v1"); I("s_movk_i32 s10, 0x480"); I("v_mul_u32_u24 v167, s10, v167"); I("v_and_b32 v0, 7, v1"); I("v_lshl_add_u32 v167, v0, 4, v167")
    I("s_mov_b32 s88, 0"); I("s_mov_b32 s89, 147456"); I("s_mov_b32 s90, 0"); I("s_mov_b32 s91, 294912"); I("s_mov_b32 s92, 442368"); I("s_movk_i32 s93, 0x2400")
    I("s_cmp_eq_u32 s81, 0"); I("s_cselect_b32 s12, 0, s12"); I("s_cselect_b32 s79, 0, s79")
    a.label(dd_)
    I("s_waitcnt lgkmcnt(0)")
    stamp(0)
    dstamp(0,True,1); dstamp(1,False,1)
    srd(48,18,7,16384); srd(52,20,7,16384)
    I("s_cmp_eq_u32 s81, 1"); I("s_cselect_b32 s56, s24, s28"); I("s_cselect_b32 s57, s25, s29"); I("s_mov_b32 s58, 5308416"); I("s_cselect_b32 s58, 4718592, s58")
    I("s_add_u32 s56, s56, s12"); I("s_addc_u32 s57, s57, 0"); I("s_sub_u32 s58, s58, s12"); I("s_mov_b32 s59, 0x20000")
    srd_rem(60,30,79,5308416)
    I("s_cmp_eq_u32 s81, 1"); I("s_cselect_b32 s60, s56, s60"); I("s_cselect_b32 s61, s57, s61"); I("s_cselect_b32 s62, s58, s62")
    I("s_cmp_eq_u32 s81, 0"); I("s_cselect_b32 s58, 0, s58"); I("s_cselect_b32 s62, 0, s62")
    (I("s_barrier") if not noB0 else None)
    def consts_w():
        ws_setup()
        I("v_and_b32 v152, 1, v1"); I("v_cmp_eq_u32 vcc, 1, v152")
        I("v_mov_b32 v152, 0xffff"); I("v_mov_b32 v153, 0xffff0000"); I("v_cndmask_b32 v152, v152, v153, vcc")
        I("v_bfe_u32 v153, v1, 1, 2")
        for r in range(4):
            I(f"v_cmp_eq_u32 vcc, {r}, v153"); I(f"v_cndmask_b32 v{160+r}, 0, v152, vcc")
        I("s_mov_b32 s72, 0xffff0000"); I("s_mov_b32 s73, 0"); I("s_mov_b32 s74, 0"); I("s_mov_b32 s75, 0xffff"); I("s_mov_b32 s76, 0"); I("s_mov_b32 s77, 0xffff0000")
    def stream(Wn, wo):
        if wo:
            I("v_lshlrev_b32 v0, 1, v2"); I("v_xor_b32 v0, v0, v3"); I("s_movk_i32 s10, 0x480"); I("v_mul_u32_u24 v6, s10, v2")
            I("v_lshl_add_u32 v164, v0, 4, v6"); I("v_xor_b32 v0, 8, v0"); I("v_lshl_add_u32 v165, v0, 4, v6")
            for i in range(8):
                I(f"s_add_u32 m0, s13, {i*1024}"); I(f"s_mov_b32 s84, {i*4608}")
                I(f"buffer_load_dwordx4 v{164+(i&1)}, s[56:59], s84 offen lds {wflag}".replace(" lds nt"," nt lds"))
                if i>=Wn-1: I(f"s_waitcnt vmcnt({Wn-1})")
        for t in range(4):
            for c in range(4):
                I(f"buffer_load_dwordx4 {vr(KB+(4*t+c)*4)}, v4, s[48:51], {soff[t]} offen offset:{c*64} {ldflag}")
                if wo or 4*t+c>=Wn-1: I(f"s_waitcnt vmcnt({Wn-1})")
        for idx in range(16):
            t,r=divmod(idx,4)
            I(f"buffer_load_dwordx4 {vr(VB+idx*4)}, v5, s[52:55], {soff[t]} offen offset:{r*256} {ldflag}")
            if idx<15: I(f"s_waitcnt vmcnt({(Wn if idx<6 else max(Wn,W2))-1})")
            if idx==3: consts_w()
    stream(W,False)
    MK=160; Q=152; ACC=8+40
    stamp(1)
    dstamp(3,False,8)
    I("s_barrier")
    stamp(2)
    I("v_lshrrev_b32 v5, 3, v3"); I("v_lshlrev_b32 v5, 8, v5"); I("v_lshl_add_u32 v5, v2, 4, v5")
    I(f"ds_read_b128 {vr(Q)}, v5 offset:{QL}"); I(f"ds_read_b128 {vr(Q+4)}, v5 offset:{QL+64}")
    I("s_waitcnt vmcnt(16)")
    for c in range(4):
        I(f"s_waitcnt lgkmcnt({1 if c<3 else 0})")
        qb=Q+4*(c%2)
        for t in range(4):
            src = "0" if c==0 else vr(SB+4*t)
            I(f"v_mfma_f32_16x16x32_bf16 {vr(SB+4*t)}, {vr(qb)}, {vr(KB+(4*t+c)*4)}, {src}")
        if c<2: I(f"ds_read_b128 {vr(qb)}, v5 offset:{QL+(c+2)*64}")
    S=[SB,SB+4,SB+8,SB+12]
    I("v_lshrrev_b32 v6, 1, v2"); I("v_lshlrev_b32 v0, 8, v6"); I("v_lshlrev_b32 v6, 5, v6")
    I("s_lshl_b32 s7, s83, 2"); I("v_add_u32 v4, s7, v6")
    I("s_lshl_b32 s9, s83, 9"); I(f"s_add_u32 s9, s9, {SCR}")
    I("v_lshl_add_u32 v0, v3, 2, v0"); I("v_add_u32 v0, s9, v0")
    for x in S: rnd(x,x)
    for x in S: I(f"v_mul_f32 v{x}, {SCALE:#x}, v{x}")
    for x in S: rnd(x,x)
    M=SB+1; M2=SB+2
    I(f"v_max3_f32 v{M}, v{S[0]}, v{S[1]}, v{S[2]}"); I(f"v_max_f32 v{M}, v{M}, v{S[3]}")
    for k in (8,4,2,1): ror("v_max_f32",[M],k)
    I(f"ds_write_b32 v4, v{M} offset:{WMAX}")
    I("s_waitcnt lgkmcnt(0)")
    I("s_barrier")
    I(f"ds_read_b128 {vr(Q)}, v6 offset:{WMAX}"); I(f"ds_read_b128 {vr(Q+4)}, v6 offset:{WMAX+16}")
    I("v_lshrrev_b32 v5, 3, v3"); I("v_lshlrev_b32 v5, 8, v5"); I("v_lshl_add_u32 v5, v2, 4, v5"); I("v_add_u32 v5, s9, v5")
    I(f"s_mov_b32 s7, {LOG2E:#x}")
    I("s_waitcnt lgkmcnt(0)")
    I(f"v_max3_f32 v{M}, v{Q}, v{Q+1}, v{Q+2}"); I(f"v_max3_f32 v{M2}, v{Q+3}, v{Q+4}, v{Q+5}")
    I(f"v_max3_f32 v{M}, v{M}, v{Q+6}, v{Q+7}"); I(f"v_max_f32 v{M}, v{M}, v{M2}")
    I(f"v_mul_f32 v{M}, 0xbfb8aa3b, v{M}")
    for x in S: I(f"v_fma_f32 v{x}, v{x}, s7, v{M}")
    for x in S: I(f"v_exp_f32 v{x}, v{x}")
    I(f"v_add_f32 v{M}, v{S[0]}, v{S[1]}"); I(f"v_add_f32 v{M2}, v{S[2]}, v{S[3]}")
    for x in S: dup(x,x)
    I(f"v_add_f32 v{M}, v{M}, v{M2}")
    for t,x in enumerate(S): I(f"ds_write_b32 v0, v{x} offset:{64*t}")
    for k in (8,4,2,1): ror("v_add_f32",[M],k)
    for t in range(4): I(f"ds_read_b128 {vr(SB+4*t) if t else vr(Q)}, v5 offset:{64*t}")
    I("v_lshrrev_b32 v6, 3, v6")
    setexec(1,1)
    I(f"ds_add_f32 v6, v{M} offset:{LSUM}")
    fullexec()
    I("s_waitcnt lgkmcnt(0)")
    I("s_barrier")
    for r in range(4): I(f"v_mov_b32 v{SB+r}, v{Q+r}")
    stamp(3)
    A0,A1=Q,Q+4
    I("v_lshrrev_b32 v4, 1, v2"); I("v_lshlrev_b32 v4, 9, v4"); I("v_lshl_add_u32 v4, v3, 5, v4")
    I("v_and_b32 v5, 1, v2"); I("v_lshl_add_u32 v4, v5, 4, v4")
    I("s_lshl_b32 s7, s83, 10"); I("v_add_u32 v4, s7, v4")
    for idx in range(16):
        A=A0 if idx%2==0 else A1
        for r in range(4): I(f"v_and_b32 v{A+r}, v{SB+idx}, v{MK+r}")
        I(f"s_waitcnt vmcnt({15-idx if idx<=10 else 5})")
        src="0" if idx==0 else vr(ACC)
        I(f"v_mfma_f32_16x16x32_bf16 {vr(ACC)}, {vr(A)}, {vr(VB+4*idx)}, {src}")
        if idx>=10:
            k=idx-10
            I(f"s_add_u32 m0, s13, {k*1024}"); I("s_nop 0")
            sr=60 if k%3==2 else 56
            I(f"buffer_load_dwordx4 v{165+k%3}, s[{sr}:{sr+3}], s{88+k} offen lds {wflag}".replace(" lds nt"," nt lds"))
    I(f"ds_write_b128 v4, {vr(ACC)} offset:{OBUF}")
    I("s_waitcnt lgkmcnt(0)")
    stamp(4)
    dstamp(4,False,8)
    I("s_barrier")
    if notail: finish()
    I("s_cmp_eq_u32 s81, 2"); I("s_cbranch_scc1 L_mlp_tail")
    I("s_cmp_eq_u32 s81, 1"); I("s_cbranch_scc1 L_wo_tail")
    finish()

    a.label("L_wo_tail")
    O1,O2,M1,T=72,76,80,88
    I("v_lshrrev_b32 v6, 2, v3"); I("v_lshl_add_u32 v4, v2, 3, v6"); I("s_movk_i32 s7, 192"); I("v_mul_u32_u24 v4, s7, v4")
    I("v_and_b32 v6, 3, v3"); I("v_lshl_add_u32 v4, v6, 3, v4"); I("v_add_u32 v86, s13, v4")
    I("v_bfe_u32 v6, v1, 1, 3"); I("s_lshl_b32 s7, s5, 4"); I("v_add_u32 v4, s7, v6"); I("v_mul_u32_u24 v4, s86, v4")
    I("v_and_b32 v5, 1, v1"); I("v_lshlrev_b32 v5, 4, v5"); I("v_lshl_add_u32 v5, v2, 5, v5")
    I("s_lshl_b32 s7, s83, 7"); I("v_add3_u32 v84, v4, v5, s7")
    I("s_lshr_b32 s7, s83, 2"); I("s_lshl_b32 s7, s7, 6"); I("v_lshl_add_u32 v85, v6, 2, s7")
    I(f"s_mov_b32 s84, {8*STRIDE}")
    I("s_waitcnt vmcnt(0)"); stamp(12)
    for c in range(6):
        I(f"ds_read_b64_tr_b16 v[{KB+4*c}:{KB+4*c+1}], v86 offset:{c*32}")
        I(f"ds_read_b64_tr_b16 v[{KB+4*c+2}:{KB+4*c+3}], v86 offset:{c*32+768}")
    I("s_barrier")
    I(f"ds_read_b32 v{M1}, v85 offset:{WGT}"); I(f"ds_read_b32 v{M1+1}, v85 offset:{WGT+32}")
    poll([f"buffer_load_dwordx4 {vr(O1)}, v84, s[44:47], 0 offen offset:{P3} sc1",
          f"buffer_load_dwordx4 {vr(O2)}, v84, s[44:47], s84 offen offset:{P3} sc1"],
         sent=list(range(72,80)), name="o", tmp=87)
    stamp(5)
    def red8(op,regs):
        for v in regs: dpp(op,v,v,v,"quad_perm:[2,3,0,1]")
        for v in regs: dpp(op,v,v,v,"row_ror:4")
        for v in regs: dpp(op,v,v,v,"row_ror:8")
    I("s_waitcnt lgkmcnt(0)")
    for r in range(4): I(f"v_mul_f32 v{O1+r}, v{M1}, v{O1+r}")
    for r in range(4): I(f"v_fmac_f32 v{O1+r}, v{M1+1}, v{O2+r}")
    red8("v_add_f32",[O1,O1+1,O1+2,O1+3])
    I(f"v_cvt_pk_bf16_f32 v{T}, v{O1}, v{O1+1}"); I(f"v_cvt_pk_bf16_f32 v{T+1}, v{O1+2}, v{O1+3}")
    AO=T+8
    I(f"v_mov_b32_dpp v{AO}, v{T} quad_perm:[0,0,2,2] row_mask:0xf bank_mask:0xf"); I(f"v_mov_b32_dpp v{AO+1}, v{T+1} quad_perm:[0,0,2,2] row_mask:0xf bank_mask:0xf")
    I(f"v_mov_b32_dpp v{AO+2}, v{T} quad_perm:[1,1,3,3] row_mask:0xf bank_mask:0xf"); I(f"v_mov_b32_dpp v{AO+3}, v{T+1} quad_perm:[1,1,3,3] row_mask:0xf bank_mask:0xf")
    D=100
    for c in range(6): I(f"v_mfma_f32_16x16x32_bf16 {vr(D+4*c)}, {vr(AO)}, {vr(KB+4*c)}, 0")
    I("v_lshlrev_b32 v4, 2, v1")
    I("s_lshl_b32 s7, s83, 9"); I("v_add_u32 v5, s7, v4")
    def sel4(dst,D0):
        I(f"v_cndmask_b32 v{dst}, v{D0}, v{D0+4}, s[72:73]")
        I(f"v_cndmask_b32 v{dst}, v{dst}, v{D0+8}, s[74:75]")
        I(f"v_cndmask_b32 v{dst}, v{dst}, v{D0+12}, s[76:77]")
    sel4(T,D)
    I(f"v_cndmask_b32 v{T+1}, v{D+16}, v{D+20}, s[72:73]")
    I(f"ds_write_b32 v5, v{T} offset:{RED}"); I(f"ds_write_b32 v5, v{T+1} offset:{RED+256}")
    I("s_waitcnt lgkmcnt(0)")
    I("s_barrier")
    I("s_cmp_lt_u32 s83, 2"); sk=L("wo_done"); I(f"s_cbranch_scc0 {sk}")
    I("s_lshl_b32 s7, s83, 8"); I("v_add_u32 v4, s7, v4")
    for k in range(4): I(f"ds_read2st64_b32 v[{T+2*k}:{T+2*k+1}], v4 offset0:{RED//256+4*k} offset1:{RED//256+4*k+2}")
    I("s_mul_i32 s7, s14, 384"); I(f"s_add_u32 s7, s7, {P4A:#x}")
    I("s_cmp_eq_u32 s83, 0"); I("s_cselect_b32 exec_hi, -1, 0")
    I("s_waitcnt lgkmcnt(0)")
    I(f"v_add_f32 v{T}, v{T}, v{T+1}"); I(f"v_add_f32 v{T+2}, v{T+2}, v{T+3}"); I(f"v_add_f32 v{T+4}, v{T+4}, v{T+5}"); I(f"v_add_f32 v{T+6}, v{T+6}, v{T+7}")
    I(f"v_add_f32 v{T}, v{T}, v{T+2}"); I(f"v_add_f32 v{T+4}, v{T+4}, v{T+6}"); I(f"v_add_f32 v{T}, v{T}, v{T+4}")
    I(f"buffer_store_dword v{T}, v4, s[44:47], s7 offen sc1")
    stamp(6)
    dstamp(6,False,1,0)
    a.label(sk)
    finish()

    a.label("L_mlp_tail")
    I("s_lshl_b32 s13, s3, 13"); I(f"s_add_u32 s13, s13, {WAREA}")
    I("v_lshrrev_b32 v4, 2, v1"); I("s_movk_i32 s7, 0x2400"); I("v_mul_u32_u24 v4, s7, v4"); I("v_and_b32 v5, 3, v1"); I("v_lshl_add_u32 v96, v5, 4, v4")
    I("s_mul_i32 s7, s3, 589824"); I("s_lshl_b32 s8, s82, 6"); I("s_add_u32 s7, s7, s8")
    srd_rem(56,28,7,5308416)
    I("v_lshrrev_b32 v4, 3, v1"); I("s_movk_i32 s7, 0x480"); I("v_mul_u32_u24 v4, s7, v4"); I("v_and_b32 v5, 7, v1"); I("v_lshl_add_u32 v97, v5, 4, v4")
    I("s_mul_i32 s7, s82, 36864"); I("s_lshl_b32 s8, s3, 7"); I("s_add_u32 s7, s7, s8")
    srd_rem(60,30,7,5308416)
    def mlp_dma():
        sk1=L("w1done")
        I("s_cmp_lg_u32 s3, 0"); I(f"s_cbranch_scc1 {sk1}")
        for i,off in enumerate((0,1024,3072,4096)):
            I(f"s_add_u32 m0, s13, {off}"); I(f"s_mov_b32 s84, {i*147456}")
            I(f"buffer_load_dwordx4 v96, s[56:59], s84 offen lds {wflag}".replace(" lds nt"," nt lds"))
        for i,off in enumerate((2048,5120)):
            I(f"s_add_u32 m0, s13, {off}"); I(f"s_mov_b32 s84, {i*9216}")
            I(f"buffer_load_dwordx4 v97, s[60:63], s84 offen lds {wflag}".replace(" lds nt"," nt lds"))
        a.label(sk1)
        for i,off in ((2,6144),(3,7168)):
            I(f"s_add_u32 m0, s13, {off}"); I(f"s_mov_b32 s84, {i*9216}")
            I(f"buffer_load_dwordx4 v97, s[60:63], s84 offen lds {wflag}".replace(" lds nt"," nt lds"))
    if not gate: mlp_dma()
    XV,GA,SBv,CBv,GBv=72,73,74,75,76
    I("v_lshlrev_b32 v77, 2, v1")
    I("s_lshl_b32 s7, s3, 7"); I("v_lshl_add_u32 v4, v1, 1, s7")
    srd(64,16,None,1152)
    I(f"buffer_load_ushort v{XV}, v4, s[64:67], 0 offen")
    for k,base in enumerate((1152,1728,2304,2880)):
        I(f"s_lshl_b32 s7, s3, 6"); I(f"s_add_u32 s7, s7, {base-1152}")
        I("s_lshr_b32 s8, s7, 7"); I("s_lshl_b32 s8, s8, 9")
        I("s_and_b32 s7, s7, 127"); I("s_lshl_b32 s7, s7, 2"); I("s_add_u32 s8, s8, s7"); I(f"s_add_u32 s{88+k}, s8, {P1BA:#x}")
    I("s_lshl_b32 s7, s3, 8"); I(f"s_add_u32 s15, s7, {P4A:#x}")
    G=80
    T=100
    I("v_lshrrev_b32 v4, 2, v3"); I("v_lshl_add_u32 v4, v2, 3, v4")
    I("v_and_b32 v5, 3, v3"); I("v_lshlrev_b32 v5, 3, v5")
    I("v_lshl_add_u32 v98, v4, 6, v5"); I("v_add_u32 v98, s13, v98")
    I("v_lshrrev_b32 v4, 2, v3"); I("v_lshl_add_u32 v99, v4, 7, v5"); I("v_lshl_add_u32 v99, v2, 10, v99")
    I("v_cmp_eq_u32 vcc, 0, v2"); I("v_mov_b32 v4, 4096"); I("v_mov_b32 v5, 2048"); I("v_cndmask_b32 v4, v4, v5, vcc"); I("v_add3_u32 v99, v99, v4, s13")
    B1,B2=8,24
    def trreads():
        for kk in range(2):
            for c in range(2):
                b=B1+4*(2*kk+c)
                I(f"ds_read_b64_tr_b16 v[{b}:{b+1}], v98 offset:{kk*3072+c*32}")
                I(f"ds_read_b64_tr_b16 v[{b+2}:{b+3}], v98 offset:{kk*3072+c*32+256}")
        for c in range(4):
            b=B2+4*c
            I(f"ds_read_b64_tr_b16 v[{b}:{b+1}], v99 offset:{c*32}")
            I(f"ds_read_b64_tr_b16 v[{b+2}:{b+3}], v99 offset:{c*32+512}")
    poll([f"buffer_load_dword v{GA+k}, v77, s[44:47], s{88+k} offen sc1" for k in range(4)], sent=list(range(GA,GA+4)), name="s", tmp=T)
    if not gate: trreads()
    I(f"v_lshlrev_b32 v{XV}, 16, v{XV}")
    I(f"v_add_f32 v{CBv}, 1.0, v{CBv}"); rnd(CBv,CBv)
    if gate==2:
        I("s_cmp_eq_u32 s3, 0"); ng_=L("nog"); I(f"s_cbranch_scc0 {ng_}")
        I(f"s_lshl_b32 s12, s5, 7"); I(f"s_add_u32 s12, s12, {F4A:#x}"); I("v_mov_b32 v4, 0")
        setexec(1,0)
        poll([f"buffer_load_dword v{T}, v4, s[44:47], s12 offen sc1","s_sleep 2"], tags=[T], name="c3", tmp=T+1)
        fullexec()
        a.label(ng_)
        I("s_barrier")
        mlp_dma()
    I("s_cmp_eq_u32 s3, 0"); nc_=L("nocan"); I(f"s_cbranch_scc0 {nc_}")
    I("v_lshlrev_b32 v4, 7, v1"); I(f"s_mov_b32 s12, {F4A:#x}")
    setexec(0xffff,0)
    poll([f"buffer_load_dword v{T}, v4, s[44:47], s12 offen sc1","s_sleep 1"], tags=[T], name="c4", tmp=T+1)
    fullexec()
    a.label(nc_)
    I("s_waitcnt lgkmcnt(0)")
    I("s_barrier")
    if gate==1: mlp_dma()
    lds_=["s_mov_b32 s84, s15"]
    for k in range(16):
        lds_.append(f"buffer_load_dword v{G+k}, v77, s[44:47], s84 offen sc1")
        if k<15: lds_.append(f"s_add_u32 s84, s84, 2304")
    poll(lds_, sent=list(range(G,G+16)), name="x", tmp=T, mid=(trreads if gate else None))
    stamp(9)
    if pad and padat=='mg': I("s_memrealtime s[42:43]")
    dstamp(7,False,1)
    if stamps: I(f"v_writelane_b32 v{STV}, s80, 14")
    for k in (0,2,4,6,8,10,12,14): I(f"v_add_f32 v{G+k}, v{G+k}, v{G+k+1}")
    for k in (0,4,8,12): I(f"v_add_f32 v{G+k}, v{G+k}, v{G+k+2}")
    I(f"v_add_f32 v{G}, v{G}, v{G+4}"); I(f"v_add_f32 v{G+8}, v{G+8}, v{G+12}")
    I(f"v_add_f32 v{G}, v{G}, v{G+8}")
    rnd(G,G); I(f"v_mul_f32 v{G}, v{G}, v{GA}"); rnd(G,G); I(f"v_add_f32 v{G}, v{G}, v{XV}")
    X1=G+1; rnd(X1,G)
    S,S2=T,T+1
    I(f"v_mov_b32 v{S}, v{X1}"); I(f"v_mul_f32 v{S2}, v{X1}, v{X1}")
    for k in (8,4,2,1): ror("v_add_f32",[S,S2],k)
    for v_ in (S,S2): I(f"v_add_f32_dpp v{v_}, v{v_}, v{v_} row_bcast:15 row_mask:0xa bank_mask:0xf")
    for v_ in (S,S2): I(f"v_add_f32_dpp v{v_}, v{v_}, v{v_} row_bcast:31 row_mask:0xc bank_mask:0xf")
    I("v_mov_b32 v4, 0")
    setexec(0,0x80000000)
    I(f"ds_add_f32 v4, v{S} offset:{STAT}"); I(f"ds_add_f32 v4, v{S2} offset:{STAT+4}")
    fullexec()
    I("s_lshl_b32 s9, s3, 9"); I(f"s_add_u32 s9, s9, {SCR}")
    I("v_lshl_add_u32 v5, v1, 1, s9")
    I("v_lshl_add_u32 v6, v2, 4, s9")
    I("s_waitcnt lgkmcnt(0)")
    I("s_barrier")
    I(f"ds_read_b64 v[{S}:{S+1}], v4 offset:{STAT}")
    I("s_waitcnt lgkmcnt(0)")
    ln_stats(S,S2,T+2,T+3)
    H=G+2
    I(f"v_sub_f32 v{H}, v{X1}, v{T+2}"); rnd(H,H); I(f"v_mul_f32 v{H}, v{H}, v{T+3}"); rnd(H,H)
    I(f"v_mul_f32 v{H}, v{H}, v{CBv}"); rnd(H,H); I(f"v_add_f32 v{H}, v{H}, v{SBv}")
    I(f"v_cvt_pk_bf16_f32 v{H}, v{H}, v{H}")
    I(f"ds_write_b16 v5, v{H}")
    AH=T+4
    I(f"ds_read_b128 {vr(AH)}, v6"); I(f"ds_read_b128 {vr(AH+4)}, v6 offset:64")
    D=T+12
    I("s_waitcnt lgkmcnt(1)")
    I(f"v_mfma_f32_16x16x32_bf16 {vr(D)}, {vr(AH)}, {vr(B1)}, 0"); I(f"v_mfma_f32_16x16x32_bf16 {vr(D+4)}, {vr(AH)}, {vr(B1+4)}, 0")
    I("s_waitcnt lgkmcnt(0)")
    I(f"v_mfma_f32_16x16x32_bf16 {vr(D)}, {vr(AH+4)}, {vr(B1+8)}, {vr(D)}"); I(f"v_mfma_f32_16x16x32_bf16 {vr(D+4)}, {vr(AH+4)}, {vr(B1+12)}, {vr(D+4)}")
    I(f"v_cndmask_b32 v{T}, v{D}, v{D+4}, s[72:73]")
    I("s_lshl_b32 s7, s3, 8"); I("v_add_u32 v4, s7, v77")
    I(f"ds_write_b32 v4, v{T} offset:{RED}")
    I("s_waitcnt lgkmcnt(0)")
    I("s_barrier")
    for k in range(4): I(f"ds_read2st64_b32 v[{T+2*k}:{T+2*k+1}], v77 offset0:{RED//256+2*k} offset1:{RED//256+2*k+1}")
    I(f"ds_read_b32 v{T+8}, v77 offset:{RED+8*256}")
    I("s_waitcnt lgkmcnt(0)")
    I(f"v_add_f32 v{T}, v{T}, v{T+1}"); I(f"v_add_f32 v{T+2}, v{T+2}, v{T+3}"); I(f"v_add_f32 v{T+4}, v{T+4}, v{T+5}"); I(f"v_add_f32 v{T+6}, v{T+6}, v{T+7}")
    I(f"v_add_f32 v{T}, v{T}, v{T+2}"); I(f"v_add_f32 v{T+4}, v{T+4}, v{T+6}"); I(f"v_add_f32 v{T}, v{T}, v{T+8}"); I(f"v_add_f32 v{T}, v{T}, v{T+4}")
    rnd(T,T); silu([T],[T+1])
    I(f"v_cvt_pk_bf16_f32 v{T}, v{T}, v{T}")
    I(f"ds_write_b16 v5, v{T} offset:256")
    I(f"ds_read_b128 {vr(AH)}, v6 offset:256")
    I("s_waitcnt lgkmcnt(0)")
    for c in range(4): I(f"v_mfma_f32_16x16x32_bf16 {vr(D+4*c)}, {vr(AH)}, {vr(B2+4*c)}, 0")
    I("s_lshl_b32 s7, s3, 8"); I("s_mul_i32 s8, s82, 2304"); I("s_add_u32 s7, s7, s8"); I(f"s_add_u32 s7, s7, {P5A:#x}")
    sel4(T,D)
    I(f"buffer_store_dword v{T}, v77, s[44:47], s7 offen sc1")
    stamp(10)
    if pad and padat=='mp': I("s_memrealtime s[42:43]")
    dstamp(8,False,1)
    I("s_cmp_lt_u32 s82, 9"); sk=L("mlp_done"); I(f"s_cbranch_scc0 {sk}")
    a.C("final reducers: CU u<9 handles column block u; wave wv gathers partials 16wv+pp+4k")
    F=84
    I(f"s_mul_i32 s7, s3, {16*2304}"); I("s_lshl_b32 s8, s82, 8"); I("s_add_u32 s12, s7, s8"); I(f"s_add_u32 s12, s12, {P5A:#x}")
    lds_=["s_mov_b32 s84, s12"]
    for k in range(16):
        lds_.append(f"buffer_load_dword v{F+k}, v77, s[44:47], s84 offen sc1")
        if k<15: lds_.append(f"s_add_u32 s84, s84, 2304")
    poll(lds_, sent=list(range(F,F+16)), name="f", tmp=T)
    stamp(11)
    dstamp(10,False,1)
    for k in (0,2,4,6,8,10,12,14): I(f"v_add_f32 v{F+k}, v{F+k}, v{F+k+1}")
    for k in (0,4,8,12): I(f"v_add_f32 v{F+k}, v{F+k}, v{F+k+2}")
    I(f"v_add_f32 v{F}, v{F}, v{F+4}"); I(f"v_add_f32 v{F+8}, v{F+8}, v{F+12}"); I(f"v_add_f32 v{F}, v{F}, v{F+8}")
    I("s_lshl_b32 s7, s3, 8"); I("v_add_u32 v4, s7, v77")
    I(f"ds_write_b32 v4, v{F} offset:{RED+2304}")
    I("s_waitcnt lgkmcnt(0)")
    I("s_barrier")
    I("s_cmp_eq_u32 s3, s82"); I(f"s_cbranch_scc0 {sk}")
    FB=(RED+2304)//256
    for k in range(4): I(f"ds_read2st64_b32 v[{T+2*k}:{T+2*k+1}], v77 offset0:{FB+2*k} offset1:{FB+2*k+1}")
    I(f"ds_read_b32 v{T+8}, v77 offset:{RED+2304+8*256}")
    I("s_lshl_b32 s7, s82, 7"); I("v_lshl_add_u32 v4, v1, 1, s7")
    srd(64,36,None,1152)
    I("s_waitcnt lgkmcnt(0)")
    I(f"v_add_f32 v{T}, v{T}, v{T+1}"); I(f"v_add_f32 v{T+2}, v{T+2}, v{T+3}"); I(f"v_add_f32 v{T+4}, v{T+4}, v{T+5}"); I(f"v_add_f32 v{T+6}, v{T+6}, v{T+7}")
    I(f"v_add_f32 v{T}, v{T}, v{T+2}"); I(f"v_add_f32 v{T+4}, v{T+4}, v{T+6}"); I(f"v_add_f32 v{T}, v{T}, v{T+8}"); I(f"v_add_f32 v{T}, v{T}, v{T+4}")
    rnd(T,T); I(f"v_mul_f32 v{T}, v{T}, v{GBv}"); rnd(T,T); I(f"v_add_f32 v{T}, v{T}, v{X1}")
    I(f"v_cvt_pk_bf16_f32 v{T}, v{T}, v{T}")
    I(f"buffer_store_short v{T}, v4, s[64:67], 0 offen")
    dstamp(9,False,0)
    I("s_cmp_eq_u32 s82, 0"); I(f"s_cbranch_scc0 {sk}")
    if pad:
        pl=L("pad"); a.label(pl)
        I("s_memrealtime s[96:97]"); I("s_waitcnt lgkmcnt(0)"); I("s_sub_u32 s96, s96, s42"); I(f"s_cmp_lt_u32 s96, {pad}"); I(f"s_cbranch_scc1 {pl}")
    I("v_mov_b32 v4, s95"); I("v_lshlrev_b32 v5, 2, v1"); I(f"s_mov_b32 s7, {EPOCH_OFF:#x}")
    setexec(0xffffffff,0)
    I("buffer_store_dword v4, v5, s[44:47], s7 offen sc1")
    a.label(sk)
    finish()

    a.label("L_clean")
    code_touch(8)
    I("v_mov_b32 v156, 0"); I("v_mov_b32 v157, 0"); I("v_mov_b32 v158, 0"); I("v_mov_b32 v159, 0")
    I("v_lshlrev_b32 v5, 4, v1")
    I("v_lshlrev_b32 v4, 2, v1"); I(f"ds_write_b32 v4, v156 offset:{WMAX}")
    I("s_waitcnt lgkmcnt(0)")
    stamp(0)
    epoch_load()
    ws_setup()
    if tlbw:
        I("s_mov_b32 s7, 82944"); I("v_mul_u32_u24 v20, s7, v1")
        srd(48,28,None,5308416); srd(52,30,None,5308416); srd(56,24,None,4718592)
        I("buffer_load_dword v21, v20, s[48:51], 0 offen"); I("buffer_load_dword v22, v20, s[52:55], 0 offen"); I("buffer_load_dword v23, v20, s[56:59], 0 offen")
    I("v_mov_b32 v156, -1"); I("v_mov_b32 v157, -1"); I("v_mov_b32 v158, -1"); I("v_mov_b32 v159, -1")
    if noclear: I("s_branch L_skipclr")
    I(f"buffer_store_dwordx4 v[156:159], v5, s[44:47], s85 offen offset:{P2} sc1")
    setexec(0xffffffff,0xff)
    I(f"buffer_store_dwordx4 v[156:159], v5, s[44:47], s85 offen offset:{P2+1024} sc1")
    fullexec()
    I("s_cmp_eq_u32 s81, 2"); nc=L("noclr"); I(f"s_cbranch_scc0 {nc}")
    I("s_mul_i32 s7, s82, 2304"); I(f"s_add_u32 s7, s7, {P5A:#x}")
    for k in range(2): I(f"buffer_store_dwordx4 v[156:159], v5, s[44:47], s7 offen offset:{1024*k} sc1")
    setexec(0xffff,0)
    I(f"buffer_store_dwordx4 v[156:159], v5, s[44:47], s7 offen offset:2048 sc1")
    fullexec()
    a.label(nc)
    I("s_cmp_eq_u32 s81, 1"); nc2=L("noclr2"); I(f"s_cbranch_scc0 {nc2}")
    I("s_mul_i32 s7, s14, 384"); I(f"s_add_u32 s7, s7, {P4A:#x}")
    setexec(0xffffff,0)
    I(f"buffer_store_dwordx4 v[156:159], v5, s[44:47], s7 offen sc1")
    fullexec()
    a.label(nc2)
    I("s_sub_u32 s8, 6, s6"); I("s_lshl_b32 s8, s8, 4"); I("s_add_u32 s8, s8, s5"); I("s_cmp_lt_u32 s8, 18"); I("s_cbranch_scc0 L_skipclr")
    I("s_lshl_b32 s7, s8, 9"); I(f"s_add_u32 s7, s7, {P1BA:#x}")
    setexec(0xffffffff,0)
    I(f"buffer_store_dwordx4 v[156:159], v5, s[44:47], s7 offen sc1")
    fullexec()
    a.label("L_skipclr")
    (I("s_barrier") if not noB0 else None)
    I("s_waitcnt vmcnt(0) lgkmcnt(0)")
    tag()
    I("v_mov_b32 v4, s95"); I("v_lshlrev_b32 v5, 2, v1")
    setexec(0xffffffff,0)
    I(f"buffer_store_dword v4, v5, s[44:47], s85 offen offset:{FL} sc1")
    stamp(1)
    I("s_cmp_eq_u32 s6, 6"); na=L("noagg"); I(f"s_cbranch_scc0 {na}")
    fullexec()
    I("s_lshl_b32 s7, s5, 4"); I("v_add_u32 v4, s7, v1"); I("v_mul_u32_u24 v4, s86, v4")
    setexec(0xffff,0)
    poll([f"buffer_load_dword v8, v4, s[44:47], 0 offen offset:{FL} sc1","s_sleep 8"],tags=[8],name="agg",tmp=9)
    fullexec()
    I("v_mov_b32 v4, s95"); I(f"s_lshl_b32 s7, s5, 7"); I(f"s_add_u32 s7, s7, {GCLR_OFF:#x}")
    setexec(0xffffffff,0)
    I(f"buffer_store_dword v4, v5, s[44:47], s7 offen sc1")
    a.label(na)
    finish()

    a.label("L_mod")
    TILE,XF,CV,XR,AV,A0,A1,ACC,GB,T=8,80,88,90,92,110,114,118,122,154
    I("s_setprio 2")
    I("s_waitcnt lgkmcnt(0)")
    stamp(0)
    epoch_load()
    srd(64,32,None,1152)
    I("s_and_b32 s7, s4, 7"); I("s_mul_i32 s7, s7, 144")
    I("v_lshlrev_b32 v4, 3, v1")
    I(f"buffer_load_dwordx2 v[{CV}:{CV+1}], v4, s[64:67], s7 offen")
    I("s_cmp_lt_u32 s4, 216"); nomod=L("nomod"); I(f"s_cbranch_scc0 {nomod}")
    I("s_and_b32 s7, s4, 7"); I("s_mul_i32 s7, s7, 497664")
    I("s_lshr_b32 s10, s4, 3"); I("s_lshl_b32 s10, s10, 8"); I("s_add_u32 s7, s7, s10")
    srd_rem(52,34,7,3981312)
    I("s_movk_i32 s7, 0x1b00"); I("v_mul_u32_u24 v4, s7, v2"); I("v_lshl_add_u32 v4, v3, 4, v4")
    for i in range(0 if notiles else 18):
        I(f"s_mov_b32 s84, {i*27648}")
        I(f"buffer_load_dwordx4 {vr(TILE+4*i)}, v4, s[52:55], s84 offen {wflag}")
    (I("s_barrier") if not noB0 else None)
    ws_setup(); diag_consts()
    I("s_waitcnt vmcnt(18)")
    for k in range(2): unpack2(T+2*k,T+2*k+1,CV+k)
    silu([T,T+1,T+2,T+3],[T+4,T+5,T+6,T+7])
    for r in range(4): dup(T+r,T+r)
    I(f"ds_write_b128 v164, {vr(T)} offset:{TL}")
    I("s_waitcnt vmcnt(0) lgkmcnt(0)")
    tag()
    stamp(1)
    matvec18(TILE,AV,A0,A1,ACC,TL)
    I(f"v_permlane32_swap_b32 v{ACC}, v{ACC+2}"); I(f"v_permlane32_swap_b32 v{ACC+1}, v{ACC+3}")
    I(f"v_mov_b32 v{A0}, v{ACC}"); I(f"v_mov_b32 v{A0+1}, s95"); I(f"v_mov_b32 v{A0+2}, v{ACC+1}"); I(f"v_mov_b32 v{A0+3}, s95")
    I(f"buffer_store_dwordx4 {vr(A0)}, v164, s[44:47], s85 offen offset:{P1} sc1")
    stamp(2)
    dstamp(11)
    finish()
    a.label(nomod)
    (I("s_barrier") if not noB0 else None)
    finish()

    a.label("L_ctrl")
    if pad and padat=='start': I("s_memrealtime s[42:43]")
    I("s_setprio 3")
    I("s_waitcnt lgkmcnt(0)")
    stamp(0)
    epoch_load()
    srd(48,16,None,1152)
    I("s_lshr_b32 s87, s6, 1"); I("s_mul_i32 s87, s87, 72")
    I("s_lshl_b32 s7, s87, 1")
    I("v_lshlrev_b32 v4, 3, v1")
    I(f"buffer_load_dwordx2 v[{XR}:{XR+1}], v4, s[48:51], s7 offen")
    I("v_lshlrev_b32 v5, 5, v1")
    I(f"buffer_load_dwordx4 {vr(XF)}, v5, s[48:51], 0 offen")
    I(f"buffer_load_dwordx4 {vr(XF+4)}, v5, s[48:51], 0 offen offset:16")
    I("s_lshl_b32 s7, s87, 13"); I("s_lshl_b32 s10, s5, 9"); I("s_add_u32 s7, s7, s10")
    I("s_and_b32 s10, s6, 1"); I("s_lshl_b32 s10, s10, 8"); I("s_add_u32 s7, s7, s10")
    srd_rem(52,22,7,4718592)
    I("v_lshlrev_b32 v4, 13, v2"); I("v_lshl_add_u32 v4, v3, 4, v4")
    for i in range(0 if notiles else 18):
        I(f"s_mov_b32 s84, {i*32768:#x}")
        I(f"buffer_load_dwordx4 {vr(TILE+4*i)}, v4, s[52:55], s84 offen {wflag}")
    (I("s_barrier") if not noB0 else None)
    ws_setup(); diag_consts()
    I("s_waitcnt vmcnt(18) lgkmcnt(0)")
    tag()
    stamp(1)
    S,S2=T,T+1
    I(f"v_mov_b32 v{S}, 0"); I(f"v_mov_b32 v{S2}, 0")
    for k in range(8):
        unpack2(T+2,T+3,XF+k)
        I(f"v_add_f32 v{S}, v{S}, v{T+2}"); I(f"v_fmac_f32 v{S2}, v{T+2}, v{T+2}")
        I(f"v_add_f32 v{S}, v{S}, v{T+3}"); I(f"v_fmac_f32 v{S2}, v{T+3}, v{T+3}")
    for k in (8,4,2,1): ror("v_add_f32",[S,S2],k)
    xswap("v_add_f32",[S,S2],[T+2,T+3],16); xswap("v_add_f32",[S,S2],[T+2,T+3],32)
    MB,INV=XF,XF+1
    ln_stats(S,S2,MB,INV)
    GA=92
    if nochain: I("s_branch L_skipchain")
    I("v_and_b32 v4, 31, v1"); I("v_lshl_add_u32 v4, v4, 2, s87")
    I("v_cmp_lt_u32 vcc, 31, v1"); I("v_mov_b32 v5, 576"); I("v_cndmask_b32 v5, 0, v5, vcc"); I("v_add_u32 v4, v4, v5")
    I("v_lshrrev_b32 v5, 7, v4"); I("v_lshlrev_b32 v5, 3, v5"); I("v_mul_u32_u24 v5, s86, v5")
    I("v_bfe_u32 v156, v4, 3, 4"); I("v_bfe_u32 v157, v4, 2, 1"); I("v_lshl_add_u32 v156, v157, 4, v156")
    I("v_lshl_add_u32 v4, v156, 4, v5")
    I("s_lshl_b32 s7, s5, 4"); I("v_add_u32 v158, s7, v1"); I("v_mul_u32_u24 v158, s86, v158")
    I("v_mov_b32 v159, s95")
    def soffs(n,step,base=88):
        res=["0"]
        for k in range(1,n):
            I(f"s_mov_b32 s{base+k-1}, {k*step}"); res.append(f"s{base+k-1}")
        return res
    so=soffs(8,STRIDE)
    def p1loads():
        l=[]
        for k in range(8):
            l.append(f"buffer_load_dwordx4 {vr(GA+8*k)}, v4, s[44:47], {so[k]} offen offset:{P1} sc1")
            l.append(f"buffer_load_dwordx4 {vr(GA+8*k+4)}, v4, s[44:47], {so[k]} offen offset:{P1+512} sc1")
        return l
    p1tags=[GA+8*k+o for k in range(8) for o in (1,3,5,7)]
    def p1sum(D):
        for r,o in enumerate((0,2,4,6)): I(f"v_add_f32 v{D+r}, v{GA+o}, v{GA+8+o}")
        for k in range(2,8):
            for r,o in enumerate((0,2,4,6)): I(f"v_add_f32 v{D+r}, v{D+r}, v{GA+8*k+o}")
    def sleep(nn):
        while nn>0:
            k=min(nn,120); I(f"s_sleep {k}"); nn-=k
    sleep(sl1)
    setexec(0x3ffff,0x3ffff)
    poll(p1loads()+["s_mov_b32 exec_lo, 0xffff","s_mov_b32 exec_hi, 0",f"buffer_load_dword v159, v158, s[44:47], 0 offen offset:{FL} sc1","s_mov_b32 exec_lo, 0x3ffff","s_mov_b32 exec_hi, 0x3ffff"],
         tags=p1tags+[159], name="m", tmp=160)
    fullexec()
    stamp(4)
    if pad and padat=='p1': I("s_memrealtime s[42:43]")
    p1sum(156)
    for r in range(4): rnd(GB+r,156+r)
    for r in range(4): I(f"v_mov_b32 v{GB+4+r}, v{GB+r}")
    for r in range(4): I(f"v_permlane32_swap_b32 v{GB+r}, v{GB+4+r}")
    H=GB+8; Tt=GB+12
    unpack2(H,H+1,XR); unpack2(H+2,H+3,XR+1)
    for r in range(4): I(f"v_sub_f32 v{H+r}, v{H+r}, v{MB}")
    for r in range(4): I(f"v_add_f32 v{Tt+r}, 1.0, v{GB+4+r}")
    for r in range(4): rnd(H+r,H+r)
    for r in range(4): rnd(Tt+r,Tt+r)
    for r in range(4): I(f"v_mul_f32 v{H+r}, v{H+r}, v{INV}")
    for r in range(4): rnd(H+r,H+r)
    for r in range(4): I(f"v_mul_f32 v{H+r}, v{H+r}, v{Tt+r}")
    for r in range(4): rnd(H+r,H+r)
    for r in range(4): I(f"v_add_f32 v{H+r}, v{H+r}, v{GB+r}")
    for r in range(4): dup(H+r,H+r)
    I(f"ds_write_b128 v164, {vr(H)} offset:{TL2}")
    I("s_waitcnt lgkmcnt(0)")
    matvec18(TILE,AV,A0,A1,ACC,TL2)
    I("v_lshlrev_b32 v4, 5, v3"); I("v_lshl_add_u32 v4, v2, 4, v4")
    setexec(0xffffffff,0)
    I(f"buffer_store_dwordx4 {vr(ACC)}, v4, s[44:47], s85 offen offset:{P2} sc1")
    fullexec()
    stamp(5)
    nr=L("nored")
    I("s_sub_u32 s13, 6, s6"); I("s_lshl_b32 s13, s13, 4"); I("s_add_u32 s13, s13, s5"); I("s_cmp_lt_u32 s13, 18"); I(f"s_cbranch_scc0 {nr}")
    I("s_add_u32 s7, s13, 9"); I(f"s_mul_i32 s7, s7, {8*STRIDE}")
    I("v_and_b32 v4, 1, v1"); I("v_lshrrev_b32 v5, 1, v1"); I("v_lshl_add_u32 v4, v4, 4, v5"); I("v_lshl_add_u32 v4, v4, 4, s7")
    setexec(0xffffffff,0)
    poll(p1loads(), tags=p1tags, name="b", tmp=160)
    p1sum(156)
    for r in range(4): rnd(156+r,156+r)
    I("s_lshl_b32 s7, s13, 9"); I(f"s_add_u32 s7, s7, {P1BA:#x}")
    I(f"buffer_store_dwordx4 v[156:159], v164, s[44:47], s7 offen sc1")
    fullexec()
    a.label(nr)
    I("v_lshrrev_b32 v4, 5, v1"); I("s_lshl_b32 s7, s5, 4"); I("v_add_u32 v4, s7, v4"); I("v_mul_u32_u24 v4, s86, v4")
    I("v_and_b32 v5, 31, v1"); I("v_lshl_add_u32 v4, v5, 4, v4")
    I("v_lshlrev_b32 v158, 7, v1"); I("v_mov_b32 v159, s95"); I(f"s_mov_b32 s12, {GCLR_OFF:#x}")
    so=soffs(8,2*STRIDE)
    sleep(sl2)
    poll([f"buffer_load_dwordx4 {vr(GB+4*k)}, v4, s[44:47], {so[k]} offen offset:{P2} sc1" for k in range(8)]+
         ["s_mov_b32 exec_lo, 0xffff","s_mov_b32 exec_hi, 0","buffer_load_dword v159, v158, s[44:47], s12 offen sc1","s_mov_b64 exec, -1"],
         sent=list(range(GB,GB+32)), tags=[159], name="q", tmp=160)
    for k in (0,2,4,6):
        for r in range(4): I(f"v_add_f32 v{GB+4*k+r}, v{GB+4*k+r}, v{GB+4*k+4+r}")
    for k in (0,4):
        for r in range(4): I(f"v_add_f32 v{GB+4*k+r}, v{GB+4*k+r}, v{GB+4*k+8+r}")
    for r in range(4): I(f"v_add_f32 v{GB+r}, v{GB+r}, v{GB+16+r}")
    I(f"v_cvt_pk_bf16_f32 v{GB+4}, v{GB}, v{GB+1}"); I(f"v_cvt_pk_bf16_f32 v{GB+5}, v{GB+2}, v{GB+3}")
    I("v_lshlrev_b32 v4, 3, v1")
    I(f"ds_write_b64 v4, v[{GB+4}:{GB+5}] offset:{QL}")
    I("s_waitcnt lgkmcnt(0)")
    a.label("L_skipchain")
    stamp(6)
    if pad and padat=='q': I("s_memrealtime s[42:43]")
    dstamp(2)
    I("s_barrier")
    code_touch(8)
    I("s_mov_b32 s72, 0xffff0000"); I("s_mov_b32 s73, 0"); I("s_mov_b32 s74, 0"); I("s_mov_b32 s75, 0xffff"); I("s_mov_b32 s76, 0"); I("s_mov_b32 s77, 0xffff0000")
    I("s_barrier")
    I("v_lshlrev_b32 v152, 4, v1"); I("v_mov_b32 v4, 0")
    I(f"ds_read_b128 {vr(80)}, v4 offset:{WMAX}"); I(f"ds_read_b128 {vr(84)}, v4 offset:{WMAX+16}")
    I(f"ds_read_b128 {vr(88)}, v4 offset:{WMAX+32}"); I(f"ds_read_b128 {vr(92)}, v4 offset:{WMAX+48}")
    I("s_waitcnt lgkmcnt(0)")
    R=96
    for h in range(2):
        b=80+8*h
        I(f"v_max3_f32 v{R+2*h}, v{b}, v{b+1}, v{b+2}"); I(f"v_max3_f32 v{R+2*h}, v{R+2*h}, v{b+3}, v{b+4}")
        I(f"v_max3_f32 v{R+2*h}, v{R+2*h}, v{b+5}, v{b+6}"); I(f"v_max_f32 v{R+2*h}, v{R+2*h}, v{b+7}")
    I("s_barrier")
    I(f"ds_read_b64 v[100:101], v4 offset:{LSUM}")
    I("s_waitcnt lgkmcnt(0)")
    I(f"v_mov_b32 v{R+1}, v100"); I(f"v_mov_b32 v{R+3}, v101")
    setexec(0xff,0)
    I(f"buffer_store_dwordx4 {vr(R)}, v152, s[44:47], s85 offen offset:{ML} sc1")
    fullexec()
    I("s_barrier")
    stamp(7)
    O=104
    for k in range(8): I(f"ds_read_b128 {vr(O+4*k)}, v152 offset:{OBUF+1024*k}")
    for k in (0,2,4,6):
        I(f"s_waitcnt lgkmcnt({6-k})")
        for r in range(4): I(f"v_add_f32 v{O+4*k+r}, v{O+4*k+r}, v{O+4*k+4+r}")
    for k in (0,4):
        for r in range(4): I(f"v_add_f32 v{O+4*k+r}, v{O+4*k+r}, v{O+4*k+8+r}")
    for r in range(4): I(f"v_add_f32 v{O+r}, v{O+r}, v{O+16+r}")
    I(f"buffer_store_dwordx4 {vr(O)}, v152, s[44:47], s85 offen offset:{P3} sc1")
    stamp(8)
    if pad and padat=='p3': I("s_memrealtime s[42:43]")
    dstamp(5)
    if notail: finish()
    I("s_cmp_eq_u32 s81, 2"); I("s_cbranch_scc1 L_mlp_tail")
    I("s_cmp_eq_u32 s81, 1"); cw=L("cwo"); I(f"s_cbranch_scc1 {cw}")
    finish()
    a.label(cw)
    a.C("wo role control: canary on the 16 ML lines, compute normalised split weights")
    I("s_lshl_b32 s7, s5, 4"); I("v_add_u32 v4, s7, v1"); I("v_mul_u32_u24 v4, s86, v4")
    setexec(0xffff,0)
    poll([f"buffer_load_dwordx4 {vr(80)}, v4, s[44:47], 0 offen offset:{ML} sc1"], sent=[80,81,82,83], name="ml", tmp=84)
    I("s_cmp_eq_u32 s6, 0"); nf=L("nof4"); I(f"s_cbranch_scc0 {nf}")
    fullexec()
    I("v_mov_b32 v5, s95"); I("v_lshlrev_b32 v6, 2, v1"); I("s_lshl_b32 s7, s5, 7"); I(f"s_add_u32 s7, s7, {F4A:#x}")
    setexec(0xffffffff,0)
    I("buffer_store_dword v5, v6, s[44:47], s7 offen sc1")
    setexec(0xffff,0)
    a.label(nf)
    I("v_mov_b32 v84, v80"); I("v_mov_b32 v85, v82")
    for k in (8,4,2,1): ror("v_max_f32",[84,85],k)
    I("v_sub_f32 v80, v80, v84"); I("v_sub_f32 v82, v82, v85")
    I(f"v_mul_f32 v80, {LOG2E:#x}, v80"); I(f"v_mul_f32 v82, {LOG2E:#x}, v82")
    I("v_exp_f32 v80, v80"); I("v_exp_f32 v82, v82")
    I("v_mul_f32 v84, v80, v81"); I("v_mul_f32 v85, v82, v83")
    for k in (8,4,2,1): ror("v_add_f32",[84,85],k)
    I("v_rcp_f32 v84, v84"); I("v_rcp_f32 v85, v85")
    I("v_mul_f32 v80, v80, v84"); I("v_mul_f32 v82, v82, v85")
    I("v_lshlrev_b32 v4, 2, v1")
    I(f"ds_write_b32 v4, v80 offset:{WGT}"); I(f"ds_write_b32 v4, v82 offset:{WGT+64}")
    I("s_waitcnt lgkmcnt(0)")
    fullexec()
    I("s_barrier")
    finish()
    a.label("L_end")
    I("s_endpgm")

    body=a.finish()
    out=HEADER
    out+=f"; @launch grid=(256,1,1) block=(704,1,1) lds={LDS_BYTES}\n"
    out+='.amdgcn_target "amdgcn-amd-amdhsa--gfx950"\n.text\n'
    out+=f".globl {NAME}_kernel\n.p2align 8\n.type {NAME}_kernel,@function\n"
    out+=body
    out+=f""".section .rodata,"a"
.p2align 6
.amdhsa_kernel {NAME}_kernel
  .amdhsa_next_free_vgpr 168
  .amdhsa_next_free_sgpr 100
  .amdhsa_accum_offset 168
  .amdhsa_group_segment_fixed_size 0
  .amdhsa_float_denorm_mode_32 3
  .amdhsa_kernarg_size 104
  .amdhsa_user_sgpr_count 2
  .amdhsa_user_sgpr_kernarg_segment_ptr 1
  .amdhsa_system_sgpr_workgroup_id_x 1
.end_amdhsa_kernel
"""
    return out

if __name__=="__main__":
    import argparse
    p=argparse.ArgumentParser()
    p.add_argument("-o",default="cdna_kernels/"+NAME+".s")
    p.add_argument("--W",type=int,default=4); p.add_argument("--Wwo",type=int,default=5)
    p.add_argument("--ld",default=""); p.add_argument("--wf",default=""); p.add_argument("--stamps",action="store_true")
    p.add_argument("--sl1",type=int,default=140); p.add_argument("--sl2",type=int,default=40); p.add_argument("--norot",action="store_true"); p.add_argument("--woearly",action="store_true"); p.add_argument("--W2",type=int,default=4); p.add_argument("--Ww",type=int,default=3); p.add_argument("--psleep",type=int,default=0); p.add_argument("--nowt",action="store_true"); p.add_argument("--notail",action="store_true"); p.add_argument("--gate",type=int,default=1); p.add_argument("--notlbw",action="store_true"); p.add_argument("--notiles",action="store_true"); p.add_argument("--nochain",action="store_true"); p.add_argument("--noclear",action="store_true"); p.add_argument("--noB0",action="store_true"); p.add_argument("--dbg",action="store_true"); p.add_argument("--pad",type=int,default=0); p.add_argument("--padat",default="start")
    x=p.parse_args()
    open(x.o,"w").write(gen(W=x.W,Wwo=x.Wwo,ldflag=x.ld,wflag=x.wf,stamps=x.stamps,sl1=x.sl1,sl2=x.sl2,rot=not x.norot,wolate=not x.woearly,W2=x.W2,Ww=x.Ww,psleep=x.psleep,nowt=x.nowt,notail=x.notail,gate=x.gate,tlbw=not x.notlbw,notiles=x.notiles,nochain=x.nochain,noclear=x.noclear,noB0=x.noB0,dbg=x.dbg,pad=x.pad,padat=x.padat))
```

```python
from asmlib import Asm

NAME="adaLN_cond__gqa_block_cached__dense_activation_silu__decode"
STRIDE=2816
P1,P2,P3,ML,FL=0,1024,1536,2560,2688
P4A,P5A,P1BA,F4A=0xB0000,0xBA000,0x10B000,0x10D400
GCLR_OFF=0x10E000; EPOCH_OFF=0x10F000; WS_SIZE=0x110000
QL,TL,TL2,WMAX,LSUM,STAT,WGT,RED,SCR,OBUF,WAREA=0,512,1536,2560,2624,2632,2688,2816,7424,12032,20224
WOA=WAREA
LDS_BYTES=WAREA+9*8192
SPIN=200000
LOG2E=0x3fb8aa3b
SCALE=0x3db504f3
EPS=0x3727c5ac
INV576=0x3ae38e39
STAMP_OFF=0x400000
HASH_A=0x9E3779B1; HASH_C=0x7F4A7C15
CODE_SLICE=2048
HEADER=open("cdna_kernels/"+NAME+".s.ref").read().split("; Override launch")[0]

def gen(W=4, W0=4, n0=0, Wwo=5, ldflag="", wflag="", stamps=False, sl1=140, sl2=40, rot=True, wolate=True, W2=4, Ww=3, psleep=0, nowt=False, notail=False, gate=1, tlbw=True, notiles=False, nochain=False, noclear=False, noB0=False, dbg=False, pad=0, padat='start'):
    a=Asm(); I=a.I
    uid=[0]
    def L(p):
        uid[0]+=1; return f"L_{p}_{uid[0]}"
    def vr(b,n=4): return f"v[{b}:{b+n-1}]"
    def rnd(d,s): I(f"v_cvt_pk_bf16_f32 v{d}, 0, v{s}")
    def dup(d,s): I(f"v_cvt_pk_bf16_f32 v{d}, v{s}, v{s}")
    def dpp(op,d,s0,s1,ctl): I(f"{op}_dpp v{d}, v{s0}, v{s1} {ctl} row_mask:0xf bank_mask:0xf")
    def ror(op,regs,k):
        for v in regs: dpp(op,v,v,v,f"row_ror:{k}")
    def xswap(op,regs,tmp,which):
        for v,t in zip(regs,tmp): I(f"v_mov_b32 v{t}, v{v}")
        for v,t in zip(regs,tmp): I(f"v_permlane{which}_swap_b32 v{v}, v{t}")
        for v,t in zip(regs,tmp): I(f"{op} v{v}, v{v}, v{t}")
    STV=7
    _I=I
    def I(t):
        if nowt and " lds" in t and "buffer_load" in t: return
        _I(t)
    DBGMAP={}
    def dstamp(slot, inv=False, only=None, wg=7):
        if not dbg or inv: return
        sk=L("ds")
        I(f"s_cmp_eq_u32 s4, {wg}"); I(f"s_cbranch_scc0 {sk}")
        if only is not None:
            I(f"s_cmp_eq_u32 s3, {only}"); I(f"s_cbranch_scc0 {sk}")
        I("s_memrealtime s[96:97]"); I("s_waitcnt lgkmcnt(0)")
        I("s_mov_b64 s[92:93], exec"); I("s_mov_b64 exec, 1")
        I("v_mov_b32 v7, s96"); I(f"v_mov_b32 v0, {slot*4}")
        I("global_store_dword v0, v7, s[38:39]")
        I("s_mov_b64 exec, s[92:93]")
        a.label(sk)
    def stamp(i):
        if dbg and i in DBGMAP: dstamp(*DBGMAP[i])
        if stamps:
            I("s_memrealtime s[96:97]"); I("s_waitcnt lgkmcnt(0)")
            I(f"v_writelane_b32 v{STV}, s96, {i}")
    def finish():
        if stamps:
            I("s_mov_b64 exec, -1")
            stamp(15)
            I("s_mul_i32 s7, s4, 11"); I("s_add_u32 s7, s7, s3"); I("s_lshl_b32 s7, s7, 8"); I(f"s_add_u32 s7, s7, {STAMP_OFF}")
            I("s_add_u32 s8, s40, s7"); I("s_addc_u32 s9, s41, 0")
            I("v_lshlrev_b32 v8, 2, v1")
            I(f"global_store_dword v8, v{STV}, s[8:9]")
        I("s_endpgm")
    def spin_tail(lo,dn):
        I(f"s_cbranch_vccz {dn}")
        if psleep: I(f"s_sleep {psleep}")
        I("s_add_u32 s80, s80, 1"); I(f"s_cmp_lt_u32 s80, {SPIN}"); I(f"s_cbranch_scc1 {lo}")
        a.label(dn)
    def check_sent(regs,tmp):
        regs=list(regs); i=0; cur=None
        if len(regs)==1: cur=regs[0]
        else:
            while i<len(regs):
                if cur is None:
                    if len(regs)-i>=3: I(f"v_max3_u32 v{tmp}, v{regs[i]}, v{regs[i+1]}, v{regs[i+2]}"); i+=3
                    else: I(f"v_max_u32 v{tmp}, v{regs[i]}, v{regs[i+1]}"); i+=2
                    cur=tmp
                else:
                    if len(regs)-i>=2: I(f"v_max3_u32 v{tmp}, v{tmp}, v{regs[i]}, v{regs[i+1]}"); i+=2
                    else: I(f"v_max_u32 v{tmp}, v{tmp}, v{regs[i]}"); i+=1
        I(f"v_cmp_eq_u32 vcc, -1, v{cur}")
    def check_tags(tagregs,tmp,first=True):
        for k,r in enumerate(tagregs):
            if k==0 and first: I(f"v_xor_b32 v{tmp}, s95, v{r}")
            else: I(f"v_xad_u32 v{tmp}, v{r}, s95, v{tmp}")
    def poll(loads, sent=(), tags=(), name="p", tmp=0, mid=None):
        lo=L("poll"+name); dn=L("pd"+name)
        I("s_mov_b32 s80, 0")
        a.label(lo)
        for t in loads: I(t)
        I("s_waitcnt vmcnt(0)")
        if mid: mid()
        if sent and tags:
            check_tags(tags,tmp+1)
            check_sent(sent,tmp)
            I(f"v_cmp_ne_u32 s[10:11], 0, v{tmp+1}")
            I("s_or_b64 vcc, vcc, s[10:11]")
        elif tags:
            check_tags(tags,tmp); I(f"v_cmp_ne_u32 vcc, 0, v{tmp}")
        else:
            check_sent(sent,tmp)
        spin_tail(lo,dn)
    def setexec(lo,hi):
        I(f"s_mov_b32 exec_lo, {lo:#x}"); I(f"s_mov_b32 exec_hi, {hi:#x}")
    def fullexec(): I("s_mov_b64 exec, -1")
    def srd(dst, base, off, size):
        if off is None:
            I(f"s_mov_b32 s{dst}, s{base}"); I(f"s_mov_b32 s{dst+1}, s{base+1}")
        else:
            I(f"s_add_u32 s{dst}, s{base}, s{off}"); I(f"s_addc_u32 s{dst+1}, s{base+1}, 0")
        I(f"s_mov_b32 s{dst+2}, {size}"); I(f"s_mov_b32 s{dst+3}, 0x20000")
    def srd_rem(dst, base, off, total):
        I(f"s_add_u32 s{dst}, s{base}, s{off}"); I(f"s_addc_u32 s{dst+1}, s{base+1}, 0")
        I(f"s_sub_u32 s{dst+2}, {total}, s{off}"); I(f"s_mov_b32 s{dst+3}, 0x20000")
    def silu(vs,ts):
        for v,t in zip(vs,ts): I(f"v_mul_f32 v{t}, 0xbfb8aa3b, v{v}")
        for v,t in zip(vs,ts): I(f"v_exp_f32 v{t}, v{t}")
        for v,t in zip(vs,ts): I(f"v_add_f32 v{t}, 1.0, v{t}")
        for v,t in zip(vs,ts): I(f"v_rcp_f32 v{t}, v{t}")
        for v,t in zip(vs,ts): I(f"v_mul_f32 v{v}, v{v}, v{t}")
    def ln_stats(S,S2,mean_b,inv):
        I(f"v_mul_f32 v{S}, {INV576:#x}, v{S}")
        I(f"v_mul_f32 v{S2}, {INV576:#x}, v{S2}")
        I(f"v_fma_f32 v{S2}, -v{S}, v{S}, v{S2}")
        rnd(mean_b,S)
        I(f"v_max_f32 v{S2}, 0, v{S2}")
        rnd(S2,S2)
        I(f"v_add_f32 v{S2}, {EPS:#x}, v{S2}")
        rnd(S2,S2)
        I(f"v_sqrt_f32 v{S2}, v{S2}")
        rnd(S2,S2)
        I(f"v_rcp_f32 v{inv}, v{S2}")
    def unpack2(d0,d1,s):
        I(f"v_and_b32 v{d1}, 0xffff0000, v{s}")
        I(f"v_lshlrev_b32 v{d0}, 16, v{s}")
    def roles():
        I("s_mul_i32 s14, s5, 6"); I("s_add_u32 s14, s14, s6")
        I("s_mul_i32 s82, s5, 9"); I("s_add_u32 s82, s82, s6"); I("s_sub_u32 s82, s82, 7")
        I("s_cmp_lt_u32 s6, 6"); I("s_cselect_b32 s81, 1, 0")
        I("s_cmp_ge_u32 s6, 7"); I("s_cselect_b32 s81, 2, s81")
    def ws_setup():
        srd(44,40,None,WS_SIZE)
        I(f"s_mul_i32 s85, s4, {STRIDE}")
        I(f"s_movk_i32 s86, {STRIDE}")
    def tag():
        I(f"s_mul_i32 s95, s94, {HASH_A:#x}"); I(f"s_add_u32 s95, s95, {HASH_C:#x}")
    def epoch_load():
        I(f"s_add_u32 s8, s40, {EPOCH_OFF:#x}"); I("s_addc_u32 s9, s41, 0"); I("s_load_dword s94, s[8:9], 0")
    def diag_consts():
        for r,m in enumerate((0x03030303,0x0c0c0c0c,0x30303030,0xc0c0c0c0)):
            I(f"s_mov_b32 s{72+2*r}, {m:#x}"); I(f"s_mov_b32 s{73+2*r}, {m:#x}")
        I("v_and_b32 v162, 1, v1"); I("v_cmp_eq_u32 vcc, 1, v162")
        I("v_mov_b32 v162, 0xffff"); I("v_mov_b32 v163, 0xffff0000"); I("v_cndmask_b32 v162, v162, v163, vcc")
        I("v_cmp_gt_u32 vcc, 8, v3"); I("v_cndmask_b32 v162, 0, v162, vcc")
        I("v_lshlrev_b32 v163, 2, v2"); I("v_lshlrev_b32 v164, 4, v1")
    def matvec18(tile, AV, A0, A1, acc, tl):
        for i in range(18): I(f"ds_read_b32 v{AV+i}, v163 offset:{tl+16*i}")
        for i in range(18):
            if i in (0,6,12): I(f"s_waitcnt lgkmcnt({12-i if i<12 else 0})")
            A = A0 if i%2==0 else A1
            I(f"v_and_b32 v{AV+i}, v{AV+i}, v162")
            for r in range(4): I(f"v_cndmask_b32 v{A+r}, 0, v{AV+i}, s[{72+2*r}:{73+2*r}]")
            src = "0" if i==0 else vr(acc)
            I(f"v_mfma_f32_16x16x32_bf16 {vr(acc)}, {vr(A)}, {vr(tile+4*i)}, {src}")
    def code_touch(dst):
        I("s_getpc_b64 s[8:9]")
        lb=L("pc"); a.label(lb)
        I("s_bfe_u32 s7, s2, 0x30003"); I(f"s_mul_i32 s7, s7, {CODE_SLICE}")
        I(f"s_sub_u32 s8, s8, {lb}-{NAME}_kernel"); I("s_subb_u32 s9, s9, 0")
        I(f"v_lshlrev_b32 v{dst}, 4, v1")
        for k in range(CODE_SLICE//1024):
            I(f"v_add_u32 v{dst+1}, s7, v{dst}"); I(f"s_add_u32 s7, s7, 0x400")
            I(f"v_min_u32 v{dst+1}, L_end-{NAME}_kernel-16, v{dst+1}")
            I(f"global_load_dwordx4 {vr(dst+4+4*k)}, v{dst+1}, s[8:9]")

    a.raw(f"{NAME}_kernel:")
    I("s_cmp_ge_u32 s2, 256"); I("s_cbranch_scc1 L_end")
    I("s_load_dwordx16 s[16:31], s[0:1], 0")
    I("s_load_dwordx8 s[32:39], s[0:1], 64")
    I("s_load_dwordx2 s[40:41], s[0:1], 96")
    I("v_lshrrev_b32 v4, 6, v0")
    I("v_and_b32 v1, 63, v0")
    I("v_readfirstlane_b32 s3, v4")
    I("v_lshrrev_b32 v2, 4, v1")
    I("v_and_b32 v3, 15, v1")
    I("s_and_b32 s5, s2, 7"); I("s_lshl_b32 s5, s5, 1"); I("s_bfe_u32 s7, s2, 0x10003"); I("s_or_b32 s5, s5, s7")
    I("s_lshr_b32 s6, s2, 4")
    I("s_lshl_b32 s4, s5, 4"); I("s_or_b32 s4, s4, s6")
    if stamps: I("v_mov_b32 v7, 0")
    roles()
    I("s_cmp_eq_u32 s3, 0"); I("s_cbranch_scc1 L_ctrl")
    I("s_cmp_eq_u32 s3, 9"); I("s_cbranch_scc1 L_mod")
    I("s_cmp_eq_u32 s3, 10"); I("s_cbranch_scc1 L_clean")

    a.C("================ worker waves (1..8) ================")
    KB,VB,SB,TB=8,72,136,152
    I("s_sub_u32 s83, s3, 1")
    I("v_lshlrev_b32 v4, 8, v3"); I("v_lshl_add_u32 v4, v2, 4, v4")
    I("v_lshlrev_b32 v5, 10, v2"); I("v_lshl_add_u32 v5, v3, 4, v5")
    I("s_lshl_b32 s7, s4, 17"); I("s_lshl_b32 s8, s83, 14"); I("s_add_u32 s7, s7, s8")
    if rot:
        I("s_add_u32 s10, s4, s83")
        for t in range(4):
            I(f"s_add_u32 s11, s10, {t}"); I("s_and_b32 s11, s11, 3"); I(f"s_lshl_b32 s{68+t}, s11, 12")
    else:
        for t in range(4): I(f"s_mov_b32 s{68+t}, {t*4096}")
    soff=["s68","s69","s70","s71"]
    I("s_cmp_eq_u32 s81, 1"); nw_=L("dw1"); dd_=L("dwd"); I(f"s_cbranch_scc0 {nw_}")
    I("s_lshl_b32 s12, s5, 8"); I("s_lshl_b32 s13, s83, 5"); I("s_add_u32 s12, s12, s13"); I("s_mul_i32 s12, s12, 1152")
    I("s_mul_i32 s13, s6, 192"); I("s_add_u32 s12, s12, s13")
    I("s_mul_i32 s13, s83, 6144"); I(f"s_add_u32 s13, s13, {WAREA}"); I("s_mov_b32 s79, 0")
    I("s_movk_i32 s10, 0x1556"); I("s_movk_i32 s11, 0x480")
    for i_ in range(3):
        I(f"v_add_u32 v0, {64*i_}, v1"); I("v_mul_u32_u24 v6, s10, v0"); I("v_lshrrev_b32 v6, 16, v6")
        I("v_mul_u32_u24 v164, 12, v6"); I("v_sub_u32 v0, v0, v164")
        I("v_mul_u32_u24 v6, s11, v6"); I(f"v_lshl_add_u32 v{165+i_}, v0, 4, v6")
    I("s_mov_b32 s88, 0"); I("s_mov_b32 s89, 0"); I("s_mov_b32 s90, 0"); I("s_movk_i32 s91, 0x4800"); I("s_movk_i32 s92, 0x4800"); I("s_movk_i32 s93, 0x4800")
    I(f"s_branch {dd_}")
    a.label(nw_)
    I("s_mul_i32 s12, s3, 589824"); I("s_lshl_b32 s13, s82, 6"); I("s_add_u32 s12, s12, s13")
    I("s_mul_i32 s79, s82, 36864"); I("s_lshl_b32 s13, s3, 7"); I("s_add_u32 s79, s79, s13")
    I("s_lshl_b32 s13, s3, 13"); I(f"s_add_u32 s13, s13, {WAREA}")
    I("v_lshrrev_b32 v165, 2, v1"); I("s_movk_i32 s10, 0x2400"); I("v_mul_u32_u24 v165, s10, v165"); I("v_and_b32 v0, 3, v1"); I("v_lshl_add_u32 v165, v0, 4, v165")
    I("v_mov_b32 v166, v165")
    I("v_lshrrev_b32 v167, 3, v1"); I("s_movk_i32 s10, 0x480"); I("v_mul_u32_u24 v167, s10, v167"); I("v_and_b32 v0, 7, v1"); I("v_lshl_add_u32 v167, v0, 4, v167")
    I("s_mov_b32 s88, 0"); I("s_mov_b32 s89, 147456"); I("s_mov_b32 s90, 0"); I("s_mov_b32 s91, 294912"); I("s_mov_b32 s92, 442368"); I("s_movk_i32 s93, 0x2400")
    I("s_cmp_eq_u32 s81, 0"); I("s_cselect_b32 s12, 0, s12"); I("s_cselect_b32 s79, 0, s79")
    a.label(dd_)
    I("s_waitcnt lgkmcnt(0)")
    stamp(0)
    dstamp(0,True,1); dstamp(1,False,1)
    srd(48,18,7,16384); srd(52,20,7,16384)
    I("s_cmp_eq_u32 s81, 1"); I("s_cselect_b32 s56, s24, s28"); I("s_cselect_b32 s57, s25, s29"); I("s_mov_b32 s58, 5308416"); I("s_cselect_b32 s58, 4718592, s58")
    I("s_add_u32 s56, s56, s12"); I("s_addc_u32 s57, s57, 0"); I("s_sub_u32 s58, s58, s12"); I("s_mov_b32 s59, 0x20000")
    srd_rem(60,30,79,5308416)
    I("s_cmp_eq_u32 s81, 1"); I("s_cselect_b32 s60, s56, s60"); I("s_cselect_b32 s61, s57, s61"); I("s_cselect_b32 s62, s58, s62")
    if gate in (3,4): I("s_cmp_lg_u32 s81, 1")
    else: I("s_cmp_eq_u32 s81, 0")
    I("s_cselect_b32 s58, 0, s58"); I("s_cselect_b32 s62, 0, s62")
    if gate==5:
        I("s_cmp_lg_u32 s81, 1"); I("s_cselect_b32 s62, 0, s62")
    (I("s_barrier") if not noB0 else None)
    def consts_w():
        ws_setup()
        I("v_and_b32 v152, 1, v1"); I("v_cmp_eq_u32 vcc, 1, v152")
        I("v_mov_b32 v152, 0xffff"); I("v_mov_b32 v153, 0xffff0000"); I("v_cndmask_b32 v152, v152, v153, vcc")
        I("v_bfe_u32 v153, v1, 1, 2")
        for r in range(4):
            I(f"v_cmp_eq_u32 vcc, {r}, v153"); I(f"v_cndmask_b32 v{160+r}, 0, v152, vcc")
        I("s_mov_b32 s72, 0xffff0000"); I("s_mov_b32 s73, 0"); I("s_mov_b32 s74, 0"); I("s_mov_b32 s75, 0xffff"); I("s_mov_b32 s76, 0"); I("s_mov_b32 s77, 0xffff0000")
    def stream(Wn, wo):
        if wo:
            I("v_lshlrev_b32 v0, 1, v2"); I("v_xor_b32 v0, v0, v3"); I("s_movk_i32 s10, 0x480"); I("v_mul_u32_u24 v6, s10, v2")
            I("v_lshl_add_u32 v164, v0, 4, v6"); I("v_xor_b32 v0, 8, v0"); I("v_lshl_add_u32 v165, v0, 4, v6")
            for i in range(8):
                I(f"s_add_u32 m0, s13, {i*1024}"); I(f"s_mov_b32 s84, {i*4608}")
                I(f"buffer_load_dwordx4 v{164+(i&1)}, s[56:59], s84 offen lds {wflag}".replace(" lds nt"," nt lds"))
                if i>=Wn-1: I(f"s_waitcnt vmcnt({Wn-1})")
        for t in range(4):
            for c in range(4):
                I(f"buffer_load_dwordx4 {vr(KB+(4*t+c)*4)}, v4, s[48:51], {soff[t]} offen offset:{c*64} {ldflag}")
                wk = W0 if 4*t+c<n0 else Wn
                if 4*t+c>=wk-1: I(f"s_waitcnt vmcnt({wk-1})")
        for idx in range(16):
            t,r=divmod(idx,4)
            I(f"buffer_load_dwordx4 {vr(VB+idx*4)}, v5, s[52:55], {soff[t]} offen offset:{r*256} {ldflag}")
            if idx<15: I(f"s_waitcnt vmcnt({(Wn if idx<6 else max(Wn,W2))-1})")
            if idx==3: consts_w()
    stream(W,False)
    MK=160; Q=152; ACC=8+40
    stamp(1)
    dstamp(3,False,8)
    I("s_barrier")
    stamp(2)
    I("v_lshrrev_b32 v5, 3, v3"); I("v_lshlrev_b32 v5, 8, v5"); I("v_lshl_add_u32 v5, v2, 4, v5")
    I(f"ds_read_b128 {vr(Q)}, v5 offset:{QL}"); I(f"ds_read_b128 {vr(Q+4)}, v5 offset:{QL+64}")
    I("s_waitcnt vmcnt(16)")
    for c in range(4):
        I(f"s_waitcnt lgkmcnt({1 if c<3 else 0})")
        qb=Q+4*(c%2)
        for t in range(4):
            src = "0" if c==0 else vr(SB+4*t)
            I(f"v_mfma_f32_16x16x32_bf16 {vr(SB+4*t)}, {vr(qb)}, {vr(KB+(4*t+c)*4)}, {src}")
        if c<2: I(f"ds_read_b128 {vr(qb)}, v5 offset:{QL+(c+2)*64}")
    S=[SB,SB+4,SB+8,SB+12]
    I("v_lshrrev_b32 v6, 1, v2"); I("v_lshlrev_b32 v0, 8, v6"); I("v_lshlrev_b32 v6, 5, v6")
    I("s_lshl_b32 s7, s83, 2"); I("v_add_u32 v4, s7, v6")
    I("s_lshl_b32 s9, s83, 9"); I(f"s_add_u32 s9, s9, {SCR}")
    I("v_lshl_add_u32 v0, v3, 2, v0"); I("v_add_u32 v0, s9, v0")
    for x in S: rnd(x,x)
    for x in S: I(f"v_mul_f32 v{x}, {SCALE:#x}, v{x}")
    for x in S: rnd(x,x)
    M=SB+1; M2=SB+2
    I(f"v_max3_f32 v{M}, v{S[0]}, v{S[1]}, v{S[2]}"); I(f"v_max_f32 v{M}, v{M}, v{S[3]}")
    for k in (8,4,2,1): ror("v_max_f32",[M],k)
    I(f"ds_write_b32 v4, v{M} offset:{WMAX}")
    I("s_waitcnt lgkmcnt(0)")
    I("s_barrier")
    I(f"ds_read_b128 {vr(Q)}, v6 offset:{WMAX}"); I(f"ds_read_b128 {vr(Q+4)}, v6 offset:{WMAX+16}")
    I("v_lshrrev_b32 v5, 3, v3"); I("v_lshlrev_b32 v5, 8, v5"); I("v_lshl_add_u32 v5, v2, 4, v5"); I("v_add_u32 v5, s9, v5")
    I(f"s_mov_b32 s7, {LOG2E:#x}")
    I("s_waitcnt lgkmcnt(0)")
    I(f"v_max3_f32 v{M}, v{Q}, v{Q+1}, v{Q+2}"); I(f"v_max3_f32 v{M2}, v{Q+3}, v{Q+4}, v{Q+5}")
    I(f"v_max3_f32 v{M}, v{M}, v{Q+6}, v{Q+7}"); I(f"v_max_f32 v{M}, v{M}, v{M2}")
    I(f"v_mul_f32 v{M}, 0xbfb8aa3b, v{M}")
    for x in S: I(f"v_fma_f32 v{x}, v{x}, s7, v{M}")
    for x in S: I(f"v_exp_f32 v{x}, v{x}")
    I(f"v_add_f32 v{M}, v{S[0]}, v{S[1]}"); I(f"v_add_f32 v{M2}, v{S[2]}, v{S[3]}")
    for x in S: dup(x,x)
    I(f"v_add_f32 v{M}, v{M}, v{M2}")
    for t,x in enumerate(S): I(f"ds_write_b32 v0, v{x} offset:{64*t}")
    for k in (8,4,2,1): ror("v_add_f32",[M],k)
    for t in range(4): I(f"ds_read_b128 {vr(SB+4*t) if t else vr(Q)}, v5 offset:{64*t}")
    I("v_lshrrev_b32 v6, 3, v6")
    setexec(1,1)
    I(f"ds_add_f32 v6, v{M} offset:{LSUM}")
    fullexec()
    I("s_waitcnt lgkmcnt(0)")
    I("s_barrier")
    for r in range(4): I(f"v_mov_b32 v{SB+r}, v{Q+r}")
    stamp(3)
    A0,A1=Q,Q+4
    I("v_lshrrev_b32 v4, 1, v2"); I("v_lshlrev_b32 v4, 9, v4"); I("v_lshl_add_u32 v4, v3, 5, v4")
    I("v_and_b32 v5, 1, v2"); I("v_lshl_add_u32 v4, v5, 4, v4")
    I("s_lshl_b32 s7, s83, 10"); I("v_add_u32 v4, s7, v4")
    for idx in range(16):
        A=A0 if idx%2==0 else A1
        for r in range(4): I(f"v_and_b32 v{A+r}, v{SB+idx}, v{MK+r}")
        I(f"s_waitcnt vmcnt({15-idx if idx<=10 else 5})")
        src="0" if idx==0 else vr(ACC)
        I(f"v_mfma_f32_16x16x32_bf16 {vr(ACC)}, {vr(A)}, {vr(VB+4*idx)}, {src}")
        if idx>=10:
            k=idx-10
            I(f"s_add_u32 m0, s13, {k*1024}"); I("s_nop 0")
            sr=60 if k%3==2 else 56
            I(f"buffer_load_dwordx4 v{165+k%3}, s[{sr}:{sr+3}], s{88+k} offen lds {wflag}".replace(" lds nt"," nt lds"))
    I(f"ds_write_b128 v4, {vr(ACC)} offset:{OBUF}")
    I("s_waitcnt lgkmcnt(0)")
    stamp(4)
    dstamp(4,False,8)
    I("s_barrier")
    if notail: finish()
    I("s_cmp_eq_u32 s81, 2"); I("s_cbranch_scc1 L_mlp_tail")
    I("s_cmp_eq_u32 s81, 1"); I("s_cbranch_scc1 L_wo_tail")
    finish()

    a.label("L_wo_tail")
    O1,O2,M1,T=72,76,80,88
    I("v_lshrrev_b32 v6, 2, v3"); I("v_lshl_add_u32 v4, v2, 3, v6"); I("s_movk_i32 s7, 192"); I("v_mul_u32_u24 v4, s7, v4")
    I("v_and_b32 v6, 3, v3"); I("v_lshl_add_u32 v4, v6, 3, v4"); I("v_add_u32 v86, s13, v4")
    I("v_bfe_u32 v6, v1, 1, 3"); I("s_lshl_b32 s7, s5, 4"); I("v_add_u32 v4, s7, v6"); I("v_mul_u32_u24 v4, s86, v4")
    I("v_and_b32 v5, 1, v1"); I("v_lshlrev_b32 v5, 4, v5"); I("v_lshl_add_u32 v5, v2, 5, v5")
    I("s_lshl_b32 s7, s83, 7"); I("v_add3_u32 v84, v4, v5, s7")
    I("s_lshr_b32 s7, s83, 2"); I("s_lshl_b32 s7, s7, 6"); I("v_lshl_add_u32 v85, v6, 2, s7")
    I(f"s_mov_b32 s84, {8*STRIDE}")
    I("s_waitcnt vmcnt(0)"); stamp(12)
    for c in range(6):
        I(f"ds_read_b64_tr_b16 v[{KB+4*c}:{KB+4*c+1}], v86 offset:{c*32}")
        I(f"ds_read_b64_tr_b16 v[{KB+4*c+2}:{KB+4*c+3}], v86 offset:{c*32+768}")
    I("s_barrier")
    I(f"ds_read_b32 v{M1}, v85 offset:{WGT}"); I(f"ds_read_b32 v{M1+1}, v85 offset:{WGT+32}")
    poll([f"buffer_load_dwordx4 {vr(O1)}, v84, s[44:47], 0 offen offset:{P3} sc1",
          f"buffer_load_dwordx4 {vr(O2)}, v84, s[44:47], s84 offen offset:{P3} sc1"],
         sent=list(range(72,80)), name="o", tmp=87)
    stamp(5)
    def red8(op,regs):
        for v in regs: dpp(op,v,v,v,"quad_perm:[2,3,0,1]")
        for v in regs: dpp(op,v,v,v,"row_ror:4")
        for v in regs: dpp(op,v,v,v,"row_ror:8")
    I("s_waitcnt lgkmcnt(0)")
    for r in range(4): I(f"v_mul_f32 v{O1+r}, v{M1}, v{O1+r}")
    for r in range(4): I(f"v_fmac_f32 v{O1+r}, v{M1+1}, v{O2+r}")
    red8("v_add_f32",[O1,O1+1,O1+2,O1+3])
    I(f"v_cvt_pk_bf16_f32 v{T}, v{O1}, v{O1+1}"); I(f"v_cvt_pk_bf16_f32 v{T+1}, v{O1+2}, v{O1+3}")
    AO=T+8
    I(f"v_mov_b32_dpp v{AO}, v{T} quad_perm:[0,0,2,2] row_mask:0xf bank_mask:0xf"); I(f"v_mov_b32_dpp v{AO+1}, v{T+1} quad_perm:[0,0,2,2] row_mask:0xf bank_mask:0xf")
    I(f"v_mov_b32_dpp v{AO+2}, v{T} quad_perm:[1,1,3,3] row_mask:0xf bank_mask:0xf"); I(f"v_mov_b32_dpp v{AO+3}, v{T+1} quad_perm:[1,1,3,3] row_mask:0xf bank_mask:0xf")
    D=100
    for c in range(6): I(f"v_mfma_f32_16x16x32_bf16 {vr(D+4*c)}, {vr(AO)}, {vr(KB+4*c)}, 0")
    I("v_lshlrev_b32 v4, 2, v1")
    I("s_lshl_b32 s7, s83, 9"); I("v_add_u32 v5, s7, v4")
    def sel4(dst,D0):
        I(f"v_cndmask_b32 v{dst}, v{D0}, v{D0+4}, s[72:73]")
        I(f"v_cndmask_b32 v{dst}, v{dst}, v{D0+8}, s[74:75]")
        I(f"v_cndmask_b32 v{dst}, v{dst}, v{D0+12}, s[76:77]")
    sel4(T,D)
    I(f"v_cndmask_b32 v{T+1}, v{D+16}, v{D+20}, s[72:73]")
    I(f"ds_write_b32 v5, v{T} offset:{RED}"); I(f"ds_write_b32 v5, v{T+1} offset:{RED+256}")
    I("s_waitcnt lgkmcnt(0)")
    I("s_barrier")
    I("s_cmp_lt_u32 s83, 2"); sk=L("wo_done"); I(f"s_cbranch_scc0 {sk}")
    I("s_lshl_b32 s7, s83, 8"); I("v_add_u32 v4, s7, v4")
    for k in range(4): I(f"ds_read2st64_b32 v[{T+2*k}:{T+2*k+1}], v4 offset0:{RED//256+4*k} offset1:{RED//256+4*k+2}")
    I("s_mul_i32 s7, s14, 384"); I(f"s_add_u32 s7, s7, {P4A:#x}")
    I("s_cmp_eq_u32 s83, 0"); I("s_cselect_b32 exec_hi, -1, 0")
    I("s_waitcnt lgkmcnt(0)")
    I(f"v_add_f32 v{T}, v{T}, v{T+1}"); I(f"v_add_f32 v{T+2}, v{T+2}, v{T+3}"); I(f"v_add_f32 v{T+4}, v{T+4}, v{T+5}"); I(f"v_add_f32 v{T+6}, v{T+6}, v{T+7}")
    I(f"v_add_f32 v{T}, v{T}, v{T+2}"); I(f"v_add_f32 v{T+4}, v{T+4}, v{T+6}"); I(f"v_add_f32 v{T}, v{T}, v{T+4}")
    I(f"buffer_store_dword v{T}, v4, s[44:47], s7 offen sc1")
    stamp(6)
    dstamp(6,False,1,0)
    a.label(sk)
    finish()

    a.label("L_mlp_tail")
    I("s_lshl_b32 s13, s3, 13"); I(f"s_add_u32 s13, s13, {WAREA}")
    I("v_lshrrev_b32 v4, 2, v1"); I("s_movk_i32 s7, 0x2400"); I("v_mul_u32_u24 v4, s7, v4"); I("v_and_b32 v5, 3, v1"); I("v_lshl_add_u32 v96, v5, 4, v4")
    I("s_mul_i32 s7, s3, 589824"); I("s_lshl_b32 s8, s82, 6"); I("s_add_u32 s7, s7, s8")
    srd_rem(56,28,7,5308416)
    I("v_lshrrev_b32 v4, 3, v1"); I("s_movk_i32 s7, 0x480"); I("v_mul_u32_u24 v4, s7, v4"); I("v_and_b32 v5, 7, v1"); I("v_lshl_add_u32 v97, v5, 4, v4")
    I("s_mul_i32 s7, s82, 36864"); I("s_lshl_b32 s8, s3, 7"); I("s_add_u32 s7, s7, s8")
    srd_rem(60,30,7,5308416)
    def dma_w1():
        for i,off in enumerate((0,1024,3072,4096)):
            I(f"s_add_u32 m0, s13, {off}"); I(f"s_mov_b32 s84, {i*147456}")
            I(f"buffer_load_dwordx4 v96, s[56:59], s84 offen lds {wflag}".replace(" lds nt"," nt lds"))
    def dma_w2(lst):
        for i,off in lst:
            I(f"s_add_u32 m0, s13, {off}"); I(f"s_mov_b32 s84, {i*9216}")
            I(f"buffer_load_dwordx4 v97, s[60:63], s84 offen lds {wflag}".replace(" lds nt"," nt lds"))
    def mlp_dma():
        sk1=L("w1done")
        if gate not in (3,4):
            I("s_cmp_lg_u32 s3, 0"); I(f"s_cbranch_scc1 {sk1}")
        dma_w1()
        if gate!=5: dma_w2(((0,2048),(1,5120)))
        a.label(sk1)
        if gate!=5: dma_w2(((2,6144),(3,7168)))
    if gate in (0,5): mlp_dma()
    XV,GA,SBv,CBv,GBv=72,73,74,75,76
    I("v_lshlrev_b32 v77, 2, v1")
    I("s_lshl_b32 s7, s3, 7"); I("v_lshl_add_u32 v4, v1, 1, s7")
    srd(64,16,None,1152)
    I(f"buffer_load_ushort v{XV}, v4, s[64:67], 0 offen")
    for k,base in enumerate((1152,1728,2304,2880)):
        I(f"s_lshl_b32 s7, s3, 6"); I(f"s_add_u32 s7, s7, {base-1152}")
        I("s_lshr_b32 s8, s7, 7"); I("s_lshl_b32 s8, s8, 9")
        I("s_and_b32 s7, s7, 127"); I("s_lshl_b32 s7, s7, 2"); I("s_add_u32 s8, s8, s7"); I(f"s_add_u32 s{88+k}, s8, {P1BA:#x}")
    I("s_lshl_b32 s7, s3, 8"); I(f"s_add_u32 s15, s7, {P4A:#x}")
    G=80
    T=100
    I("v_lshrrev_b32 v4, 2, v3"); I("v_lshl_add_u32 v4, v2, 3, v4")
    I("v_and_b32 v5, 3, v3"); I("v_lshlrev_b32 v5, 3, v5")
    I("v_lshl_add_u32 v98, v4, 6, v5"); I("v_add_u32 v98, s13, v98")
    I("v_lshrrev_b32 v4, 2, v3"); I("v_lshl_add_u32 v99, v4, 7, v5"); I("v_lshl_add_u32 v99, v2, 10, v99")
    I("v_cmp_eq_u32 vcc, 0, v2"); I("v_mov_b32 v4, 4096"); I("v_mov_b32 v5, 2048"); I("v_cndmask_b32 v4, v4, v5, vcc"); I("v_add3_u32 v99, v99, v4, s13")
    B1,B2=8,24
    def trreads():
        for kk in range(2):
            for c in range(2):
                b=B1+4*(2*kk+c)
                I(f"ds_read_b64_tr_b16 v[{b}:{b+1}], v98 offset:{kk*3072+c*32}")
                I(f"ds_read_b64_tr_b16 v[{b+2}:{b+3}], v98 offset:{kk*3072+c*32+256}")
        for c in range(4):
            b=B2+4*c
            I(f"ds_read_b64_tr_b16 v[{b}:{b+1}], v99 offset:{c*32}")
            I(f"ds_read_b64_tr_b16 v[{b+2}:{b+3}], v99 offset:{c*32+512}")
    poll([f"buffer_load_dword v{GA+k}, v77, s[44:47], s{88+k} offen sc1" for k in range(4)], sent=list(range(GA,GA+4)), name="s", tmp=T)
    if gate==0: trreads()
    I(f"v_lshlrev_b32 v{XV}, 16, v{XV}")
    I(f"v_add_f32 v{CBv}, 1.0, v{CBv}"); rnd(CBv,CBv)
    if gate in (2,4):
        I("s_cmp_eq_u32 s3, 0"); ng_=L("nog"); I(f"s_cbranch_scc0 {ng_}")
        I(f"s_lshl_b32 s12, s5, 7"); I(f"s_add_u32 s12, s12, {F4A:#x}"); I("v_mov_b32 v4, 0")
        setexec(1,0)
        poll([f"buffer_load_dword v{T}, v4, s[44:47], s12 offen sc1","s_sleep 2"], tags=[T], name="c3", tmp=T+1)
        fullexec()
        a.label(ng_)
        I("s_barrier")
        mlp_dma()
    I("s_cmp_eq_u32 s3, 0"); nc_=L("nocan"); I(f"s_cbranch_scc0 {nc_}")
    I("v_lshlrev_b32 v4, 7, v1"); I(f"s_mov_b32 s12, {F4A:#x}")
    setexec(0xffff,0)
    poll([f"buffer_load_dword v{T}, v4, s[44:47], s12 offen sc1","s_sleep 1"], tags=[T], name="c4", tmp=T+1)
    fullexec()
    a.label(nc_)
    I("s_waitcnt lgkmcnt(0)")
    I("s_barrier")
    if gate in (1,3): mlp_dma()
    if gate==5: dma_w2(((0,2048),(1,5120),(2,6144),(3,7168)))
    lds_=["s_mov_b32 s84, s15"]
    for k in range(16):
        lds_.append(f"buffer_load_dword v{G+k}, v77, s[44:47], s84 offen sc1")
        if k<15: lds_.append(f"s_add_u32 s84, s84, 2304")
    poll(lds_, sent=list(range(G,G+16)), name="x", tmp=T, mid=(trreads if gate else None))
    stamp(9)
    if pad and padat=='mg': I("s_memrealtime s[42:43]")
    dstamp(7,False,1)
    if stamps: I(f"v_writelane_b32 v{STV}, s80, 14")
    for k in (0,2,4,6,8,10,12,14): I(f"v_add_f32 v{G+k}, v{G+k}, v{G+k+1}")
    for k in (0,4,8,12): I(f"v_add_f32 v{G+k}, v{G+k}, v{G+k+2}")
    I(f"v_add_f32 v{G}, v{G}, v{G+4}"); I(f"v_add_f32 v{G+8}, v{G+8}, v{G+12}")
    I(f"v_add_f32 v{G}, v{G}, v{G+8}")
    rnd(G,G); I(f"v_mul_f32 v{G}, v{G}, v{GA}"); rnd(G,G); I(f"v_add_f32 v{G}, v{G}, v{XV}")
    X1=G+1; rnd(X1,G)
    S,S2=T,T+1
    I(f"v_mov_b32 v{S}, v{X1}"); I(f"v_mul_f32 v{S2}, v{X1}, v{X1}")
    for k in (8,4,2,1): ror("v_add_f32",[S,S2],k)
    for v_ in (S,S2): I(f"v_add_f32_dpp v{v_}, v{v_}, v{v_} row_bcast:15 row_mask:0xa bank_mask:0xf")
    for v_ in (S,S2): I(f"v_add_f32_dpp v{v_}, v{v_}, v{v_} row_bcast:31 row_mask:0xc bank_mask:0xf")
    I("v_mov_b32 v4, 0")
    setexec(0,0x80000000)
    I(f"ds_add_f32 v4, v{S} offset:{STAT}"); I(f"ds_add_f32 v4, v{S2} offset:{STAT+4}")
    fullexec()
    I("s_lshl_b32 s9, s3, 9"); I(f"s_add_u32 s9, s9, {SCR}")
    I("v_lshl_add_u32 v5, v1, 1, s9")
    I("v_lshl_add_u32 v6, v2, 4, s9")
    I("s_waitcnt lgkmcnt(0)")
    I("s_barrier")
    I(f"ds_read_b64 v[{S}:{S+1}], v4 offset:{STAT}")
    I("s_waitcnt lgkmcnt(0)")
    ln_stats(S,S2,T+2,T+3)
    H=G+2
    I(f"v_sub_f32 v{H}, v{X1}, v{T+2}"); rnd(H,H); I(f"v_mul_f32 v{H}, v{H}, v{T+3}"); rnd(H,H)
    I(f"v_mul_f32 v{H}, v{H}, v{CBv}"); rnd(H,H); I(f"v_add_f32 v{H}, v{H}, v{SBv}")
    I(f"v_cvt_pk_bf16_f32 v{H}, v{H}, v{H}")
    I(f"ds_write_b16 v5, v{H}")
    AH=T+4
    I(f"ds_read_b128 {vr(AH)}, v6"); I(f"ds_read_b128 {vr(AH+4)}, v6 offset:64")
    D=T+12
    I("s_waitcnt lgkmcnt(1)")
    I(f"v_mfma_f32_16x16x32_bf16 {vr(D)}, {vr(AH)}, {vr(B1)}, 0"); I(f"v_mfma_f32_16x16x32_bf16 {vr(D+4)}, {vr(AH)}, {vr(B1+4)}, 0")
    I("s_waitcnt lgkmcnt(0)")
    I(f"v_mfma_f32_16x16x32_bf16 {vr(D)}, {vr(AH+4)}, {vr(B1+8)}, {vr(D)}"); I(f"v_mfma_f32_16x16x32_bf16 {vr(D+4)}, {vr(AH+4)}, {vr(B1+12)}, {vr(D+4)}")
    I(f"v_cndmask_b32 v{T}, v{D}, v{D+4}, s[72:73]")
    I("s_lshl_b32 s7, s3, 8"); I("v_add_u32 v4, s7, v77")
    I(f"ds_write_b32 v4, v{T} offset:{RED}")
    I("s_waitcnt lgkmcnt(0)")
    I("s_barrier")
    for k in range(4): I(f"ds_read2st64_b32 v[{T+2*k}:{T+2*k+1}], v77 offset0:{RED//256+2*k} offset1:{RED//256+2*k+1}")
    I(f"ds_read_b32 v{T+8}, v77 offset:{RED+8*256}")
    I("s_waitcnt lgkmcnt(0)")
    I(f"v_add_f32 v{T}, v{T}, v{T+1}"); I(f"v_add_f32 v{T+2}, v{T+2}, v{T+3}"); I(f"v_add_f32 v{T+4}, v{T+4}, v{T+5}"); I(f"v_add_f32 v{T+6}, v{T+6}, v{T+7}")
    I(f"v_add_f32 v{T}, v{T}, v{T+2}"); I(f"v_add_f32 v{T+4}, v{T+4}, v{T+6}"); I(f"v_add_f32 v{T}, v{T}, v{T+8}"); I(f"v_add_f32 v{T}, v{T}, v{T+4}")
    rnd(T,T); silu([T],[T+1])
    I(f"v_cvt_pk_bf16_f32 v{T}, v{T}, v{T}")
    I(f"ds_write_b16 v5, v{T} offset:256")
    I(f"ds_read_b128 {vr(AH)}, v6 offset:256")
    I("s_waitcnt lgkmcnt(0)")
    for c in range(4): I(f"v_mfma_f32_16x16x32_bf16 {vr(D+4*c)}, {vr(AH)}, {vr(B2+4*c)}, 0")
    I("s_lshl_b32 s7, s3, 8"); I("s_mul_i32 s8, s82, 2304"); I("s_add_u32 s7, s7, s8"); I(f"s_add_u32 s7, s7, {P5A:#x}")
    sel4(T,D)
    I(f"buffer_store_dword v{T}, v77, s[44:47], s7 offen sc1")
    stamp(10)
    if pad and padat=='mp': I("s_memrealtime s[42:43]")
    dstamp(8,False,1)
    I("s_cmp_lt_u32 s82, 9"); sk=L("mlp_done"); I(f"s_cbranch_scc0 {sk}")
    a.C("final reducers: CU u<9 handles column block u; wave wv gathers partials 16wv+pp+4k")
    F=84
    I(f"s_mul_i32 s7, s3, {16*2304}"); I("s_lshl_b32 s8, s82, 8"); I("s_add_u32 s12, s7, s8"); I(f"s_add_u32 s12, s12, {P5A:#x}")
    lds_=["s_mov_b32 s84, s12"]
    for k in range(16):
        lds_.append(f"buffer_load_dword v{F+k}, v77, s[44:47], s84 offen sc1")
        if k<15: lds_.append(f"s_add_u32 s84, s84, 2304")
    poll(lds_, sent=list(range(F,F+16)), name="f", tmp=T)
    stamp(11)
    dstamp(10,False,1)
    for k in (0,2,4,6,8,10,12,14): I(f"v_add_f32 v{F+k}, v{F+k}, v{F+k+1}")
    for k in (0,4,8,12): I(f"v_add_f32 v{F+k}, v{F+k}, v{F+k+2}")
    I(f"v_add_f32 v{F}, v{F}, v{F+4}"); I(f"v_add_f32 v{F+8}, v{F+8}, v{F+12}"); I(f"v_add_f32 v{F}, v{F}, v{F+8}")
    I("s_lshl_b32 s7, s3, 8"); I("v_add_u32 v4, s7, v77")
    I(f"ds_write_b32 v4, v{F} offset:{RED+2304}")
    I("s_waitcnt lgkmcnt(0)")
    I("s_barrier")
    I("s_cmp_eq_u32 s3, s82"); I(f"s_cbranch_scc0 {sk}")
    FB=(RED+2304)//256
    for k in range(4): I(f"ds_read2st64_b32 v[{T+2*k}:{T+2*k+1}], v77 offset0:{FB+2*k} offset1:{FB+2*k+1}")
    I(f"ds_read_b32 v{T+8}, v77 offset:{RED+2304+8*256}")
    I("s_lshl_b32 s7, s82, 7"); I("v_lshl_add_u32 v4, v1, 1, s7")
    srd(64,36,None,1152)
    I("s_waitcnt lgkmcnt(0)")
    I(f"v_add_f32 v{T}, v{T}, v{T+1}"); I(f"v_add_f32 v{T+2}, v{T+2}, v{T+3}"); I(f"v_add_f32 v{T+4}, v{T+4}, v{T+5}"); I(f"v_add_f32 v{T+6}, v{T+6}, v{T+7}")
    I(f"v_add_f32 v{T}, v{T}, v{T+2}"); I(f"v_add_f32 v{T+4}, v{T+4}, v{T+6}"); I(f"v_add_f32 v{T}, v{T}, v{T+8}"); I(f"v_add_f32 v{T}, v{T}, v{T+4}")
    rnd(T,T); I(f"v_mul_f32 v{T}, v{T}, v{GBv}"); rnd(T,T); I(f"v_add_f32 v{T}, v{T}, v{X1}")
    I(f"v_cvt_pk_bf16_f32 v{T}, v{T}, v{T}")
    I(f"buffer_store_short v{T}, v4, s[64:67], 0 offen")
    dstamp(9,False,0)
    I("s_cmp_eq_u32 s82, 0"); I(f"s_cbranch_scc0 {sk}")
    if pad:
        pl=L("pad"); a.label(pl)
        I("s_memrealtime s[96:97]"); I("s_waitcnt lgkmcnt(0)"); I("s_sub_u32 s96, s96, s42"); I(f"s_cmp_lt_u32 s96, {pad}"); I(f"s_cbranch_scc1 {pl}")
    I("v_mov_b32 v4, s95"); I("v_lshlrev_b32 v5, 2, v1"); I(f"s_mov_b32 s7, {EPOCH_OFF:#x}")
    setexec(0xffffffff,0)
    I("buffer_store_dword v4, v5, s[44:47], s7 offen sc1")
    a.label(sk)
    finish()

    a.label("L_clean")
    code_touch(8)
    I("v_mov_b32 v156, 0"); I("v_mov_b32 v157, 0"); I("v_mov_b32 v158, 0"); I("v_mov_b32 v159, 0")
    I("v_lshlrev_b32 v5, 4, v1")
    I("v_lshlrev_b32 v4, 2, v1"); I(f"ds_write_b32 v4, v156 offset:{WMAX}")
    I("s_waitcnt lgkmcnt(0)")
    stamp(0)
    epoch_load()
    ws_setup()
    if tlbw:
        I("s_mov_b32 s7, 82944"); I("v_mul_u32_u24 v20, s7, v1")
        srd(48,28,None,5308416); srd(52,30,None,5308416); srd(56,24,None,4718592)
        I("buffer_load_dword v21, v20, s[48:51], 0 offen"); I("buffer_load_dword v22, v20, s[52:55], 0 offen"); I("buffer_load_dword v23, v20, s[56:59], 0 offen")
    I("v_mov_b32 v156, -1"); I("v_mov_b32 v157, -1"); I("v_mov_b32 v158, -1"); I("v_mov_b32 v159, -1")
    if noclear: I("s_branch L_skipclr")
    I(f"buffer_store_dwordx4 v[156:159], v5, s[44:47], s85 offen offset:{P2} sc1")
    setexec(0xffffffff,0xff)
    I(f"buffer_store_dwordx4 v[156:159], v5, s[44:47], s85 offen offset:{P2+1024} sc1")
    fullexec()
    I("s_cmp_eq_u32 s81, 2"); nc=L("noclr"); I(f"s_cbranch_scc0 {nc}")
    I("s_mul_i32 s7, s82, 2304"); I(f"s_add_u32 s7, s7, {P5A:#x}")
    for k in range(2): I(f"buffer_store_dwordx4 v[156:159], v5, s[44:47], s7 offen offset:{1024*k} sc1")
    setexec(0xffff,0)
    I(f"buffer_store_dwordx4 v[156:159], v5, s[44:47], s7 offen offset:2048 sc1")
    fullexec()
    a.label(nc)
    I("s_cmp_eq_u32 s81, 1"); nc2=L("noclr2"); I(f"s_cbranch_scc0 {nc2}")
    I("s_mul_i32 s7, s14, 384"); I(f"s_add_u32 s7, s7, {P4A:#x}")
    setexec(0xffffff,0)
    I(f"buffer_store_dwordx4 v[156:159], v5, s[44:47], s7 offen sc1")
    fullexec()
    a.label(nc2)
    I("s_sub_u32 s8, 6, s6"); I("s_lshl_b32 s8, s8, 4"); I("s_add_u32 s8, s8, s5"); I("s_cmp_lt_u32 s8, 18"); I("s_cbranch_scc0 L_skipclr")
    I("s_lshl_b32 s7, s8, 9"); I(f"s_add_u32 s7, s7, {P1BA:#x}")
    setexec(0xffffffff,0)
    I(f"buffer_store_dwordx4 v[156:159], v5, s[44:47], s7 offen sc1")
    fullexec()
    a.label("L_skipclr")
    (I("s_barrier") if not noB0 else None)
    I("s_waitcnt vmcnt(0) lgkmcnt(0)")
    tag()
    I("v_mov_b32 v4, s95"); I("v_lshlrev_b32 v5, 2, v1")
    setexec(0xffffffff,0)
    I(f"buffer_store_dword v4, v5, s[44:47], s85 offen offset:{FL} sc1")
    stamp(1)
    I("s_cmp_eq_u32 s6, 6"); na=L("noagg"); I(f"s_cbranch_scc0 {na}")
    fullexec()
    I("s_lshl_b32 s7, s5, 4"); I("v_add_u32 v4, s7, v1"); I("v_mul_u32_u24 v4, s86, v4")
    setexec(0xffff,0)
    poll([f"buffer_load_dword v8, v4, s[44:47], 0 offen offset:{FL} sc1","s_sleep 8"],tags=[8],name="agg",tmp=9)
    fullexec()
    I("v_mov_b32 v4, s95"); I(f"s_lshl_b32 s7, s5, 7"); I(f"s_add_u32 s7, s7, {GCLR_OFF:#x}")
    setexec(0xffffffff,0)
    I(f"buffer_store_dword v4, v5, s[44:47], s7 offen sc1")
    a.label(na)
    finish()

    a.label("L_mod")
    TILE,XF,CV,XR,AV,A0,A1,ACC,GB,T=8,80,88,90,92,110,114,118,122,154
    I("s_setprio 2")
    I("s_waitcnt lgkmcnt(0)")
    stamp(0)
    epoch_load()
    srd(64,32,None,1152)
    I("s_and_b32 s7, s4, 7"); I("s_mul_i32 s7, s7, 144")
    I("v_lshlrev_b32 v4, 3, v1")
    I(f"buffer_load_dwordx2 v[{CV}:{CV+1}], v4, s[64:67], s7 offen")
    I("s_cmp_lt_u32 s4, 216"); nomod=L("nomod"); I(f"s_cbranch_scc0 {nomod}")
    I("s_and_b32 s7, s4, 7"); I("s_mul_i32 s7, s7, 497664")
    I("s_lshr_b32 s10, s4, 3"); I("s_lshl_b32 s10, s10, 8"); I("s_add_u32 s7, s7, s10")
    srd_rem(52,34,7,3981312)
    I("s_movk_i32 s7, 0x1b00"); I("v_mul_u32_u24 v4, s7, v2"); I("v_lshl_add_u32 v4, v3, 4, v4")
    for i in range(0 if notiles else 18):
        I(f"s_mov_b32 s84, {i*27648}")
        I(f"buffer_load_dwordx4 {vr(TILE+4*i)}, v4, s[52:55], s84 offen {wflag}")
    (I("s_barrier") if not noB0 else None)
    ws_setup(); diag_consts()
    I("s_waitcnt vmcnt(18)")
    for k in range(2): unpack2(T+2*k,T+2*k+1,CV+k)
    silu([T,T+1,T+2,T+3],[T+4,T+5,T+6,T+7])
    for r in range(4): dup(T+r,T+r)
    I(f"ds_write_b128 v164, {vr(T)} offset:{TL}")
    I("s_waitcnt vmcnt(0) lgkmcnt(0)")
    tag()
    stamp(1)
    matvec18(TILE,AV,A0,A1,ACC,TL)
    I(f"v_permlane32_swap_b32 v{ACC}, v{ACC+2}"); I(f"v_permlane32_swap_b32 v{ACC+1}, v{ACC+3}")
    I(f"v_mov_b32 v{A0}, v{ACC}"); I(f"v_mov_b32 v{A0+1}, s95"); I(f"v_mov_b32 v{A0+2}, v{ACC+1}"); I(f"v_mov_b32 v{A0+3}, s95")
    I(f"buffer_store_dwordx4 {vr(A0)}, v164, s[44:47], s85 offen offset:{P1} sc1")
    stamp(2)
    dstamp(11)
    finish()
    a.label(nomod)
    (I("s_barrier") if not noB0 else None)
    finish()

    a.label("L_ctrl")
    if pad and padat=='start': I("s_memrealtime s[42:43]")
    I("s_setprio 3")
    I("s_waitcnt lgkmcnt(0)")
    stamp(0)
    epoch_load()
    srd(48,16,None,1152)
    I("s_lshr_b32 s87, s6, 1"); I("s_mul_i32 s87, s87, 72")
    I("s_lshl_b32 s7, s87, 1")
    I("v_lshlrev_b32 v4, 3, v1")
    I(f"buffer_load_dwordx2 v[{XR}:{XR+1}], v4, s[48:51], s7 offen")
    I("v_lshlrev_b32 v5, 5, v1")
    I(f"buffer_load_dwordx4 {vr(XF)}, v5, s[48:51], 0 offen")
    I(f"buffer_load_dwordx4 {vr(XF+4)}, v5, s[48:51], 0 offen offset:16")
    I("s_lshl_b32 s7, s87, 13"); I("s_lshl_b32 s10, s5, 9"); I("s_add_u32 s7, s7, s10")
    I("s_and_b32 s10, s6, 1"); I("s_lshl_b32 s10, s10, 8"); I("s_add_u32 s7, s7, s10")
    srd_rem(52,22,7,4718592)
    I("v_lshlrev_b32 v4, 13, v2"); I("v_lshl_add_u32 v4, v3, 4, v4")
    for i in range(0 if notiles else 18):
        I(f"s_mov_b32 s84, {i*32768:#x}")
        I(f"buffer_load_dwordx4 {vr(TILE+4*i)}, v4, s[52:55], s84 offen {wflag}")
    (I("s_barrier") if not noB0 else None)
    ws_setup(); diag_consts()
    I("s_waitcnt vmcnt(18) lgkmcnt(0)")
    tag()
    stamp(1)
    S,S2=T,T+1
    I(f"v_mov_b32 v{S}, 0"); I(f"v_mov_b32 v{S2}, 0")
    for k in range(8):
        unpack2(T+2,T+3,XF+k)
        I(f"v_add_f32 v{S}, v{S}, v{T+2}"); I(f"v_fmac_f32 v{S2}, v{T+2}, v{T+2}")
        I(f"v_add_f32 v{S}, v{S}, v{T+3}"); I(f"v_fmac_f32 v{S2}, v{T+3}, v{T+3}")
    for k in (8,4,2,1): ror("v_add_f32",[S,S2],k)
    xswap("v_add_f32",[S,S2],[T+2,T+3],16); xswap("v_add_f32",[S,S2],[T+2,T+3],32)
    MB,INV=XF,XF+1
    ln_stats(S,S2,MB,INV)
    GA=92
    if nochain: I("s_branch L_skipchain")
    I("v_and_b32 v4, 31, v1"); I("v_lshl_add_u32 v4, v4, 2, s87")
    I("v_cmp_lt_u32 vcc, 31, v1"); I("v_mov_b32 v5, 576"); I("v_cndmask_b32 v5, 0, v5, vcc"); I("v_add_u32 v4, v4, v5")
    I("v_lshrrev_b32 v5, 7, v4"); I("v_lshlrev_b32 v5, 3, v5"); I("v_mul_u32_u24 v5, s86, v5")
    I("v_bfe_u32 v156, v4, 3, 4"); I("v_bfe_u32 v157, v4, 2, 1"); I("v_lshl_add_u32 v156, v157, 4, v156")
    I("v_lshl_add_u32 v4, v156, 4, v5")
    I("s_lshl_b32 s7, s5, 4"); I("v_add_u32 v158, s7, v1"); I("v_mul_u32_u24 v158, s86, v158")
    I("v_mov_b32 v159, s95")
    def soffs(n,step,base=88):
        res=["0"]
        for k in range(1,n):
            I(f"s_mov_b32 s{base+k-1}, {k*step}"); res.append(f"s{base+k-1}")
        return res
    so=soffs(8,STRIDE)
    def p1loads():
        l=[]
        for k in range(8):
            l.append(f"buffer_load_dwordx4 {vr(GA+8*k)}, v4, s[44:47], {so[k]} offen offset:{P1} sc1")
            l.append(f"buffer_load_dwordx4 {vr(GA+8*k+4)}, v4, s[44:47], {so[k]} offen offset:{P1+512} sc1")
        return l
    p1tags=[GA+8*k+o for k in range(8) for o in (1,3,5,7)]
    def p1sum(D):
        for r,o in enumerate((0,2,4,6)): I(f"v_add_f32 v{D+r}, v{GA+o}, v{GA+8+o}")
        for k in range(2,8):
            for r,o in enumerate((0,2,4,6)): I(f"v_add_f32 v{D+r}, v{D+r}, v{GA+8*k+o}")
    def sleep(nn):
        while nn>0:
            k=min(nn,120); I(f"s_sleep {k}"); nn-=k
    sleep(sl1)
    setexec(0x3ffff,0x3ffff)
    poll(p1loads()+["s_mov_b32 exec_lo, 0xffff","s_mov_b32 exec_hi, 0",f"buffer_load_dword v159, v158, s[44:47], 0 offen offset:{FL} sc1","s_mov_b32 exec_lo, 0x3ffff","s_mov_b32 exec_hi, 0x3ffff"],
         tags=p1tags+[159], name="m", tmp=160)
    fullexec()
    stamp(4)
    if pad and padat=='p1': I("s_memrealtime s[42:43]")
    p1sum(156)
    for r in range(4): rnd(GB+r,156+r)
    for r in range(4): I(f"v_mov_b32 v{GB+4+r}, v{GB+r}")
    for r in range(4): I(f"v_permlane32_swap_b32 v{GB+r}, v{GB+4+r}")
    H=GB+8; Tt=GB+12
    unpack2(H,H+1,XR); unpack2(H+2,H+3,XR+1)
    for r in range(4): I(f"v_sub_f32 v{H+r}, v{H+r}, v{MB}")
    for r in range(4): I(f"v_add_f32 v{Tt+r}, 1.0, v{GB+4+r}")
    for r in range(4): rnd(H+r,H+r)
    for r in range(4): rnd(Tt+r,Tt+r)
    for r in range(4): I(f"v_mul_f32 v{H+r}, v{H+r}, v{INV}")
    for r in range(4): rnd(H+r,H+r)
    for r in range(4): I(f"v_mul_f32 v{H+r}, v{H+r}, v{Tt+r}")
    for r in range(4): rnd(H+r,H+r)
    for r in range(4): I(f"v_add_f32 v{H+r}, v{H+r}, v{GB+r}")
    for r in range(4): dup(H+r,H+r)
    I(f"ds_write_b128 v164, {vr(H)} offset:{TL2}")
    I("s_waitcnt lgkmcnt(0)")
    matvec18(TILE,AV,A0,A1,ACC,TL2)
    I("v_lshlrev_b32 v4, 5, v3"); I("v_lshl_add_u32 v4, v2, 4, v4")
    setexec(0xffffffff,0)
    I(f"buffer_store_dwordx4 {vr(ACC)}, v4, s[44:47], s85 offen offset:{P2} sc1")
    fullexec()
    stamp(5)
    nr=L("nored")
    I("s_sub_u32 s13, 6, s6"); I("s_lshl_b32 s13, s13, 4"); I("s_add_u32 s13, s13, s5"); I("s_cmp_lt_u32 s13, 18"); I(f"s_cbranch_scc0 {nr}")
    I("s_add_u32 s7, s13, 9"); I(f"s_mul_i32 s7, s7, {8*STRIDE}")
    I("v_and_b32 v4, 1, v1"); I("v_lshrrev_b32 v5, 1, v1"); I("v_lshl_add_u32 v4, v4, 4, v5"); I("v_lshl_add_u32 v4, v4, 4, s7")
    setexec(0xffffffff,0)
    poll(p1loads(), tags=p1tags, name="b", tmp=160)
    p1sum(156)
    for r in range(4): rnd(156+r,156+r)
    I("s_lshl_b32 s7, s13, 9"); I(f"s_add_u32 s7, s7, {P1BA:#x}")
    I(f"buffer_store_dwordx4 v[156:159], v164, s[44:47], s7 offen sc1")
    fullexec()
    a.label(nr)
    I("v_lshrrev_b32 v4, 5, v1"); I("s_lshl_b32 s7, s5, 4"); I("v_add_u32 v4, s7, v4"); I("v_mul_u32_u24 v4, s86, v4")
    I("v_and_b32 v5, 31, v1"); I("v_lshl_add_u32 v4, v5, 4, v4")
    I("v_lshlrev_b32 v158, 7, v1"); I("v_mov_b32 v159, s95"); I(f"s_mov_b32 s12, {GCLR_OFF:#x}")
    so=soffs(8,2*STRIDE)
    sleep(sl2)
    poll([f"buffer_load_dwordx4 {vr(GB+4*k)}, v4, s[44:47], {so[k]} offen offset:{P2} sc1" for k in range(8)]+
         ["s_mov_b32 exec_lo, 0xffff","s_mov_b32 exec_hi, 0","buffer_load_dword v159, v158, s[44:47], s12 offen sc1","s_mov_b64 exec, -1"],
         sent=list(range(GB,GB+32)), tags=[159], name="q", tmp=160)
    for k in (0,2,4,6):
        for r in range(4): I(f"v_add_f32 v{GB+4*k+r}, v{GB+4*k+r}, v{GB+4*k+4+r}")
    for k in (0,4):
        for r in range(4): I(f"v_add_f32 v{GB+4*k+r}, v{GB+4*k+r}, v{GB+4*k+8+r}")
    for r in range(4): I(f"v_add_f32 v{GB+r}, v{GB+r}, v{GB+16+r}")
    I(f"v_cvt_pk_bf16_f32 v{GB+4}, v{GB}, v{GB+1}"); I(f"v_cvt_pk_bf16_f32 v{GB+5}, v{GB+2}, v{GB+3}")
    I("v_lshlrev_b32 v4, 3, v1")
    I(f"ds_write_b64 v4, v[{GB+4}:{GB+5}] offset:{QL}")
    I("s_waitcnt lgkmcnt(0)")
    a.label("L_skipchain")
    stamp(6)
    if pad and padat=='q': I("s_memrealtime s[42:43]")
    dstamp(2)
    I("s_barrier")
    code_touch(8)
    I("s_mov_b32 s72, 0xffff0000"); I("s_mov_b32 s73, 0"); I("s_mov_b32 s74, 0"); I("s_mov_b32 s75, 0xffff"); I("s_mov_b32 s76, 0"); I("s_mov_b32 s77, 0xffff0000")
    I("s_barrier")
    I("v_lshlrev_b32 v152, 4, v1"); I("v_mov_b32 v4, 0")
    I(f"ds_read_b128 {vr(80)}, v4 offset:{WMAX}"); I(f"ds_read_b128 {vr(84)}, v4 offset:{WMAX+16}")
    I(f"ds_read_b128 {vr(88)}, v4 offset:{WMAX+32}"); I(f"ds_read_b128 {vr(92)}, v4 offset:{WMAX+48}")
    I("s_waitcnt lgkmcnt(0)")
    R=96
    for h in range(2):
        b=80+8*h
        I(f"v_max3_f32 v{R+2*h}, v{b}, v{b+1}, v{b+2}"); I(f"v_max3_f32 v{R+2*h}, v{R+2*h}, v{b+3}, v{b+4}")
        I(f"v_max3_f32 v{R+2*h}, v{R+2*h}, v{b+5}, v{b+6}"); I(f"v_max_f32 v{R+2*h}, v{R+2*h}, v{b+7}")
    I("s_barrier")
    I(f"ds_read_b64 v[100:101], v4 offset:{LSUM}")
    I("s_waitcnt lgkmcnt(0)")
    I(f"v_mov_b32 v{R+1}, v100"); I(f"v_mov_b32 v{R+3}, v101")
    setexec(0xff,0)
    I(f"buffer_store_dwordx4 {vr(R)}, v152, s[44:47], s85 offen offset:{ML} sc1")
    fullexec()
    I("s_barrier")
    stamp(7)
    O=104
    for k in range(8): I(f"ds_read_b128 {vr(O+4*k)}, v152 offset:{OBUF+1024*k}")
    for k in (0,2,4,6):
        I(f"s_waitcnt lgkmcnt({6-k})")
        for r in range(4): I(f"v_add_f32 v{O+4*k+r}, v{O+4*k+r}, v{O+4*k+4+r}")
    for k in (0,4):
        for r in range(4): I(f"v_add_f32 v{O+4*k+r}, v{O+4*k+r}, v{O+4*k+8+r}")
    for r in range(4): I(f"v_add_f32 v{O+r}, v{O+r}, v{O+16+r}")
    I(f"buffer_store_dwordx4 {vr(O)}, v152, s[44:47], s85 offen offset:{P3} sc1")
    stamp(8)
    if pad and padat=='p3': I("s_memrealtime s[42:43]")
    dstamp(5)
    if notail: finish()
    I("s_cmp_eq_u32 s81, 2"); I("s_cbranch_scc1 L_mlp_tail")
    I("s_cmp_eq_u32 s81, 1"); cw=L("cwo"); I(f"s_cbranch_scc1 {cw}")
    finish()
    a.label(cw)
    a.C("wo role control: canary on the 16 ML lines, compute normalised split weights")
    I("s_lshl_b32 s7, s5, 4"); I("v_add_u32 v4, s7, v1"); I("v_mul_u32_u24 v4, s86, v4")
    setexec(0xffff,0)
    poll([f"buffer_load_dwordx4 {vr(80)}, v4, s[44:47], 0 offen offset:{ML} sc1"], sent=[80,81,82,83], name="ml", tmp=84)
    I("s_cmp_eq_u32 s6, 0"); nf=L("nof4"); I(f"s_cbranch_scc0 {nf}")
    fullexec()
    I("v_mov_b32 v5, s95"); I("v_lshlrev_b32 v6, 2, v1"); I("s_lshl_b32 s7, s5, 7"); I(f"s_add_u32 s7, s7, {F4A:#x}")
    setexec(0xffffffff,0)
    I("buffer_store_dword v5, v6, s[44:47], s7 offen sc1")
    setexec(0xffff,0)
    a.label(nf)
    I("v_mov_b32 v84, v80"); I("v_mov_b32 v85, v82")
    for k in (8,4,2,1): ror("v_max_f32",[84,85],k)
    I("v_sub_f32 v80, v80, v84"); I("v_sub_f32 v82, v82, v85")
    I(f"v_mul_f32 v80, {LOG2E:#x}, v80"); I(f"v_mul_f32 v82, {LOG2E:#x}, v82")
    I("v_exp_f32 v80, v80"); I("v_exp_f32 v82, v82")
    I("v_mul_f32 v84, v80, v81"); I("v_mul_f32 v85, v82, v83")
    for k in (8,4,2,1): ror("v_add_f32",[84,85],k)
    I("v_rcp_f32 v84, v84"); I("v_rcp_f32 v85, v85")
    I("v_mul_f32 v80, v80, v84"); I("v_mul_f32 v82, v82, v85")
    I("v_lshlrev_b32 v4, 2, v1")
    I(f"ds_write_b32 v4, v80 offset:{WGT}"); I(f"ds_write_b32 v4, v82 offset:{WGT+64}")
    I("s_waitcnt lgkmcnt(0)")
    fullexec()
    I("s_barrier")
    finish()
    a.label("L_end")
    I("s_endpgm")

    body=a.finish()
    out=HEADER
    out+=f"; @launch grid=(256,1,1) block=(704,1,1) lds={LDS_BYTES}\n"
    out+='.amdgcn_target "amdgcn-amd-amdhsa--gfx950"\n.text\n'
    out+=f".globl {NAME}_kernel\n.p2align 8\n.type {NAME}_kernel,@function\n"
    out+=body
    out+=f""".section .rodata,"a"
.p2align 6
.amdhsa_kernel {NAME}_kernel
  .amdhsa_next_free_vgpr 168
  .amdhsa_next_free_sgpr 100
  .amdhsa_accum_offset 168
  .amdhsa_group_segment_fixed_size 0
  .amdhsa_float_denorm_mode_32 3
  .amdhsa_kernarg_size 104
  .amdhsa_user_sgpr_count 2
  .amdhsa_user_sgpr_kernarg_segment_ptr 1
  .amdhsa_system_sgpr_workgroup_id_x 1
.end_amdhsa_kernel
"""
    return out

if __name__=="__main__":
    import argparse
    p=argparse.ArgumentParser()
    p.add_argument("-o",default="cdna_kernels/"+NAME+".s")
    p.add_argument("--W",type=int,default=4); p.add_argument("--W0",type=int,default=4); p.add_argument("--n0",type=int,default=0); p.add_argument("--Wwo",type=int,default=5)
    p.add_argument("--ld",default=""); p.add_argument("--wf",default=""); p.add_argument("--stamps",action="store_true")
    p.add_argument("--sl1",type=int,default=140); p.add_argument("--sl2",type=int,default=40); p.add_argument("--norot",action="store_true"); p.add_argument("--woearly",action="store_true"); p.add_argument("--W2",type=int,default=4); p.add_argument("--Ww",type=int,default=3); p.add_argument("--psleep",type=int,default=0); p.add_argument("--nowt",action="store_true"); p.add_argument("--notail",action="store_true"); p.add_argument("--gate",type=int,default=1); p.add_argument("--notlbw",action="store_true"); p.add_argument("--notiles",action="store_true"); p.add_argument("--nochain",action="store_true"); p.add_argument("--noclear",action="store_true"); p.add_argument("--noB0",action="store_true"); p.add_argument("--dbg",action="store_true"); p.add_argument("--pad",type=int,default=0); p.add_argument("--padat",default="start")
    x=p.parse_args()
    open(x.o,"w").write(gen(W=x.W,W0=x.W0,n0=x.n0,Wwo=x.Wwo,ldflag=x.ld,wflag=x.wf,stamps=x.stamps,sl1=x.sl1,sl2=x.sl2,rot=not x.norot,wolate=not x.woearly,W2=x.W2,Ww=x.Ww,psleep=x.psleep,nowt=x.nowt,notail=x.notail,gate=x.gate,tlbw=not x.notlbw,notiles=x.notiles,nochain=x.nochain,noclear=x.noclear,noB0=x.noB0,dbg=x.dbg,pad=x.pad,padat=x.padat))
```

```python
from asmlib import Asm

NAME="adaLN_cond__gqa_block_cached__dense_activation_silu__decode"
STRIDE=2816
P1,P2,P3,ML,FL=0,1024,1536,2560,2688
P4A,P5A,P1BA,F4A=0xB0000,0xBA000,0x10B000,0x10D400
GCLR_OFF=0x10E000; EPOCH_OFF=0x10F000; WS_SIZE=0x110000
QL,TL,TL2,WMAX,LSUM,STAT,WGT,RED,SCR,OBUF,WAREA=0,512,1536,2560,2624,2632,2688,2816,7424,12032,20224
WOA=WAREA
LDS_BYTES=WAREA+9*8192
SPIN=200000
LOG2E=0x3fb8aa3b
SCALE=0x3db504f3
EPS=0x3727c5ac
INV576=0x3ae38e39
STAMP_OFF=0x400000
HASH_A=0x9E3779B1; HASH_C=0x7F4A7C15
CODE_SLICE=2048
HEADER=open("cdna_kernels/"+NAME+".s.ref").read().split("; Override launch")[0]

DOC="""; ---------------------------------------------------------------------------------------------------------------
; dword (slots are reset to all-ones at the start of every launch; a per-launch tag derived from an epoch word in d_ws
; ---------------------------------------------------------------------------------------------------------------
"""

def gen(W=4, W0=4, n0=0, Wwo=5, ldflag="", wflag="", stamps=False, sl1=140, sl2=40, rot=True, wolate=True, W2=4, Ww=3, psleep=0, nowt=False, notail=False, gate=1, tlbw=True, notiles=False, nochain=False, noclear=False, noB0=False, dbg=False, pad=0, padat='start'):
    a=Asm(); I=a.I
    uid=[0]
    def L(p):
        uid[0]+=1; return f"L_{p}_{uid[0]}"
    def vr(b,n=4): return f"v[{b}:{b+n-1}]"
    def rnd(d,s): I(f"v_cvt_pk_bf16_f32 v{d}, 0, v{s}")
    def dup(d,s): I(f"v_cvt_pk_bf16_f32 v{d}, v{s}, v{s}")
    def dpp(op,d,s0,s1,ctl): I(f"{op}_dpp v{d}, v{s0}, v{s1} {ctl} row_mask:0xf bank_mask:0xf")
    def ror(op,regs,k):
        for v in regs: dpp(op,v,v,v,f"row_ror:{k}")
    def xswap(op,regs,tmp,which):
        for v,t in zip(regs,tmp): I(f"v_mov_b32 v{t}, v{v}")
        for v,t in zip(regs,tmp): I(f"v_permlane{which}_swap_b32 v{v}, v{t}")
        for v,t in zip(regs,tmp): I(f"{op} v{v}, v{v}, v{t}")
    STV=7
    _I=I
    def I(t):
        if nowt and " lds" in t and "buffer_load" in t: return
        _I(t)
    DBGMAP={}
    def dstamp(slot, inv=False, only=None, wg=7):
        if not dbg or inv: return
        sk=L("ds")
        I(f"s_cmp_eq_u32 s4, {wg}"); I(f"s_cbranch_scc0 {sk}")
        if only is not None:
            I(f"s_cmp_eq_u32 s3, {only}"); I(f"s_cbranch_scc0 {sk}")
        I("s_memrealtime s[96:97]"); I("s_waitcnt lgkmcnt(0)")
        I("s_mov_b64 s[92:93], exec"); I("s_mov_b64 exec, 1")
        I("v_mov_b32 v7, s96"); I(f"v_mov_b32 v0, {slot*4}")
        I("global_store_dword v0, v7, s[38:39]")
        I("s_mov_b64 exec, s[92:93]")
        a.label(sk)
    def stamp(i):
        if dbg and i in DBGMAP: dstamp(*DBGMAP[i])
        if stamps:
            I("s_memrealtime s[96:97]"); I("s_waitcnt lgkmcnt(0)")
            I(f"v_writelane_b32 v{STV}, s96, {i}")
    def finish():
        if stamps:
            I("s_mov_b64 exec, -1")
            stamp(15)
            I("s_mul_i32 s7, s4, 11"); I("s_add_u32 s7, s7, s3"); I("s_lshl_b32 s7, s7, 8"); I(f"s_add_u32 s7, s7, {STAMP_OFF}")
            I("s_add_u32 s8, s40, s7"); I("s_addc_u32 s9, s41, 0")
            I("v_lshlrev_b32 v8, 2, v1")
            I(f"global_store_dword v8, v{STV}, s[8:9]")
        I("s_endpgm")
    def spin_tail(lo,dn):
        I(f"s_cbranch_vccz {dn}")
        if psleep: I(f"s_sleep {psleep}")
        I("s_add_u32 s80, s80, 1"); I(f"s_cmp_lt_u32 s80, {SPIN}"); I(f"s_cbranch_scc1 {lo}")
        a.label(dn)
    def check_sent(regs,tmp):
        regs=list(regs); i=0; cur=None
        if len(regs)==1: cur=regs[0]
        else:
            while i<len(regs):
                if cur is None:
                    if len(regs)-i>=3: I(f"v_max3_u32 v{tmp}, v{regs[i]}, v{regs[i+1]}, v{regs[i+2]}"); i+=3
                    else: I(f"v_max_u32 v{tmp}, v{regs[i]}, v{regs[i+1]}"); i+=2
                    cur=tmp
                else:
                    if len(regs)-i>=2: I(f"v_max3_u32 v{tmp}, v{tmp}, v{regs[i]}, v{regs[i+1]}"); i+=2
                    else: I(f"v_max_u32 v{tmp}, v{tmp}, v{regs[i]}"); i+=1
        I(f"v_cmp_eq_u32 vcc, -1, v{cur}")
    def check_tags(tagregs,tmp,first=True):
        for k,r in enumerate(tagregs):
            if k==0 and first: I(f"v_xor_b32 v{tmp}, s95, v{r}")
            else: I(f"v_xad_u32 v{tmp}, v{r}, s95, v{tmp}")
    def poll(loads, sent=(), tags=(), name="p", tmp=0, mid=None):
        lo=L("poll"+name); dn=L("pd"+name)
        I("s_mov_b32 s80, 0")
        a.label(lo)
        for t in loads: I(t)
        I("s_waitcnt vmcnt(0)")
        if mid: mid()
        if sent and tags:
            check_tags(tags,tmp+1)
            check_sent(sent,tmp)
            I(f"v_cmp_ne_u32 s[10:11], 0, v{tmp+1}")
            I("s_or_b64 vcc, vcc, s[10:11]")
        elif tags:
            check_tags(tags,tmp); I(f"v_cmp_ne_u32 vcc, 0, v{tmp}")
        else:
            check_sent(sent,tmp)
        spin_tail(lo,dn)
    def setexec(lo,hi):
        I(f"s_mov_b32 exec_lo, {lo:#x}"); I(f"s_mov_b32 exec_hi, {hi:#x}")
    def fullexec(): I("s_mov_b64 exec, -1")
    def srd(dst, base, off, size):
        if off is None:
            I(f"s_mov_b32 s{dst}, s{base}"); I(f"s_mov_b32 s{dst+1}, s{base+1}")
        else:
            I(f"s_add_u32 s{dst}, s{base}, s{off}"); I(f"s_addc_u32 s{dst+1}, s{base+1}, 0")
        I(f"s_mov_b32 s{dst+2}, {size}"); I(f"s_mov_b32 s{dst+3}, 0x20000")
    def srd_rem(dst, base, off, total):
        I(f"s_add_u32 s{dst}, s{base}, s{off}"); I(f"s_addc_u32 s{dst+1}, s{base+1}, 0")
        I(f"s_sub_u32 s{dst+2}, {total}, s{off}"); I(f"s_mov_b32 s{dst+3}, 0x20000")
    def silu(vs,ts):
        for v,t in zip(vs,ts): I(f"v_mul_f32 v{t}, 0xbfb8aa3b, v{v}")
        for v,t in zip(vs,ts): I(f"v_exp_f32 v{t}, v{t}")
        for v,t in zip(vs,ts): I(f"v_add_f32 v{t}, 1.0, v{t}")
        for v,t in zip(vs,ts): I(f"v_rcp_f32 v{t}, v{t}")
        for v,t in zip(vs,ts): I(f"v_mul_f32 v{v}, v{v}, v{t}")
    def ln_stats(S,S2,mean_b,inv):
        I(f"v_mul_f32 v{S}, {INV576:#x}, v{S}")
        I(f"v_mul_f32 v{S2}, {INV576:#x}, v{S2}")
        I(f"v_fma_f32 v{S2}, -v{S}, v{S}, v{S2}")
        rnd(mean_b,S)
        I(f"v_max_f32 v{S2}, 0, v{S2}")
        rnd(S2,S2)
        I(f"v_add_f32 v{S2}, {EPS:#x}, v{S2}")
        rnd(S2,S2)
        I(f"v_sqrt_f32 v{S2}, v{S2}")
        rnd(S2,S2)
        I(f"v_rcp_f32 v{inv}, v{S2}")
    def unpack2(d0,d1,s):
        I(f"v_and_b32 v{d1}, 0xffff0000, v{s}")
        I(f"v_lshlrev_b32 v{d0}, 16, v{s}")
    def roles():
        I("s_mul_i32 s14, s5, 6"); I("s_add_u32 s14, s14, s6")
        I("s_mul_i32 s82, s5, 9"); I("s_add_u32 s82, s82, s6"); I("s_sub_u32 s82, s82, 7")
        I("s_cmp_lt_u32 s6, 6"); I("s_cselect_b32 s81, 1, 0")
        I("s_cmp_ge_u32 s6, 7"); I("s_cselect_b32 s81, 2, s81")
    def ws_setup():
        srd(44,40,None,WS_SIZE)
        I(f"s_mul_i32 s85, s4, {STRIDE}")
        I(f"s_movk_i32 s86, {STRIDE}")
    def tag():
        I(f"s_mul_i32 s95, s94, {HASH_A:#x}"); I(f"s_add_u32 s95, s95, {HASH_C:#x}")
    def epoch_load():
        I(f"s_add_u32 s8, s40, {EPOCH_OFF:#x}"); I("s_addc_u32 s9, s41, 0"); I("s_load_dword s94, s[8:9], 0")
    def diag_consts():
        for r,m in enumerate((0x03030303,0x0c0c0c0c,0x30303030,0xc0c0c0c0)):
            I(f"s_mov_b32 s{72+2*r}, {m:#x}"); I(f"s_mov_b32 s{73+2*r}, {m:#x}")
        I("v_and_b32 v162, 1, v1"); I("v_cmp_eq_u32 vcc, 1, v162")
        I("v_mov_b32 v162, 0xffff"); I("v_mov_b32 v163, 0xffff0000"); I("v_cndmask_b32 v162, v162, v163, vcc")
        I("v_cmp_gt_u32 vcc, 8, v3"); I("v_cndmask_b32 v162, 0, v162, vcc")
        I("v_lshlrev_b32 v163, 2, v2"); I("v_lshlrev_b32 v164, 4, v1")
    def matvec18(tile, AV, A0, A1, acc, tl):
        for i in range(18): I(f"ds_read_b32 v{AV+i}, v163 offset:{tl+16*i}")
        for i in range(18):
            if i in (0,6,12): I(f"s_waitcnt lgkmcnt({12-i if i<12 else 0})")
            A = A0 if i%2==0 else A1
            I(f"v_and_b32 v{AV+i}, v{AV+i}, v162")
            for r in range(4): I(f"v_cndmask_b32 v{A+r}, 0, v{AV+i}, s[{72+2*r}:{73+2*r}]")
            src = "0" if i==0 else vr(acc)
            I(f"v_mfma_f32_16x16x32_bf16 {vr(acc)}, {vr(A)}, {vr(tile+4*i)}, {src}")
    def code_touch(dst):
        I("s_getpc_b64 s[8:9]")
        lb=L("pc"); a.label(lb)
        I("s_bfe_u32 s7, s2, 0x30003"); I(f"s_mul_i32 s7, s7, {CODE_SLICE}")
        I(f"s_sub_u32 s8, s8, {lb}-{NAME}_kernel"); I("s_subb_u32 s9, s9, 0")
        I(f"v_lshlrev_b32 v{dst}, 4, v1")
        for k in range(CODE_SLICE//1024):
            I(f"v_add_u32 v{dst+1}, s7, v{dst}"); I(f"s_add_u32 s7, s7, 0x400")
            I(f"v_min_u32 v{dst+1}, L_end-{NAME}_kernel-16, v{dst+1}")
            I(f"global_load_dwordx4 {vr(dst+4+4*k)}, v{dst+1}, s[8:9]")

    a.raw(f"{NAME}_kernel:")
    I("s_cmp_ge_u32 s2, 256"); I("s_cbranch_scc1 L_end")
    I("s_load_dwordx16 s[16:31], s[0:1], 0")
    I("s_load_dwordx8 s[32:39], s[0:1], 64")
    I("s_load_dwordx2 s[40:41], s[0:1], 96")
    I("v_lshrrev_b32 v4, 6, v0")
    I("v_and_b32 v1, 63, v0")
    I("v_readfirstlane_b32 s3, v4")
    I("v_lshrrev_b32 v2, 4, v1")
    I("v_and_b32 v3, 15, v1")
    I("s_and_b32 s5, s2, 7"); I("s_lshl_b32 s5, s5, 1"); I("s_bfe_u32 s7, s2, 0x10003"); I("s_or_b32 s5, s5, s7")
    I("s_lshr_b32 s6, s2, 4")
    I("s_lshl_b32 s4, s5, 4"); I("s_or_b32 s4, s4, s6")
    if stamps: I("v_mov_b32 v7, 0")
    roles()
    I("s_cmp_eq_u32 s3, 0"); I("s_cbranch_scc1 L_ctrl")
    I("s_cmp_eq_u32 s3, 9"); I("s_cbranch_scc1 L_mod")
    I("s_cmp_eq_u32 s3, 10"); I("s_cbranch_scc1 L_clean")

    a.C("================ worker waves (1..8) ================")
    KB,VB,SB,TB=8,72,136,152
    I("s_sub_u32 s83, s3, 1")
    I("v_lshlrev_b32 v4, 8, v3"); I("v_lshl_add_u32 v4, v2, 4, v4")
    I("v_lshlrev_b32 v5, 10, v2"); I("v_lshl_add_u32 v5, v3, 4, v5")
    I("s_lshl_b32 s7, s4, 17"); I("s_lshl_b32 s8, s83, 14"); I("s_add_u32 s7, s7, s8")
    if rot:
        I("s_add_u32 s10, s4, s83")
        for t in range(4):
            I(f"s_add_u32 s11, s10, {t}"); I("s_and_b32 s11, s11, 3"); I(f"s_lshl_b32 s{68+t}, s11, 12")
    else:
        for t in range(4): I(f"s_mov_b32 s{68+t}, {t*4096}")
    soff=["s68","s69","s70","s71"]
    I("s_cmp_eq_u32 s81, 1"); nw_=L("dw1"); dd_=L("dwd"); I(f"s_cbranch_scc0 {nw_}")
    I("s_lshl_b32 s12, s5, 8"); I("s_lshl_b32 s13, s83, 5"); I("s_add_u32 s12, s12, s13"); I("s_mul_i32 s12, s12, 1152")
    I("s_mul_i32 s13, s6, 192"); I("s_add_u32 s12, s12, s13")
    I("s_mul_i32 s13, s83, 6144"); I(f"s_add_u32 s13, s13, {WAREA}"); I("s_mov_b32 s79, 0")
    I("s_movk_i32 s10, 0x1556"); I("s_movk_i32 s11, 0x480")
    for i_ in range(3):
        I(f"v_add_u32 v0, {64*i_}, v1"); I("v_mul_u32_u24 v6, s10, v0"); I("v_lshrrev_b32 v6, 16, v6")
        I("v_mul_u32_u24 v164, 12, v6"); I("v_sub_u32 v0, v0, v164")
        I("v_mul_u32_u24 v6, s11, v6"); I(f"v_lshl_add_u32 v{165+i_}, v0, 4, v6")
    I("s_mov_b32 s88, 0"); I("s_mov_b32 s89, 0"); I("s_mov_b32 s90, 0"); I("s_movk_i32 s91, 0x4800"); I("s_movk_i32 s92, 0x4800"); I("s_movk_i32 s93, 0x4800")
    I(f"s_branch {dd_}")
    a.label(nw_)
    I("s_mul_i32 s12, s3, 589824"); I("s_lshl_b32 s13, s82, 6"); I("s_add_u32 s12, s12, s13")
    I("s_mul_i32 s79, s82, 36864"); I("s_lshl_b32 s13, s3, 7"); I("s_add_u32 s79, s79, s13")
    I("s_lshl_b32 s13, s3, 13"); I(f"s_add_u32 s13, s13, {WAREA}")
    I("v_lshrrev_b32 v165, 2, v1"); I("s_movk_i32 s10, 0x2400"); I("v_mul_u32_u24 v165, s10, v165"); I("v_and_b32 v0, 3, v1"); I("v_lshl_add_u32 v165, v0, 4, v165")
    I("v_mov_b32 v166, v165")
    I("v_lshrrev_b32 v167, 3, v1"); I("s_movk_i32 s10, 0x480"); I("v_mul_u32_u24 v167, s10, v167"); I("v_and_b32 v0, 7, v1"); I("v_lshl_add_u32 v167, v0, 4, v167")
    I("s_mov_b32 s88, 0"); I("s_mov_b32 s89, 147456"); I("s_mov_b32 s90, 0"); I("s_mov_b32 s91, 294912"); I("s_mov_b32 s92, 442368"); I("s_movk_i32 s93, 0x2400")
    I("s_cmp_eq_u32 s81, 0"); I("s_cselect_b32 s12, 0, s12"); I("s_cselect_b32 s79, 0, s79")
    a.label(dd_)
    I("s_waitcnt lgkmcnt(0)")
    stamp(0)
    dstamp(0,True,1); dstamp(1,False,1)
    srd(48,18,7,16384); srd(52,20,7,16384)
    I("s_cmp_eq_u32 s81, 1"); I("s_cselect_b32 s56, s24, s28"); I("s_cselect_b32 s57, s25, s29"); I("s_mov_b32 s58, 5308416"); I("s_cselect_b32 s58, 4718592, s58")
    I("s_add_u32 s56, s56, s12"); I("s_addc_u32 s57, s57, 0"); I("s_sub_u32 s58, s58, s12"); I("s_mov_b32 s59, 0x20000")
    srd_rem(60,30,79,5308416)
    I("s_cmp_eq_u32 s81, 1"); I("s_cselect_b32 s60, s56, s60"); I("s_cselect_b32 s61, s57, s61"); I("s_cselect_b32 s62, s58, s62")
    if gate in (3,4): I("s_cmp_lg_u32 s81, 1")
    else: I("s_cmp_eq_u32 s81, 0")
    I("s_cselect_b32 s58, 0, s58"); I("s_cselect_b32 s62, 0, s62")
    if gate==5:
        I("s_cmp_lg_u32 s81, 1"); I("s_cselect_b32 s62, 0, s62")
    (I("s_barrier") if not noB0 else None)
    def consts_w():
        ws_setup()
        I("v_and_b32 v152, 1, v1"); I("v_cmp_eq_u32 vcc, 1, v152")
        I("v_mov_b32 v152, 0xffff"); I("v_mov_b32 v153, 0xffff0000"); I("v_cndmask_b32 v152, v152, v153, vcc")
        I("v_bfe_u32 v153, v1, 1, 2")
        for r in range(4):
            I(f"v_cmp_eq_u32 vcc, {r}, v153"); I(f"v_cndmask_b32 v{160+r}, 0, v152, vcc")
        I("s_mov_b32 s72, 0xffff0000"); I("s_mov_b32 s73, 0"); I("s_mov_b32 s74, 0"); I("s_mov_b32 s75, 0xffff"); I("s_mov_b32 s76, 0"); I("s_mov_b32 s77, 0xffff0000")
    def stream(Wn, wo):
        if wo:
            I("v_lshlrev_b32 v0, 1, v2"); I("v_xor_b32 v0, v0, v3"); I("s_movk_i32 s10, 0x480"); I("v_mul_u32_u24 v6, s10, v2")
            I("v_lshl_add_u32 v164, v0, 4, v6"); I("v_xor_b32 v0, 8, v0"); I("v_lshl_add_u32 v165, v0, 4, v6")
            for i in range(8):
                I(f"s_add_u32 m0, s13, {i*1024}"); I(f"s_mov_b32 s84, {i*4608}")
                I(f"buffer_load_dwordx4 v{164+(i&1)}, s[56:59], s84 offen lds {wflag}".replace(" lds nt"," nt lds"))
                if i>=Wn-1: I(f"s_waitcnt vmcnt({Wn-1})")
        for t in range(4):
            for c in range(4):
                I(f"buffer_load_dwordx4 {vr(KB+(4*t+c)*4)}, v4, s[48:51], {soff[t]} offen offset:{c*64} {ldflag}")
                wk = W0 if 4*t+c<n0 else Wn
                if 4*t+c>=wk-1: I(f"s_waitcnt vmcnt({wk-1})")
        for idx in range(16):
            t,r=divmod(idx,4)
            I(f"buffer_load_dwordx4 {vr(VB+idx*4)}, v5, s[52:55], {soff[t]} offen offset:{r*256} {ldflag}")
            if idx<15: I(f"s_waitcnt vmcnt({(Wn if idx<6 else max(Wn,W2))-1})")
            if idx==3: consts_w()
    stream(W,False)
    MK=160; Q=152; ACC=8+40
    stamp(1)
    dstamp(3,False,8)
    I("s_barrier")
    stamp(2)
    I("v_lshrrev_b32 v5, 3, v3"); I("v_lshlrev_b32 v5, 8, v5"); I("v_lshl_add_u32 v5, v2, 4, v5")
    I(f"ds_read_b128 {vr(Q)}, v5 offset:{QL}"); I(f"ds_read_b128 {vr(Q+4)}, v5 offset:{QL+64}")
    I("s_waitcnt vmcnt(16)")
    for c in range(4):
        I(f"s_waitcnt lgkmcnt({1 if c<3 else 0})")
        qb=Q+4*(c%2)
        for t in range(4):
            src = "0" if c==0 else vr(SB+4*t)
            I(f"v_mfma_f32_16x16x32_bf16 {vr(SB+4*t)}, {vr(qb)}, {vr(KB+(4*t+c)*4)}, {src}")
        if c<2: I(f"ds_read_b128 {vr(qb)}, v5 offset:{QL+(c+2)*64}")
    S=[SB,SB+4,SB+8,SB+12]
    I("v_lshrrev_b32 v6, 1, v2"); I("v_lshlrev_b32 v0, 8, v6"); I("v_lshlrev_b32 v6, 5, v6")
    I("s_lshl_b32 s7, s83, 2"); I("v_add_u32 v4, s7, v6")
    I("s_lshl_b32 s9, s83, 9"); I(f"s_add_u32 s9, s9, {SCR}")
    I("v_lshl_add_u32 v0, v3, 2, v0"); I("v_add_u32 v0, s9, v0")
    for x in S: rnd(x,x)
    for x in S: I(f"v_mul_f32 v{x}, {SCALE:#x}, v{x}")
    for x in S: rnd(x,x)
    M=SB+1; M2=SB+2
    I(f"v_max3_f32 v{M}, v{S[0]}, v{S[1]}, v{S[2]}"); I(f"v_max_f32 v{M}, v{M}, v{S[3]}")
    for k in (8,4,2,1): ror("v_max_f32",[M],k)
    I(f"ds_write_b32 v4, v{M} offset:{WMAX}")
    I("s_waitcnt lgkmcnt(0)")
    I("s_barrier")
    I(f"ds_read_b128 {vr(Q)}, v6 offset:{WMAX}"); I(f"ds_read_b128 {vr(Q+4)}, v6 offset:{WMAX+16}")
    I("v_lshrrev_b32 v5, 3, v3"); I("v_lshlrev_b32 v5, 8, v5"); I("v_lshl_add_u32 v5, v2, 4, v5"); I("v_add_u32 v5, s9, v5")
    I(f"s_mov_b32 s7, {LOG2E:#x}")
    I("s_waitcnt lgkmcnt(0)")
    I(f"v_max3_f32 v{M}, v{Q}, v{Q+1}, v{Q+2}"); I(f"v_max3_f32 v{M2}, v{Q+3}, v{Q+4}, v{Q+5}")
    I(f"v_max3_f32 v{M}, v{M}, v{Q+6}, v{Q+7}"); I(f"v_max_f32 v{M}, v{M}, v{M2}")
    I(f"v_mul_f32 v{M}, 0xbfb8aa3b, v{M}")
    for x in S: I(f"v_fma_f32 v{x}, v{x}, s7, v{M}")
    for x in S: I(f"v_exp_f32 v{x}, v{x}")
    I(f"v_add_f32 v{M}, v{S[0]}, v{S[1]}"); I(f"v_add_f32 v{M2}, v{S[2]}, v{S[3]}")
    for x in S: dup(x,x)
    I(f"v_add_f32 v{M}, v{M}, v{M2}")
    for t,x in enumerate(S): I(f"ds_write_b32 v0, v{x} offset:{64*t}")
    for k in (8,4,2,1): ror("v_add_f32",[M],k)
    for t in range(4): I(f"ds_read_b128 {vr(SB+4*t) if t else vr(Q)}, v5 offset:{64*t}")
    I("v_lshrrev_b32 v6, 3, v6")
    setexec(1,1)
    I(f"ds_add_f32 v6, v{M} offset:{LSUM}")
    fullexec()
    I("s_waitcnt lgkmcnt(0)")
    I("s_barrier")
    for r in range(4): I(f"v_mov_b32 v{SB+r}, v{Q+r}")
    stamp(3)
    A0,A1=Q,Q+4
    I("v_lshrrev_b32 v4, 1, v2"); I("v_lshlrev_b32 v4, 9, v4"); I("v_lshl_add_u32 v4, v3, 5, v4")
    I("v_and_b32 v5, 1, v2"); I("v_lshl_add_u32 v4, v5, 4, v4")
    I("s_lshl_b32 s7, s83, 10"); I("v_add_u32 v4, s7, v4")
    for idx in range(16):
        A=A0 if idx%2==0 else A1
        for r in range(4): I(f"v_and_b32 v{A+r}, v{SB+idx}, v{MK+r}")
        I(f"s_waitcnt vmcnt({15-idx if idx<=10 else 5})")
        src="0" if idx==0 else vr(ACC)
        I(f"v_mfma_f32_16x16x32_bf16 {vr(ACC)}, {vr(A)}, {vr(VB+4*idx)}, {src}")
        if idx>=10:
            k=idx-10
            I(f"s_add_u32 m0, s13, {k*1024}"); I("s_nop 0")
            sr=60 if k%3==2 else 56
            I(f"buffer_load_dwordx4 v{165+k%3}, s[{sr}:{sr+3}], s{88+k} offen lds {wflag}".replace(" lds nt"," nt lds"))
    I(f"ds_write_b128 v4, {vr(ACC)} offset:{OBUF}")
    I("s_waitcnt lgkmcnt(0)")
    stamp(4)
    dstamp(4,False,8)
    I("s_barrier")
    if notail: finish()
    I("s_cmp_eq_u32 s81, 2"); I("s_cbranch_scc1 L_mlp_tail")
    I("s_cmp_eq_u32 s81, 1"); I("s_cbranch_scc1 L_wo_tail")
    finish()

    a.label("L_wo_tail")
    O1,O2,M1,T=72,76,80,88
    I("v_lshrrev_b32 v6, 2, v3"); I("v_lshl_add_u32 v4, v2, 3, v6"); I("s_movk_i32 s7, 192"); I("v_mul_u32_u24 v4, s7, v4")
    I("v_and_b32 v6, 3, v3"); I("v_lshl_add_u32 v4, v6, 3, v4"); I("v_add_u32 v86, s13, v4")
    I("v_bfe_u32 v6, v1, 1, 3"); I("s_lshl_b32 s7, s5, 4"); I("v_add_u32 v4, s7, v6"); I("v_mul_u32_u24 v4, s86, v4")
    I("v_and_b32 v5, 1, v1"); I("v_lshlrev_b32 v5, 4, v5"); I("v_lshl_add_u32 v5, v2, 5, v5")
    I("s_lshl_b32 s7, s83, 7"); I("v_add3_u32 v84, v4, v5, s7")
    I("s_lshr_b32 s7, s83, 2"); I("s_lshl_b32 s7, s7, 6"); I("v_lshl_add_u32 v85, v6, 2, s7")
    I(f"s_mov_b32 s84, {8*STRIDE}")
    I("s_waitcnt vmcnt(0)"); stamp(12)
    for c in range(6):
        I(f"ds_read_b64_tr_b16 v[{KB+4*c}:{KB+4*c+1}], v86 offset:{c*32}")
        I(f"ds_read_b64_tr_b16 v[{KB+4*c+2}:{KB+4*c+3}], v86 offset:{c*32+768}")
    I("s_barrier")
    I(f"ds_read_b32 v{M1}, v85 offset:{WGT}"); I(f"ds_read_b32 v{M1+1}, v85 offset:{WGT+32}")
    poll([f"buffer_load_dwordx4 {vr(O1)}, v84, s[44:47], 0 offen offset:{P3} sc1",
          f"buffer_load_dwordx4 {vr(O2)}, v84, s[44:47], s84 offen offset:{P3} sc1"],
         sent=list(range(72,80)), name="o", tmp=87)
    stamp(5)
    def red8(op,regs):
        for v in regs: dpp(op,v,v,v,"quad_perm:[2,3,0,1]")
        for v in regs: dpp(op,v,v,v,"row_ror:4")
        for v in regs: dpp(op,v,v,v,"row_ror:8")
    I("s_waitcnt lgkmcnt(0)")
    for r in range(4): I(f"v_mul_f32 v{O1+r}, v{M1}, v{O1+r}")
    for r in range(4): I(f"v_fmac_f32 v{O1+r}, v{M1+1}, v{O2+r}")
    red8("v_add_f32",[O1,O1+1,O1+2,O1+3])
    I(f"v_cvt_pk_bf16_f32 v{T}, v{O1}, v{O1+1}"); I(f"v_cvt_pk_bf16_f32 v{T+1}, v{O1+2}, v{O1+3}")
    AO=T+8
    I(f"v_mov_b32_dpp v{AO}, v{T} quad_perm:[0,0,2,2] row_mask:0xf bank_mask:0xf"); I(f"v_mov_b32_dpp v{AO+1}, v{T+1} quad_perm:[0,0,2,2] row_mask:0xf bank_mask:0xf")
    I(f"v_mov_b32_dpp v{AO+2}, v{T} quad_perm:[1,1,3,3] row_mask:0xf bank_mask:0xf"); I(f"v_mov_b32_dpp v{AO+3}, v{T+1} quad_perm:[1,1,3,3] row_mask:0xf bank_mask:0xf")
    D=100
    for c in range(6): I(f"v_mfma_f32_16x16x32_bf16 {vr(D+4*c)}, {vr(AO)}, {vr(KB+4*c)}, 0")
    I("v_lshlrev_b32 v4, 2, v1")
    I("s_lshl_b32 s7, s83, 9"); I("v_add_u32 v5, s7, v4")
    def sel4(dst,D0):
        I(f"v_cndmask_b32 v{dst}, v{D0}, v{D0+4}, s[72:73]")
        I(f"v_cndmask_b32 v{dst}, v{dst}, v{D0+8}, s[74:75]")
        I(f"v_cndmask_b32 v{dst}, v{dst}, v{D0+12}, s[76:77]")
    sel4(T,D)
    I(f"v_cndmask_b32 v{T+1}, v{D+16}, v{D+20}, s[72:73]")
    I(f"ds_write_b32 v5, v{T} offset:{RED}"); I(f"ds_write_b32 v5, v{T+1} offset:{RED+256}")
    I("s_waitcnt lgkmcnt(0)")
    I("s_barrier")
    I("s_cmp_lt_u32 s83, 2"); sk=L("wo_done"); I(f"s_cbranch_scc0 {sk}")
    I("s_lshl_b32 s7, s83, 8"); I("v_add_u32 v4, s7, v4")
    for k in range(4): I(f"ds_read2st64_b32 v[{T+2*k}:{T+2*k+1}], v4 offset0:{RED//256+4*k} offset1:{RED//256+4*k+2}")
    I("s_mul_i32 s7, s14, 384"); I(f"s_add_u32 s7, s7, {P4A:#x}")
    I("s_cmp_eq_u32 s83, 0"); I("s_cselect_b32 exec_hi, -1, 0")
    I("s_waitcnt lgkmcnt(0)")
    I(f"v_add_f32 v{T}, v{T}, v{T+1}"); I(f"v_add_f32 v{T+2}, v{T+2}, v{T+3}"); I(f"v_add_f32 v{T+4}, v{T+4}, v{T+5}"); I(f"v_add_f32 v{T+6}, v{T+6}, v{T+7}")
    I(f"v_add_f32 v{T}, v{T}, v{T+2}"); I(f"v_add_f32 v{T+4}, v{T+4}, v{T+6}"); I(f"v_add_f32 v{T}, v{T}, v{T+4}")
    I(f"buffer_store_dword v{T}, v4, s[44:47], s7 offen sc1")
    stamp(6)
    dstamp(6,False,1,0)
    a.label(sk)
    finish()

    a.label("L_mlp_tail")
    I("s_lshl_b32 s13, s3, 13"); I(f"s_add_u32 s13, s13, {WAREA}")
    I("v_lshrrev_b32 v4, 2, v1"); I("s_movk_i32 s7, 0x2400"); I("v_mul_u32_u24 v4, s7, v4"); I("v_and_b32 v5, 3, v1"); I("v_lshl_add_u32 v96, v5, 4, v4")
    I("s_mul_i32 s7, s3, 589824"); I("s_lshl_b32 s8, s82, 6"); I("s_add_u32 s7, s7, s8")
    srd_rem(56,28,7,5308416)
    I("v_lshrrev_b32 v4, 3, v1"); I("s_movk_i32 s7, 0x480"); I("v_mul_u32_u24 v4, s7, v4"); I("v_and_b32 v5, 7, v1"); I("v_lshl_add_u32 v97, v5, 4, v4")
    I("s_mul_i32 s7, s82, 36864"); I("s_lshl_b32 s8, s3, 7"); I("s_add_u32 s7, s7, s8")
    srd_rem(60,30,7,5308416)
    def dma_w1():
        for i,off in enumerate((0,1024,3072,4096)):
            I(f"s_add_u32 m0, s13, {off}"); I(f"s_mov_b32 s84, {i*147456}")
            I(f"buffer_load_dwordx4 v96, s[56:59], s84 offen lds {wflag}".replace(" lds nt"," nt lds"))
    def dma_w2(lst):
        for i,off in lst:
            I(f"s_add_u32 m0, s13, {off}"); I(f"s_mov_b32 s84, {i*9216}")
            I(f"buffer_load_dwordx4 v97, s[60:63], s84 offen lds {wflag}".replace(" lds nt"," nt lds"))
    def mlp_dma():
        sk1=L("w1done")
        if gate not in (3,4):
            I("s_cmp_lg_u32 s3, 0"); I(f"s_cbranch_scc1 {sk1}")
        dma_w1()
        if gate!=5: dma_w2(((0,2048),(1,5120)))
        a.label(sk1)
        if gate!=5: dma_w2(((2,6144),(3,7168)))
    if gate in (0,5): mlp_dma()
    XV,GA,SBv,CBv,GBv=72,73,74,75,76
    I("v_lshlrev_b32 v77, 2, v1")
    I("s_lshl_b32 s7, s3, 7"); I("v_lshl_add_u32 v4, v1, 1, s7")
    srd(64,16,None,1152)
    I(f"buffer_load_ushort v{XV}, v4, s[64:67], 0 offen")
    for k,base in enumerate((1152,1728,2304,2880)):
        I(f"s_lshl_b32 s7, s3, 6"); I(f"s_add_u32 s7, s7, {base-1152}")
        I("s_lshr_b32 s8, s7, 7"); I("s_lshl_b32 s8, s8, 9")
        I("s_and_b32 s7, s7, 127"); I("s_lshl_b32 s7, s7, 2"); I("s_add_u32 s8, s8, s7"); I(f"s_add_u32 s{88+k}, s8, {P1BA:#x}")
    I("s_lshl_b32 s7, s3, 8"); I(f"s_add_u32 s15, s7, {P4A:#x}")
    G=80
    T=100
    I("v_lshrrev_b32 v4, 2, v3"); I("v_lshl_add_u32 v4, v2, 3, v4")
    I("v_and_b32 v5, 3, v3"); I("v_lshlrev_b32 v5, 3, v5")
    I("v_lshl_add_u32 v98, v4, 6, v5"); I("v_add_u32 v98, s13, v98")
    I("v_lshrrev_b32 v4, 2, v3"); I("v_lshl_add_u32 v99, v4, 7, v5"); I("v_lshl_add_u32 v99, v2, 10, v99")
    I("v_cmp_eq_u32 vcc, 0, v2"); I("v_mov_b32 v4, 4096"); I("v_mov_b32 v5, 2048"); I("v_cndmask_b32 v4, v4, v5, vcc"); I("v_add3_u32 v99, v99, v4, s13")
    B1,B2=8,24
    def trreads():
        for kk in range(2):
            for c in range(2):
                b=B1+4*(2*kk+c)
                I(f"ds_read_b64_tr_b16 v[{b}:{b+1}], v98 offset:{kk*3072+c*32}")
                I(f"ds_read_b64_tr_b16 v[{b+2}:{b+3}], v98 offset:{kk*3072+c*32+256}")
        for c in range(4):
            b=B2+4*c
            I(f"ds_read_b64_tr_b16 v[{b}:{b+1}], v99 offset:{c*32}")
            I(f"ds_read_b64_tr_b16 v[{b+2}:{b+3}], v99 offset:{c*32+512}")
    poll([f"buffer_load_dword v{GA+k}, v77, s[44:47], s{88+k} offen sc1" for k in range(4)], sent=list(range(GA,GA+4)), name="s", tmp=T)
    if gate==0: trreads()
    I(f"v_lshlrev_b32 v{XV}, 16, v{XV}")
    I(f"v_add_f32 v{CBv}, 1.0, v{CBv}"); rnd(CBv,CBv)
    if gate in (2,4):
        I("s_cmp_eq_u32 s3, 0"); ng_=L("nog"); I(f"s_cbranch_scc0 {ng_}")
        I(f"s_lshl_b32 s12, s5, 7"); I(f"s_add_u32 s12, s12, {F4A:#x}"); I("v_mov_b32 v4, 0")
        setexec(1,0)
        poll([f"buffer_load_dword v{T}, v4, s[44:47], s12 offen sc1","s_sleep 2"], tags=[T], name="c3", tmp=T+1)
        fullexec()
        a.label(ng_)
        I("s_barrier")
        mlp_dma()
    I("s_cmp_eq_u32 s3, 0"); nc_=L("nocan"); I(f"s_cbranch_scc0 {nc_}")
    I("v_lshlrev_b32 v4, 7, v1"); I(f"s_mov_b32 s12, {F4A:#x}")
    setexec(0xffff,0)
    poll([f"buffer_load_dword v{T}, v4, s[44:47], s12 offen sc1","s_sleep 1"], tags=[T], name="c4", tmp=T+1)
    fullexec()
    a.label(nc_)
    I("s_waitcnt lgkmcnt(0)")
    I("s_barrier")
    if gate in (1,3): mlp_dma()
    if gate==5: dma_w2(((0,2048),(1,5120),(2,6144),(3,7168)))
    lds_=["s_mov_b32 s84, s15"]
    for k in range(16):
        lds_.append(f"buffer_load_dword v{G+k}, v77, s[44:47], s84 offen sc1")
        if k<15: lds_.append(f"s_add_u32 s84, s84, 2304")
    poll(lds_, sent=list(range(G,G+16)), name="x", tmp=T, mid=(trreads if gate else None))
    stamp(9)
    if pad and padat=='mg': I("s_memrealtime s[42:43]")
    dstamp(7,False,1)
    if stamps: I(f"v_writelane_b32 v{STV}, s80, 14")
    for k in (0,2,4,6,8,10,12,14): I(f"v_add_f32 v{G+k}, v{G+k}, v{G+k+1}")
    for k in (0,4,8,12): I(f"v_add_f32 v{G+k}, v{G+k}, v{G+k+2}")
    I(f"v_add_f32 v{G}, v{G}, v{G+4}"); I(f"v_add_f32 v{G+8}, v{G+8}, v{G+12}")
    I(f"v_add_f32 v{G}, v{G}, v{G+8}")
    rnd(G,G); I(f"v_mul_f32 v{G}, v{G}, v{GA}"); rnd(G,G); I(f"v_add_f32 v{G}, v{G}, v{XV}")
    X1=G+1; rnd(X1,G)
    S,S2=T,T+1
    I(f"v_mov_b32 v{S}, v{X1}"); I(f"v_mul_f32 v{S2}, v{X1}, v{X1}")
    for k in (8,4,2,1): ror("v_add_f32",[S,S2],k)
    for v_ in (S,S2): I(f"v_add_f32_dpp v{v_}, v{v_}, v{v_} row_bcast:15 row_mask:0xa bank_mask:0xf")
    for v_ in (S,S2): I(f"v_add_f32_dpp v{v_}, v{v_}, v{v_} row_bcast:31 row_mask:0xc bank_mask:0xf")
    I("v_mov_b32 v4, 0")
    setexec(0,0x80000000)
    I(f"ds_add_f32 v4, v{S} offset:{STAT}"); I(f"ds_add_f32 v4, v{S2} offset:{STAT+4}")
    fullexec()
    I("s_lshl_b32 s9, s3, 9"); I(f"s_add_u32 s9, s9, {SCR}")
    I("v_lshl_add_u32 v5, v1, 1, s9")
    I("v_lshl_add_u32 v6, v2, 4, s9")
    I("s_waitcnt lgkmcnt(0)")
    I("s_barrier")
    I(f"ds_read_b64 v[{S}:{S+1}], v4 offset:{STAT}")
    I("s_waitcnt lgkmcnt(0)")
    ln_stats(S,S2,T+2,T+3)
    H=G+2
    I(f"v_sub_f32 v{H}, v{X1}, v{T+2}"); rnd(H,H); I(f"v_mul_f32 v{H}, v{H}, v{T+3}"); rnd(H,H)
    I(f"v_mul_f32 v{H}, v{H}, v{CBv}"); rnd(H,H); I(f"v_add_f32 v{H}, v{H}, v{SBv}")
    I(f"v_cvt_pk_bf16_f32 v{H}, v{H}, v{H}")
    I(f"ds_write_b16 v5, v{H}")
    AH=T+4
    I(f"ds_read_b128 {vr(AH)}, v6"); I(f"ds_read_b128 {vr(AH+4)}, v6 offset:64")
    D=T+12
    I("s_waitcnt lgkmcnt(1)")
    I(f"v_mfma_f32_16x16x32_bf16 {vr(D)}, {vr(AH)}, {vr(B1)}, 0"); I(f"v_mfma_f32_16x16x32_bf16 {vr(D+4)}, {vr(AH)}, {vr(B1+4)}, 0")
    I("s_waitcnt lgkmcnt(0)")
    I(f"v_mfma_f32_16x16x32_bf16 {vr(D)}, {vr(AH+4)}, {vr(B1+8)}, {vr(D)}"); I(f"v_mfma_f32_16x16x32_bf16 {vr(D+4)}, {vr(AH+4)}, {vr(B1+12)}, {vr(D+4)}")
    I(f"v_cndmask_b32 v{T}, v{D}, v{D+4}, s[72:73]")
    I("s_lshl_b32 s7, s3, 8"); I("v_add_u32 v4, s7, v77")
    I(f"ds_write_b32 v4, v{T} offset:{RED}")
    I("s_waitcnt lgkmcnt(0)")
    I("s_barrier")
    for k in range(4): I(f"ds_read2st64_b32 v[{T+2*k}:{T+2*k+1}], v77 offset0:{RED//256+2*k} offset1:{RED//256+2*k+1}")
    I(f"ds_read_b32 v{T+8}, v77 offset:{RED+8*256}")
    I("s_waitcnt lgkmcnt(0)")
    I(f"v_add_f32 v{T}, v{T}, v{T+1}"); I(f"v_add_f32 v{T+2}, v{T+2}, v{T+3}"); I(f"v_add_f32 v{T+4}, v{T+4}, v{T+5}"); I(f"v_add_f32 v{T+6}, v{T+6}, v{T+7}")
    I(f"v_add_f32 v{T}, v{T}, v{T+2}"); I(f"v_add_f32 v{T+4}, v{T+4}, v{T+6}"); I(f"v_add_f32 v{T}, v{T}, v{T+8}"); I(f"v_add_f32 v{T}, v{T}, v{T+4}")
    rnd(T,T); silu([T],[T+1])
    I(f"v_cvt_pk_bf16_f32 v{T}, v{T}, v{T}")
    I(f"ds_write_b16 v5, v{T} offset:256")
    I(f"ds_read_b128 {vr(AH)}, v6 offset:256")
    I("s_waitcnt lgkmcnt(0)")
    for c in range(4): I(f"v_mfma_f32_16x16x32_bf16 {vr(D+4*c)}, {vr(AH)}, {vr(B2+4*c)}, 0")
    I("s_lshl_b32 s7, s3, 8"); I("s_mul_i32 s8, s82, 2304"); I("s_add_u32 s7, s7, s8"); I(f"s_add_u32 s7, s7, {P5A:#x}")
    sel4(T,D)
    I(f"buffer_store_dword v{T}, v77, s[44:47], s7 offen sc1")
    stamp(10)
    if pad and padat=='mp': I("s_memrealtime s[42:43]")
    dstamp(8,False,1)
    I("s_cmp_lt_u32 s82, 9"); sk=L("mlp_done"); I(f"s_cbranch_scc0 {sk}")
    a.C("final reducers: CU u<9 handles column block u; wave wv gathers partials 16wv+pp+4k")
    F=84
    I(f"s_mul_i32 s7, s3, {16*2304}"); I("s_lshl_b32 s8, s82, 8"); I("s_add_u32 s12, s7, s8"); I(f"s_add_u32 s12, s12, {P5A:#x}")
    lds_=["s_mov_b32 s84, s12"]
    for k in range(16):
        lds_.append(f"buffer_load_dword v{F+k}, v77, s[44:47], s84 offen sc1")
        if k<15: lds_.append(f"s_add_u32 s84, s84, 2304")
    poll(lds_, sent=list(range(F,F+16)), name="f", tmp=T)
    stamp(11)
    dstamp(10,False,1)
    for k in (0,2,4,6,8,10,12,14): I(f"v_add_f32 v{F+k}, v{F+k}, v{F+k+1}")
    for k in (0,4,8,12): I(f"v_add_f32 v{F+k}, v{F+k}, v{F+k+2}")
    I(f"v_add_f32 v{F}, v{F}, v{F+4}"); I(f"v_add_f32 v{F+8}, v{F+8}, v{F+12}"); I(f"v_add_f32 v{F}, v{F}, v{F+8}")
    I("s_lshl_b32 s7, s3, 8"); I("v_add_u32 v4, s7, v77")
    I(f"ds_write_b32 v4, v{F} offset:{RED+2304}")
    I("s_waitcnt lgkmcnt(0)")
    I("s_barrier")
    I("s_cmp_eq_u32 s3, s82"); I(f"s_cbranch_scc0 {sk}")
    FB=(RED+2304)//256
    for k in range(4): I(f"ds_read2st64_b32 v[{T+2*k}:{T+2*k+1}], v77 offset0:{FB+2*k} offset1:{FB+2*k+1}")
    I(f"ds_read_b32 v{T+8}, v77 offset:{RED+2304+8*256}")
    I("s_lshl_b32 s7, s82, 7"); I("v_lshl_add_u32 v4, v1, 1, s7")
    srd(64,36,None,1152)
    I("s_waitcnt lgkmcnt(0)")
    I(f"v_add_f32 v{T}, v{T}, v{T+1}"); I(f"v_add_f32 v{T+2}, v{T+2}, v{T+3}"); I(f"v_add_f32 v{T+4}, v{T+4}, v{T+5}"); I(f"v_add_f32 v{T+6}, v{T+6}, v{T+7}")
    I(f"v_add_f32 v{T}, v{T}, v{T+2}"); I(f"v_add_f32 v{T+4}, v{T+4}, v{T+6}"); I(f"v_add_f32 v{T}, v{T}, v{T+8}"); I(f"v_add_f32 v{T}, v{T}, v{T+4}")
    rnd(T,T); I(f"v_mul_f32 v{T}, v{T}, v{GBv}"); rnd(T,T); I(f"v_add_f32 v{T}, v{T}, v{X1}")
    I(f"v_cvt_pk_bf16_f32 v{T}, v{T}, v{T}")
    I(f"buffer_store_short v{T}, v4, s[64:67], 0 offen")
    dstamp(9,False,0)
    I("s_cmp_eq_u32 s82, 0"); I(f"s_cbranch_scc0 {sk}")
    if pad:
        pl=L("pad"); a.label(pl)
        I("s_memrealtime s[96:97]"); I("s_waitcnt lgkmcnt(0)"); I("s_sub_u32 s96, s96, s42"); I(f"s_cmp_lt_u32 s96, {pad}"); I(f"s_cbranch_scc1 {pl}")
    I("v_mov_b32 v4, s95"); I("v_lshlrev_b32 v5, 2, v1"); I(f"s_mov_b32 s7, {EPOCH_OFF:#x}")
    setexec(0xffffffff,0)
    I("buffer_store_dword v4, v5, s[44:47], s7 offen sc1")
    a.label(sk)
    finish()

    a.label("L_clean")
    code_touch(8)
    I("v_mov_b32 v156, 0"); I("v_mov_b32 v157, 0"); I("v_mov_b32 v158, 0"); I("v_mov_b32 v159, 0")
    I("v_lshlrev_b32 v5, 4, v1")
    I("v_lshlrev_b32 v4, 2, v1"); I(f"ds_write_b32 v4, v156 offset:{WMAX}")
    I("s_waitcnt lgkmcnt(0)")
    stamp(0)
    epoch_load()
    ws_setup()
    if tlbw:
        I("s_mov_b32 s7, 82944"); I("v_mul_u32_u24 v20, s7, v1")
        srd(48,28,None,5308416); srd(52,30,None,5308416); srd(56,24,None,4718592)
        I("buffer_load_dword v21, v20, s[48:51], 0 offen"); I("buffer_load_dword v22, v20, s[52:55], 0 offen"); I("buffer_load_dword v23, v20, s[56:59], 0 offen")
    I("v_mov_b32 v156, -1"); I("v_mov_b32 v157, -1"); I("v_mov_b32 v158, -1"); I("v_mov_b32 v159, -1")
    if noclear: I("s_branch L_skipclr")
    I(f"buffer_store_dwordx4 v[156:159], v5, s[44:47], s85 offen offset:{P2} sc1")
    setexec(0xffffffff,0xff)
    I(f"buffer_store_dwordx4 v[156:159], v5, s[44:47], s85 offen offset:{P2+1024} sc1")
    fullexec()
    I("s_cmp_eq_u32 s81, 2"); nc=L("noclr"); I(f"s_cbranch_scc0 {nc}")
    I("s_mul_i32 s7, s82, 2304"); I(f"s_add_u32 s7, s7, {P5A:#x}")
    for k in range(2): I(f"buffer_store_dwordx4 v[156:159], v5, s[44:47], s7 offen offset:{1024*k} sc1")
    setexec(0xffff,0)
    I(f"buffer_store_dwordx4 v[156:159], v5, s[44:47], s7 offen offset:2048 sc1")
    fullexec()
    a.label(nc)
    I("s_cmp_eq_u32 s81, 1"); nc2=L("noclr2"); I(f"s_cbranch_scc0 {nc2}")
    I("s_mul_i32 s7, s14, 384"); I(f"s_add_u32 s7, s7, {P4A:#x}")
    setexec(0xffffff,0)
    I(f"buffer_store_dwordx4 v[156:159], v5, s[44:47], s7 offen sc1")
    fullexec()
    a.label(nc2)
    I("s_sub_u32 s8, 6, s6"); I("s_lshl_b32 s8, s8, 4"); I("s_add_u32 s8, s8, s5"); I("s_cmp_lt_u32 s8, 18"); I("s_cbranch_scc0 L_skipclr")
    I("s_lshl_b32 s7, s8, 9"); I(f"s_add_u32 s7, s7, {P1BA:#x}")
    setexec(0xffffffff,0)
    I(f"buffer_store_dwordx4 v[156:159], v5, s[44:47], s7 offen sc1")
    fullexec()
    a.label("L_skipclr")
    (I("s_barrier") if not noB0 else None)
    I("s_waitcnt vmcnt(0) lgkmcnt(0)")
    tag()
    I("v_mov_b32 v4, s95"); I("v_lshlrev_b32 v5, 2, v1")
    setexec(0xffffffff,0)
    I(f"buffer_store_dword v4, v5, s[44:47], s85 offen offset:{FL} sc1")
    stamp(1)
    I("s_cmp_eq_u32 s6, 6"); na=L("noagg"); I(f"s_cbranch_scc0 {na}")
    fullexec()
    I("s_lshl_b32 s7, s5, 4"); I("v_add_u32 v4, s7, v1"); I("v_mul_u32_u24 v4, s86, v4")
    setexec(0xffff,0)
    poll([f"buffer_load_dword v8, v4, s[44:47], 0 offen offset:{FL} sc1","s_sleep 8"],tags=[8],name="agg",tmp=9)
    fullexec()
    I("v_mov_b32 v4, s95"); I(f"s_lshl_b32 s7, s5, 7"); I(f"s_add_u32 s7, s7, {GCLR_OFF:#x}")
    setexec(0xffffffff,0)
    I(f"buffer_store_dword v4, v5, s[44:47], s7 offen sc1")
    a.label(na)
    finish()

    a.label("L_mod")
    TILE,XF,CV,XR,AV,A0,A1,ACC,GB,T=8,80,88,90,92,110,114,118,122,154
    I("s_setprio 2")
    I("s_waitcnt lgkmcnt(0)")
    stamp(0)
    epoch_load()
    srd(64,32,None,1152)
    I("s_and_b32 s7, s4, 7"); I("s_mul_i32 s7, s7, 144")
    I("v_lshlrev_b32 v4, 3, v1")
    I(f"buffer_load_dwordx2 v[{CV}:{CV+1}], v4, s[64:67], s7 offen")
    I("s_cmp_lt_u32 s4, 216"); nomod=L("nomod"); I(f"s_cbranch_scc0 {nomod}")
    I("s_and_b32 s7, s4, 7"); I("s_mul_i32 s7, s7, 497664")
    I("s_lshr_b32 s10, s4, 3"); I("s_lshl_b32 s10, s10, 8"); I("s_add_u32 s7, s7, s10")
    srd_rem(52,34,7,3981312)
    I("s_movk_i32 s7, 0x1b00"); I("v_mul_u32_u24 v4, s7, v2"); I("v_lshl_add_u32 v4, v3, 4, v4")
    for i in range(0 if notiles else 18):
        I(f"s_mov_b32 s84, {i*27648}")
        I(f"buffer_load_dwordx4 {vr(TILE+4*i)}, v4, s[52:55], s84 offen {wflag}")
    (I("s_barrier") if not noB0 else None)
    ws_setup(); diag_consts()
    I("s_waitcnt vmcnt(18)")
    for k in range(2): unpack2(T+2*k,T+2*k+1,CV+k)
    silu([T,T+1,T+2,T+3],[T+4,T+5,T+6,T+7])
    for r in range(4): dup(T+r,T+r)
    I(f"ds_write_b128 v164, {vr(T)} offset:{TL}")
    I("s_waitcnt vmcnt(0) lgkmcnt(0)")
    tag()
    stamp(1)
    matvec18(TILE,AV,A0,A1,ACC,TL)
    I(f"v_permlane32_swap_b32 v{ACC}, v{ACC+2}"); I(f"v_permlane32_swap_b32 v{ACC+1}, v{ACC+3}")
    I(f"v_mov_b32 v{A0}, v{ACC}"); I(f"v_mov_b32 v{A0+1}, s95"); I(f"v_mov_b32 v{A0+2}, v{ACC+1}"); I(f"v_mov_b32 v{A0+3}, s95")
    I(f"buffer_store_dwordx4 {vr(A0)}, v164, s[44:47], s85 offen offset:{P1} sc1")
    stamp(2)
    dstamp(11)
    finish()
    a.label(nomod)
    (I("s_barrier") if not noB0 else None)
    finish()

    a.label("L_ctrl")
    if pad and padat=='start': I("s_memrealtime s[42:43]")
    I("s_setprio 3")
    I("s_waitcnt lgkmcnt(0)")
    stamp(0)
    epoch_load()
    srd(48,16,None,1152)
    I("s_lshr_b32 s87, s6, 1"); I("s_mul_i32 s87, s87, 72")
    I("s_lshl_b32 s7, s87, 1")
    I("v_lshlrev_b32 v4, 3, v1")
    I(f"buffer_load_dwordx2 v[{XR}:{XR+1}], v4, s[48:51], s7 offen")
    I("v_lshlrev_b32 v5, 5, v1")
    I(f"buffer_load_dwordx4 {vr(XF)}, v5, s[48:51], 0 offen")
    I(f"buffer_load_dwordx4 {vr(XF+4)}, v5, s[48:51], 0 offen offset:16")
    I("s_lshl_b32 s7, s87, 13"); I("s_lshl_b32 s10, s5, 9"); I("s_add_u32 s7, s7, s10")
    I("s_and_b32 s10, s6, 1"); I("s_lshl_b32 s10, s10, 8"); I("s_add_u32 s7, s7, s10")
    srd_rem(52,22,7,4718592)
    I("v_lshlrev_b32 v4, 13, v2"); I("v_lshl_add_u32 v4, v3, 4, v4")
    for i in range(0 if notiles else 18):
        I(f"s_mov_b32 s84, {i*32768:#x}")
        I(f"buffer_load_dwordx4 {vr(TILE+4*i)}, v4, s[52:55], s84 offen {wflag}")
    (I("s_barrier") if not noB0 else None)
    ws_setup(); diag_consts()
    I("s_waitcnt vmcnt(18) lgkmcnt(0)")
    tag()
    stamp(1)
    S,S2=T,T+1
    I(f"v_mov_b32 v{S}, 0"); I(f"v_mov_b32 v{S2}, 0")
    for k in range(8):
        unpack2(T+2,T+3,XF+k)
        I(f"v_add_f32 v{S}, v{S}, v{T+2}"); I(f"v_fmac_f32 v{S2}, v{T+2}, v{T+2}")
        I(f"v_add_f32 v{S}, v{S}, v{T+3}"); I(f"v_fmac_f32 v{S2}, v{T+3}, v{T+3}")
    for k in (8,4,2,1): ror("v_add_f32",[S,S2],k)
    xswap("v_add_f32",[S,S2],[T+2,T+3],16); xswap("v_add_f32",[S,S2],[T+2,T+3],32)
    MB,INV=XF,XF+1
    ln_stats(S,S2,MB,INV)
    GA=92
    if nochain: I("s_branch L_skipchain")
    I("v_and_b32 v4, 31, v1"); I("v_lshl_add_u32 v4, v4, 2, s87")
    I("v_cmp_lt_u32 vcc, 31, v1"); I("v_mov_b32 v5, 576"); I("v_cndmask_b32 v5, 0, v5, vcc"); I("v_add_u32 v4, v4, v5")
    I("v_lshrrev_b32 v5, 7, v4"); I("v_lshlrev_b32 v5, 3, v5"); I("v_mul_u32_u24 v5, s86, v5")
    I("v_bfe_u32 v156, v4, 3, 4"); I("v_bfe_u32 v157, v4, 2, 1"); I("v_lshl_add_u32 v156, v157, 4, v156")
    I("v_lshl_add_u32 v4, v156, 4, v5")
    I("s_lshl_b32 s7, s5, 4"); I("v_add_u32 v158, s7, v1"); I("v_mul_u32_u24 v158, s86, v158")
    I("v_mov_b32 v159, s95")
    def soffs(n,step,base=88):
        res=["0"]
        for k in range(1,n):
            I(f"s_mov_b32 s{base+k-1}, {k*step}"); res.append(f"s{base+k-1}")
        return res
    so=soffs(8,STRIDE)
    def p1loads():
        l=[]
        for k in range(8):
            l.append(f"buffer_load_dwordx4 {vr(GA+8*k)}, v4, s[44:47], {so[k]} offen offset:{P1} sc1")
            l.append(f"buffer_load_dwordx4 {vr(GA+8*k+4)}, v4, s[44:47], {so[k]} offen offset:{P1+512} sc1")
        return l
    p1tags=[GA+8*k+o for k in range(8) for o in (1,3,5,7)]
    def p1sum(D):
        for r,o in enumerate((0,2,4,6)): I(f"v_add_f32 v{D+r}, v{GA+o}, v{GA+8+o}")
        for k in range(2,8):
            for r,o in enumerate((0,2,4,6)): I(f"v_add_f32 v{D+r}, v{D+r}, v{GA+8*k+o}")
    def sleep(nn):
        while nn>0:
            k=min(nn,120); I(f"s_sleep {k}"); nn-=k
    sleep(sl1)
    setexec(0x3ffff,0x3ffff)
    poll(p1loads()+["s_mov_b32 exec_lo, 0xffff","s_mov_b32 exec_hi, 0",f"buffer_load_dword v159, v158, s[44:47], 0 offen offset:{FL} sc1","s_mov_b32 exec_lo, 0x3ffff","s_mov_b32 exec_hi, 0x3ffff"],
         tags=p1tags+[159], name="m", tmp=160)
    fullexec()
    stamp(4)
    if pad and padat=='p1': I("s_memrealtime s[42:43]")
    p1sum(156)
    for r in range(4): rnd(GB+r,156+r)
    for r in range(4): I(f"v_mov_b32 v{GB+4+r}, v{GB+r}")
    for r in range(4): I(f"v_permlane32_swap_b32 v{GB+r}, v{GB+4+r}")
    H=GB+8; Tt=GB+12
    unpack2(H,H+1,XR); unpack2(H+2,H+3,XR+1)
    for r in range(4): I(f"v_sub_f32 v{H+r}, v{H+r}, v{MB}")
    for r in range(4): I(f"v_add_f32 v{Tt+r}, 1.0, v{GB+4+r}")
    for r in range(4): rnd(H+r,H+r)
    for r in range(4): rnd(Tt+r,Tt+r)
    for r in range(4): I(f"v_mul_f32 v{H+r}, v{H+r}, v{INV}")
    for r in range(4): rnd(H+r,H+r)
    for r in range(4): I(f"v_mul_f32 v{H+r}, v{H+r}, v{Tt+r}")
    for r in range(4): rnd(H+r,H+r)
    for r in range(4): I(f"v_add_f32 v{H+r}, v{H+r}, v{GB+r}")
    for r in range(4): dup(H+r,H+r)
    I(f"ds_write_b128 v164, {vr(H)} offset:{TL2}")
    I("s_waitcnt lgkmcnt(0)")
    matvec18(TILE,AV,A0,A1,ACC,TL2)
    I("v_lshlrev_b32 v4, 5, v3"); I("v_lshl_add_u32 v4, v2, 4, v4")
    setexec(0xffffffff,0)
    I(f"buffer_store_dwordx4 {vr(ACC)}, v4, s[44:47], s85 offen offset:{P2} sc1")
    fullexec()
    stamp(5)
    nr=L("nored")
    I("s_sub_u32 s13, 6, s6"); I("s_lshl_b32 s13, s13, 4"); I("s_add_u32 s13, s13, s5"); I("s_cmp_lt_u32 s13, 18"); I(f"s_cbranch_scc0 {nr}")
    I("s_add_u32 s7, s13, 9"); I(f"s_mul_i32 s7, s7, {8*STRIDE}")
    I("v_and_b32 v4, 1, v1"); I("v_lshrrev_b32 v5, 1, v1"); I("v_lshl_add_u32 v4, v4, 4, v5"); I("v_lshl_add_u32 v4, v4, 4, s7")
    setexec(0xffffffff,0)
    poll(p1loads(), tags=p1tags, name="b", tmp=160)
    p1sum(156)
    for r in range(4): rnd(156+r,156+r)
    I("s_lshl_b32 s7, s13, 9"); I(f"s_add_u32 s7, s7, {P1BA:#x}")
    I(f"buffer_store_dwordx4 v[156:159], v164, s[44:47], s7 offen sc1")
    fullexec()
    a.label(nr)
    I("v_lshrrev_b32 v4, 5, v1"); I("s_lshl_b32 s7, s5, 4"); I("v_add_u32 v4, s7, v4"); I("v_mul_u32_u24 v4, s86, v4")
    I("v_and_b32 v5, 31, v1"); I("v_lshl_add_u32 v4, v5, 4, v4")
    I("v_lshlrev_b32 v158, 7, v1"); I("v_mov_b32 v159, s95"); I(f"s_mov_b32 s12, {GCLR_OFF:#x}")
    so=soffs(8,2*STRIDE)
    sleep(sl2)
    poll([f"buffer_load_dwordx4 {vr(GB+4*k)}, v4, s[44:47], {so[k]} offen offset:{P2} sc1" for k in range(8)]+
         ["s_mov_b32 exec_lo, 0xffff","s_mov_b32 exec_hi, 0","buffer_load_dword v159, v158, s[44:47], s12 offen sc1","s_mov_b64 exec, -1"],
         sent=list(range(GB,GB+32)), tags=[159], name="q", tmp=160)
    for k in (0,2,4,6):
        for r in range(4): I(f"v_add_f32 v{GB+4*k+r}, v{GB+4*k+r}, v{GB+4*k+4+r}")
    for k in (0,4):
        for r in range(4): I(f"v_add_f32 v{GB+4*k+r}, v{GB+4*k+r}, v{GB+4*k+8+r}")
    for r in range(4): I(f"v_add_f32 v{GB+r}, v{GB+r}, v{GB+16+r}")
    I(f"v_cvt_pk_bf16_f32 v{GB+4}, v{GB}, v{GB+1}"); I(f"v_cvt_pk_bf16_f32 v{GB+5}, v{GB+2}, v{GB+3}")
    I("v_lshlrev_b32 v4, 3, v1")
    I(f"ds_write_b64 v4, v[{GB+4}:{GB+5}] offset:{QL}")
    I("s_waitcnt lgkmcnt(0)")
    a.label("L_skipchain")
    stamp(6)
    if pad and padat=='q': I("s_memrealtime s[42:43]")
    dstamp(2)
    I("s_barrier")
    code_touch(8)
    I("s_mov_b32 s72, 0xffff0000"); I("s_mov_b32 s73, 0"); I("s_mov_b32 s74, 0"); I("s_mov_b32 s75, 0xffff"); I("s_mov_b32 s76, 0"); I("s_mov_b32 s77, 0xffff0000")
    I("s_barrier")
    I("v_lshlrev_b32 v152, 4, v1"); I("v_mov_b32 v4, 0")
    I(f"ds_read_b128 {vr(80)}, v4 offset:{WMAX}"); I(f"ds_read_b128 {vr(84)}, v4 offset:{WMAX+16}")
    I(f"ds_read_b128 {vr(88)}, v4 offset:{WMAX+32}"); I(f"ds_read_b128 {vr(92)}, v4 offset:{WMAX+48}")
    I("s_waitcnt lgkmcnt(0)")
    R=96
    for h in range(2):
        b=80+8*h
        I(f"v_max3_f32 v{R+2*h}, v{b}, v{b+1}, v{b+2}"); I(f"v_max3_f32 v{R+2*h}, v{R+2*h}, v{b+3}, v{b+4}")
        I(f"v_max3_f32 v{R+2*h}, v{R+2*h}, v{b+5}, v{b+6}"); I(f"v_max_f32 v{R+2*h}, v{R+2*h}, v{b+7}")
    I("s_barrier")
    I(f"ds_read_b64 v[100:101], v4 offset:{LSUM}")
    I("s_waitcnt lgkmcnt(0)")
    I(f"v_mov_b32 v{R+1}, v100"); I(f"v_mov_b32 v{R+3}, v101")
    setexec(0xff,0)
    I(f"buffer_store_dwordx4 {vr(R)}, v152, s[44:47], s85 offen offset:{ML} sc1")
    fullexec()
    I("s_barrier")
    stamp(7)
    O=104
    for k in range(8): I(f"ds_read_b128 {vr(O+4*k)}, v152 offset:{OBUF+1024*k}")
    for k in (0,2,4,6):
        I(f"s_waitcnt lgkmcnt({6-k})")
        for r in range(4): I(f"v_add_f32 v{O+4*k+r}, v{O+4*k+r}, v{O+4*k+4+r}")
    for k in (0,4):
        for r in range(4): I(f"v_add_f32 v{O+4*k+r}, v{O+4*k+r}, v{O+4*k+8+r}")
    for r in range(4): I(f"v_add_f32 v{O+r}, v{O+r}, v{O+16+r}")
    I(f"buffer_store_dwordx4 {vr(O)}, v152, s[44:47], s85 offen offset:{P3} sc1")
    stamp(8)
    if pad and padat=='p3': I("s_memrealtime s[42:43]")
    dstamp(5)
    if notail: finish()
    I("s_cmp_eq_u32 s81, 2"); I("s_cbranch_scc1 L_mlp_tail")
    I("s_cmp_eq_u32 s81, 1"); cw=L("cwo"); I(f"s_cbranch_scc1 {cw}")
    finish()
    a.label(cw)
    a.C("wo role control: canary on the 16 ML lines, compute normalised split weights")
    I("s_lshl_b32 s7, s5, 4"); I("v_add_u32 v4, s7, v1"); I("v_mul_u32_u24 v4, s86, v4")
    setexec(0xffff,0)
    poll([f"buffer_load_dwordx4 {vr(80)}, v4, s[44:47], 0 offen offset:{ML} sc1"], sent=[80,81,82,83], name="ml", tmp=84)
    I("s_cmp_eq_u32 s6, 0"); nf=L("nof4"); I(f"s_cbranch_scc0 {nf}")
    fullexec()
    I("v_mov_b32 v5, s95"); I("v_lshlrev_b32 v6, 2, v1"); I("s_lshl_b32 s7, s5, 7"); I(f"s_add_u32 s7, s7, {F4A:#x}")
    setexec(0xffffffff,0)
    I("buffer_store_dword v5, v6, s[44:47], s7 offen sc1")
    setexec(0xffff,0)
    a.label(nf)
    I("v_mov_b32 v84, v80"); I("v_mov_b32 v85, v82")
    for k in (8,4,2,1): ror("v_max_f32",[84,85],k)
    I("v_sub_f32 v80, v80, v84"); I("v_sub_f32 v82, v82, v85")
    I(f"v_mul_f32 v80, {LOG2E:#x}, v80"); I(f"v_mul_f32 v82, {LOG2E:#x}, v82")
    I("v_exp_f32 v80, v80"); I("v_exp_f32 v82, v82")
    I("v_mul_f32 v84, v80, v81"); I("v_mul_f32 v85, v82, v83")
    for k in (8,4,2,1): ror("v_add_f32",[84,85],k)
    I("v_rcp_f32 v84, v84"); I("v_rcp_f32 v85, v85")
    I("v_mul_f32 v80, v80, v84"); I("v_mul_f32 v82, v82, v85")
    I("v_lshlrev_b32 v4, 2, v1")
    I(f"ds_write_b32 v4, v80 offset:{WGT}"); I(f"ds_write_b32 v4, v82 offset:{WGT+64}")
    I("s_waitcnt lgkmcnt(0)")
    fullexec()
    I("s_barrier")
    finish()
    a.label("L_end")
    I("s_endpgm")

    body=a.finish()
    out=HEADER
    out+=f"; @launch grid=(256,1,1) block=(704,1,1) lds={LDS_BYTES}\n"
    out+=DOC
    out+='.amdgcn_target "amdgcn-amd-amdhsa--gfx950"\n.text\n'
    out+=f".globl {NAME}_kernel\n.p2align 8\n.type {NAME}_kernel,@function\n"
    out+=body
    out+=f""".section .rodata,"a"
.p2align 6
.amdhsa_kernel {NAME}_kernel
  .amdhsa_next_free_vgpr 168
  .amdhsa_next_free_sgpr 100
  .amdhsa_accum_offset 168
  .amdhsa_group_segment_fixed_size 0
  .amdhsa_float_denorm_mode_32 3
  .amdhsa_kernarg_size 104
  .amdhsa_user_sgpr_count 2
  .amdhsa_user_sgpr_kernarg_segment_ptr 1
  .amdhsa_system_sgpr_workgroup_id_x 1
.end_amdhsa_kernel
"""
    return out

if __name__=="__main__":
    import argparse
    p=argparse.ArgumentParser()
    p.add_argument("-o",default="cdna_kernels/"+NAME+".s")
    p.add_argument("--W",type=int,default=4); p.add_argument("--W0",type=int,default=4); p.add_argument("--n0",type=int,default=0); p.add_argument("--Wwo",type=int,default=5)
    p.add_argument("--ld",default=""); p.add_argument("--wf",default=""); p.add_argument("--stamps",action="store_true")
    p.add_argument("--sl1",type=int,default=140); p.add_argument("--sl2",type=int,default=40); p.add_argument("--norot",action="store_true"); p.add_argument("--woearly",action="store_true"); p.add_argument("--W2",type=int,default=4); p.add_argument("--Ww",type=int,default=3); p.add_argument("--psleep",type=int,default=0); p.add_argument("--nowt",action="store_true"); p.add_argument("--notail",action="store_true"); p.add_argument("--gate",type=int,default=1); p.add_argument("--notlbw",action="store_true"); p.add_argument("--notiles",action="store_true"); p.add_argument("--nochain",action="store_true"); p.add_argument("--noclear",action="store_true"); p.add_argument("--noB0",action="store_true"); p.add_argument("--dbg",action="store_true"); p.add_argument("--pad",type=int,default=0); p.add_argument("--padat",default="start")
    x=p.parse_args()
    open(x.o,"w").write(gen(W=x.W,W0=x.W0,n0=x.n0,Wwo=x.Wwo,ldflag=x.ld,wflag=x.wf,stamps=x.stamps,sl1=x.sl1,sl2=x.sl2,rot=not x.norot,wolate=not x.woearly,W2=x.W2,Ww=x.Ww,psleep=x.psleep,nowt=x.nowt,notail=x.notail,gate=x.gate,tlbw=not x.notlbw,notiles=x.notiles,nochain=x.nochain,noclear=x.noclear,noB0=x.noB0,dbg=x.dbg,pad=x.pad,padat=x.padat))
```

```python
from asmlib import Asm

NAME="adaLN_cond__gqa_block_cached__dense_activation_silu__decode"
STRIDE=2816
P1,P2,P3,ML,FL=0,1024,1536,2560,2688
P4A,P5A,P1BA,F4A=0xB0000,0xBA000,0x10B000,0x10D400
GCLR_OFF=0x10E000; EPOCH_OFF=0x10F000; WS_SIZE=0x110000
QL,TL,TL2,WML,WGT,QFLAG,CNT,STAT,RED,SCR,OBUF,WAREA=0,512,1536,2560,2688,2816,2820,2824,3072,7680,12288,20480
WOA=WAREA
LDS_BYTES=WAREA+9*8192
SPIN=200000
LOG2E=0x3fb8aa3b
SCALE=0x3db504f3
EPS=0x3727c5ac
INV576=0x3ae38e39
STAMP_OFF=0x400000
HASH_A=0x9E3779B1; HASH_C=0x7F4A7C15
CODE_SLICE=2048
HEADER=open("cdna_kernels/"+NAME+".s.ref").read().split("; Override launch")[0]

def gen(W=4, W0=4, n0=0, Wwo=5, ldflag="", wflag="", stamps=False, sl1=140, sl2=40, rot=True, wolate=True, W2=4, Ww=3, psleep=0, nowt=False, notail=False, cps=(3,7,11), gate=1, tlbw=True, notiles=False, nochain=False, noclear=False, noB0=False, dbg=False, pad=0, padat='start'):
    a=Asm(); I=a.I
    uid=[0]
    def L(p):
        uid[0]+=1; return f"L_{p}_{uid[0]}"
    def vr(b,n=4): return f"v[{b}:{b+n-1}]"
    def rnd(d,s): I(f"v_cvt_pk_bf16_f32 v{d}, 0, v{s}")
    def dup(d,s): I(f"v_cvt_pk_bf16_f32 v{d}, v{s}, v{s}")
    def dpp(op,d,s0,s1,ctl): I(f"{op}_dpp v{d}, v{s0}, v{s1} {ctl} row_mask:0xf bank_mask:0xf")
    def ror(op,regs,k):
        for v in regs: dpp(op,v,v,v,f"row_ror:{k}")
    def xswap(op,regs,tmp,which):
        for v,t in zip(regs,tmp): I(f"v_mov_b32 v{t}, v{v}")
        for v,t in zip(regs,tmp): I(f"v_permlane{which}_swap_b32 v{v}, v{t}")
        for v,t in zip(regs,tmp): I(f"{op} v{v}, v{v}, v{t}")
    STV=7
    _I=I
    def I(t):
        if nowt and " lds" in t and "buffer_load" in t: return
        _I(t)
    DBGMAP={}
    def dstamp(slot, inv=False, only=None, wg=7):
        if not dbg or inv: return
        sk=L("ds")
        I(f"s_cmp_eq_u32 s4, {wg}"); I(f"s_cbranch_scc0 {sk}")
        if only is not None:
            I(f"s_cmp_eq_u32 s3, {only}"); I(f"s_cbranch_scc0 {sk}")
        I("s_memrealtime s[96:97]"); I("s_waitcnt lgkmcnt(0)")
        I("s_mov_b64 s[92:93], exec"); I("s_mov_b64 exec, 1")
        I("v_mov_b32 v7, s96"); I(f"v_mov_b32 v0, {slot*4}")
        I("global_store_dword v0, v7, s[38:39]")
        I("s_mov_b64 exec, s[92:93]")
        a.label(sk)
    def stamp(i):
        if dbg and i in DBGMAP: dstamp(*DBGMAP[i])
        if stamps:
            I("s_memrealtime s[96:97]"); I("s_waitcnt lgkmcnt(0)")
            I(f"v_writelane_b32 v{STV}, s96, {i}")
    def finish():
        if stamps:
            I("s_mov_b64 exec, -1")
            stamp(15)
            I("s_mul_i32 s7, s4, 11"); I("s_add_u32 s7, s7, s3"); I("s_lshl_b32 s7, s7, 8"); I(f"s_add_u32 s7, s7, {STAMP_OFF}")
            I("s_add_u32 s8, s40, s7"); I("s_addc_u32 s9, s41, 0")
            I("v_lshlrev_b32 v8, 2, v1")
            I(f"global_store_dword v8, v{STV}, s[8:9]")
        I("s_endpgm")
    def spin_tail(lo,dn):
        I(f"s_cbranch_vccz {dn}")
        if psleep: I(f"s_sleep {psleep}")
        I("s_add_u32 s80, s80, 1"); I(f"s_cmp_lt_u32 s80, {SPIN}"); I(f"s_cbranch_scc1 {lo}")
        a.label(dn)
    def check_sent(regs,tmp):
        regs=list(regs); i=0; cur=None
        if len(regs)==1: cur=regs[0]
        else:
            while i<len(regs):
                if cur is None:
                    if len(regs)-i>=3: I(f"v_max3_u32 v{tmp}, v{regs[i]}, v{regs[i+1]}, v{regs[i+2]}"); i+=3
                    else: I(f"v_max_u32 v{tmp}, v{regs[i]}, v{regs[i+1]}"); i+=2
                    cur=tmp
                else:
                    if len(regs)-i>=2: I(f"v_max3_u32 v{tmp}, v{tmp}, v{regs[i]}, v{regs[i+1]}"); i+=2
                    else: I(f"v_max_u32 v{tmp}, v{tmp}, v{regs[i]}"); i+=1
        I(f"v_cmp_eq_u32 vcc, -1, v{cur}")
    def check_tags(tagregs,tmp,first=True):
        for k,r in enumerate(tagregs):
            if k==0 and first: I(f"v_xor_b32 v{tmp}, s95, v{r}")
            else: I(f"v_xad_u32 v{tmp}, v{r}, s95, v{tmp}")
    def poll(loads, sent=(), tags=(), name="p", tmp=0, mid=None):
        lo=L("poll"+name); dn=L("pd"+name)
        I("s_mov_b32 s80, 0")
        a.label(lo)
        for t in loads: I(t)
        I("s_waitcnt vmcnt(0)")
        if mid: mid()
        if sent and tags:
            check_tags(tags,tmp+1)
            check_sent(sent,tmp)
            I(f"v_cmp_ne_u32 s[10:11], 0, v{tmp+1}")
            I("s_or_b64 vcc, vcc, s[10:11]")
        elif tags:
            check_tags(tags,tmp); I(f"v_cmp_ne_u32 vcc, 0, v{tmp}")
        else:
            check_sent(sent,tmp)
        spin_tail(lo,dn)
    def setexec(lo,hi):
        I(f"s_mov_b32 exec_lo, {lo:#x}"); I(f"s_mov_b32 exec_hi, {hi:#x}")
    def fullexec(): I("s_mov_b64 exec, -1")
    def srd(dst, base, off, size):
        if off is None:
            I(f"s_mov_b32 s{dst}, s{base}"); I(f"s_mov_b32 s{dst+1}, s{base+1}")
        else:
            I(f"s_add_u32 s{dst}, s{base}, s{off}"); I(f"s_addc_u32 s{dst+1}, s{base+1}, 0")
        I(f"s_mov_b32 s{dst+2}, {size}"); I(f"s_mov_b32 s{dst+3}, 0x20000")
    def srd_rem(dst, base, off, total):
        I(f"s_add_u32 s{dst}, s{base}, s{off}"); I(f"s_addc_u32 s{dst+1}, s{base+1}, 0")
        I(f"s_sub_u32 s{dst+2}, {total}, s{off}"); I(f"s_mov_b32 s{dst+3}, 0x20000")
    def silu(vs,ts):
        for v,t in zip(vs,ts): I(f"v_mul_f32 v{t}, 0xbfb8aa3b, v{v}")
        for v,t in zip(vs,ts): I(f"v_exp_f32 v{t}, v{t}")
        for v,t in zip(vs,ts): I(f"v_add_f32 v{t}, 1.0, v{t}")
        for v,t in zip(vs,ts): I(f"v_rcp_f32 v{t}, v{t}")
        for v,t in zip(vs,ts): I(f"v_mul_f32 v{v}, v{v}, v{t}")
    def ln_stats(S,S2,mean_b,inv):
        I(f"v_mul_f32 v{S}, {INV576:#x}, v{S}")
        I(f"v_mul_f32 v{S2}, {INV576:#x}, v{S2}")
        I(f"v_fma_f32 v{S2}, -v{S}, v{S}, v{S2}")
        rnd(mean_b,S)
        I(f"v_max_f32 v{S2}, 0, v{S2}")
        rnd(S2,S2)
        I(f"v_add_f32 v{S2}, {EPS:#x}, v{S2}")
        rnd(S2,S2)
        I(f"v_sqrt_f32 v{S2}, v{S2}")
        rnd(S2,S2)
        I(f"v_rcp_f32 v{inv}, v{S2}")
    def unpack2(d0,d1,s):
        I(f"v_and_b32 v{d1}, 0xffff0000, v{s}")
        I(f"v_lshlrev_b32 v{d0}, 16, v{s}")
    def roles():
        I("s_mul_i32 s14, s5, 6"); I("s_add_u32 s14, s14, s6")
        I("s_mul_i32 s82, s5, 9"); I("s_add_u32 s82, s82, s6"); I("s_sub_u32 s82, s82, 7")
        I("s_cmp_lt_u32 s6, 6"); I("s_cselect_b32 s81, 1, 0")
        I("s_cmp_ge_u32 s6, 7"); I("s_cselect_b32 s81, 2, s81")
    def ws_setup():
        srd(44,40,None,WS_SIZE)
        I(f"s_mul_i32 s85, s4, {STRIDE}")
        I(f"s_movk_i32 s86, {STRIDE}")
    def tag():
        I(f"s_mul_i32 s95, s94, {HASH_A:#x}"); I(f"s_add_u32 s95, s95, {HASH_C:#x}")
    def epoch_load():
        I(f"s_add_u32 s8, s40, {EPOCH_OFF:#x}"); I("s_addc_u32 s9, s41, 0"); I("s_load_dword s94, s[8:9], 0")
    def diag_consts():
        for r,m in enumerate((0x03030303,0x0c0c0c0c,0x30303030,0xc0c0c0c0)):
            I(f"s_mov_b32 s{72+2*r}, {m:#x}"); I(f"s_mov_b32 s{73+2*r}, {m:#x}")
        I("v_and_b32 v162, 1, v1"); I("v_cmp_eq_u32 vcc, 1, v162")
        I("v_mov_b32 v162, 0xffff"); I("v_mov_b32 v163, 0xffff0000"); I("v_cndmask_b32 v162, v162, v163, vcc")
        I("v_cmp_gt_u32 vcc, 8, v3"); I("v_cndmask_b32 v162, 0, v162, vcc")
        I("v_lshlrev_b32 v163, 2, v2"); I("v_lshlrev_b32 v164, 4, v1")
    def matvec18(tile, AV, A0, A1, acc, tl):
        for i in range(18): I(f"ds_read_b32 v{AV+i}, v163 offset:{tl+16*i}")
        for i in range(18):
            if i in (0,6,12): I(f"s_waitcnt lgkmcnt({12-i if i<12 else 0})")
            A = A0 if i%2==0 else A1
            I(f"v_and_b32 v{AV+i}, v{AV+i}, v162")
            for r in range(4): I(f"v_cndmask_b32 v{A+r}, 0, v{AV+i}, s[{72+2*r}:{73+2*r}]")
            src = "0" if i==0 else vr(acc)
            I(f"v_mfma_f32_16x16x32_bf16 {vr(acc)}, {vr(A)}, {vr(tile+4*i)}, {src}")
    def code_touch(dst):
        I("s_getpc_b64 s[8:9]")
        lb=L("pc"); a.label(lb)
        I("s_bfe_u32 s7, s2, 0x30003"); I(f"s_mul_i32 s7, s7, {CODE_SLICE}")
        I(f"s_sub_u32 s8, s8, {lb}-{NAME}_kernel"); I("s_subb_u32 s9, s9, 0")
        I(f"v_lshlrev_b32 v{dst}, 4, v1")
        for k in range(CODE_SLICE//1024):
            I(f"v_add_u32 v{dst+1}, s7, v{dst}"); I(f"s_add_u32 s7, s7, 0x400")
            I(f"v_min_u32 v{dst+1}, L_end-{NAME}_kernel-16, v{dst+1}")
            I(f"global_load_dwordx4 {vr(dst+4+4*k)}, v{dst+1}, s[8:9]")

    a.raw(f"{NAME}_kernel:")
    I("s_cmp_ge_u32 s2, 256"); I("s_cbranch_scc1 L_end")
    I("s_load_dwordx16 s[16:31], s[0:1], 0")
    I("s_load_dwordx8 s[32:39], s[0:1], 64")
    I("s_load_dwordx2 s[40:41], s[0:1], 96")
    I("v_lshrrev_b32 v4, 6, v0")
    I("v_and_b32 v1, 63, v0")
    I("v_readfirstlane_b32 s3, v4")
    I("v_lshrrev_b32 v2, 4, v1")
    I("v_and_b32 v3, 15, v1")
    I("s_and_b32 s5, s2, 7"); I("s_lshl_b32 s5, s5, 1"); I("s_bfe_u32 s7, s2, 0x10003"); I("s_or_b32 s5, s5, s7")
    I("s_lshr_b32 s6, s2, 4")
    I("s_lshl_b32 s4, s5, 4"); I("s_or_b32 s4, s4, s6")
    if stamps: I("v_mov_b32 v7, 0")
    roles()
    I("s_cmp_eq_u32 s3, 0"); I("s_cbranch_scc1 L_ctrl")
    I("s_cmp_eq_u32 s3, 9"); I("s_cbranch_scc1 L_mod")
    I("s_cmp_eq_u32 s3, 10"); I("s_cbranch_scc1 L_clean")

    a.C("================ worker waves (1..8) ================")
    KB,VB,SB,TB=8,72,136,152
    I("s_sub_u32 s83, s3, 1")
    I("v_lshlrev_b32 v4, 8, v3"); I("v_lshl_add_u32 v4, v2, 4, v4")
    I("v_lshlrev_b32 v5, 10, v2"); I("v_lshl_add_u32 v5, v3, 4, v5")
    I("s_lshl_b32 s7, s4, 17"); I("s_lshl_b32 s8, s83, 14"); I("s_add_u32 s7, s7, s8")
    if rot:
        I("s_add_u32 s10, s4, s83")
        for t in range(4):
            I(f"s_add_u32 s11, s10, {t}"); I("s_and_b32 s11, s11, 3"); I(f"s_lshl_b32 s{68+t}, s11, 12")
    else:
        for t in range(4): I(f"s_mov_b32 s{68+t}, {t*4096}")
    soff=["s68","s69","s70","s71"]
    I("s_cmp_eq_u32 s81, 1"); nw_=L("dw1"); dd_=L("dwd"); I(f"s_cbranch_scc0 {nw_}")
    I("s_lshl_b32 s12, s5, 8"); I("s_lshl_b32 s13, s83, 5"); I("s_add_u32 s12, s12, s13"); I("s_mul_i32 s12, s12, 1152")
    I("s_mul_i32 s13, s6, 192"); I("s_add_u32 s12, s12, s13")
    I("s_mul_i32 s13, s83, 6144"); I(f"s_add_u32 s13, s13, {WAREA}"); I("s_mov_b32 s79, 0")
    I("s_movk_i32 s10, 0x1556"); I("s_movk_i32 s11, 0x480")
    for i_ in range(3):
        I(f"v_add_u32 v0, {64*i_}, v1"); I("v_mul_u32_u24 v6, s10, v0"); I("v_lshrrev_b32 v6, 16, v6")
        I("v_mul_u32_u24 v164, 12, v6"); I("v_sub_u32 v0, v0, v164")
        I("v_mul_u32_u24 v6, s11, v6"); I(f"v_lshl_add_u32 v{165+i_}, v0, 4, v6")
    I("s_mov_b32 s88, 0"); I("s_mov_b32 s89, 0"); I("s_mov_b32 s90, 0"); I("s_movk_i32 s91, 0x4800"); I("s_movk_i32 s92, 0x4800"); I("s_movk_i32 s93, 0x4800")
    I(f"s_branch {dd_}")
    a.label(nw_)
    I("s_mul_i32 s12, s3, 589824"); I("s_lshl_b32 s13, s82, 6"); I("s_add_u32 s12, s12, s13")
    I("s_mul_i32 s79, s82, 36864"); I("s_lshl_b32 s13, s3, 7"); I("s_add_u32 s79, s79, s13")
    I("s_lshl_b32 s13, s3, 13"); I(f"s_add_u32 s13, s13, {WAREA}")
    I("v_lshrrev_b32 v165, 2, v1"); I("s_movk_i32 s10, 0x2400"); I("v_mul_u32_u24 v165, s10, v165"); I("v_and_b32 v0, 3, v1"); I("v_lshl_add_u32 v165, v0, 4, v165")
    I("v_mov_b32 v166, v165")
    I("v_lshrrev_b32 v167, 3, v1"); I("s_movk_i32 s10, 0x480"); I("v_mul_u32_u24 v167, s10, v167"); I("v_and_b32 v0, 7, v1"); I("v_lshl_add_u32 v167, v0, 4, v167")
    I("s_mov_b32 s88, 0"); I("s_mov_b32 s89, 147456"); I("s_mov_b32 s90, 0"); I("s_mov_b32 s91, 294912"); I("s_mov_b32 s92, 442368"); I("s_movk_i32 s93, 0x2400")
    I("s_cmp_eq_u32 s81, 0"); I("s_cselect_b32 s12, 0, s12"); I("s_cselect_b32 s79, 0, s79")
    a.label(dd_)
    I("s_waitcnt lgkmcnt(0)")
    stamp(0)
    dstamp(0,True,1); dstamp(1,False,1)
    srd(48,18,7,16384); srd(52,20,7,16384)
    I("s_cmp_eq_u32 s81, 1"); I("s_cselect_b32 s56, s24, s28"); I("s_cselect_b32 s57, s25, s29"); I("s_mov_b32 s58, 5308416"); I("s_cselect_b32 s58, 4718592, s58")
    I("s_add_u32 s56, s56, s12"); I("s_addc_u32 s57, s57, 0"); I("s_sub_u32 s58, s58, s12"); I("s_mov_b32 s59, 0x20000")
    srd_rem(60,30,79,5308416)
    I("s_cmp_eq_u32 s81, 1"); I("s_cselect_b32 s60, s56, s60"); I("s_cselect_b32 s61, s57, s61"); I("s_cselect_b32 s62, s58, s62")
    if gate in (3,4): I("s_cmp_lg_u32 s81, 1")
    else: I("s_cmp_eq_u32 s81, 0")
    I("s_cselect_b32 s58, 0, s58"); I("s_cselect_b32 s62, 0, s62")
    if gate==5:
        I("s_cmp_lg_u32 s81, 1"); I("s_cselect_b32 s62, 0, s62")
    (I("s_barrier") if not noB0 else None)
    def consts_w():
        ws_setup()
        I("v_and_b32 v152, 1, v1"); I("v_cmp_eq_u32 vcc, 1, v152")
        I("v_mov_b32 v152, 0xffff"); I("v_mov_b32 v153, 0xffff0000"); I("v_cndmask_b32 v152, v152, v153, vcc")
        I("v_bfe_u32 v153, v1, 1, 2")
        for r in range(4):
            I(f"v_cmp_eq_u32 vcc, {r}, v153"); I(f"v_cndmask_b32 v{160+r}, 0, v152, vcc")
        I("s_mov_b32 s72, 0xffff0000"); I("s_mov_b32 s73, 0"); I("s_mov_b32 s74, 0"); I("s_mov_b32 s75, 0xffff"); I("s_mov_b32 s76, 0"); I("s_mov_b32 s77, 0xffff0000")
        I("v_mov_b32 v0, 0")
    def stream(Wn, wo):
        if wo:
            I("v_lshlrev_b32 v0, 1, v2"); I("v_xor_b32 v0, v0, v3"); I("s_movk_i32 s10, 0x480"); I("v_mul_u32_u24 v6, s10, v2")
            I("v_lshl_add_u32 v164, v0, 4, v6"); I("v_xor_b32 v0, 8, v0"); I("v_lshl_add_u32 v165, v0, 4, v6")
            for i in range(8):
                I(f"s_add_u32 m0, s13, {i*1024}"); I(f"s_mov_b32 s84, {i*4608}")
                I(f"buffer_load_dwordx4 v{164+(i&1)}, s[56:59], s84 offen lds {wflag}".replace(" lds nt"," nt lds"))
                if i>=Wn-1: I(f"s_waitcnt vmcnt({Wn-1})")
        for t in range(4):
            for c in range(4):
                I(f"buffer_load_dwordx4 {vr(KB+(4*t+c)*4)}, v4, s[48:51], {soff[t]} offen offset:{c*64} {ldflag}")
                wk = W0 if 4*t+c<n0 else Wn
                if 4*t+c>=wk-1: I(f"s_waitcnt vmcnt({wk-1})")
        for idx in range(16):
            t,r=divmod(idx,4)
            I(f"buffer_load_dwordx4 {vr(VB+idx*4)}, v5, s[52:55], {soff[t]} offen offset:{r*256} {ldflag}")
            if idx<15: I(f"s_waitcnt vmcnt({(Wn if idx<6 else max(Wn,W2))-1})")
            if idx==3: consts_w()
            if idx in cps:
                I(f"ds_read_b32 v6, v0 offset:{QFLAG}"); I(f"s_movk_i32 s8, {idx+1}"); I("s_waitcnt lgkmcnt(0)")
                I("v_readfirstlane_b32 s7, v6"); I("s_cmp_eq_u32 s7, 1"); I("s_cbranch_scc1 L_qk")
    stream(W,False)
    MK=160; Q=152; ACC=8+40
    stamp(1)
    dstamp(3,False,8)
    I("s_movk_i32 s8, 16"); I("s_mov_b32 s80, 0")
    lo=L("qw"); a.label(lo)
    I(f"ds_read_b32 v6, v0 offset:{QFLAG}"); I("s_waitcnt lgkmcnt(0)")
    I("v_readfirstlane_b32 s7, v6"); I("s_cmp_eq_u32 s7, 1"); I("s_cbranch_scc1 L_qk")
    I("s_sleep 1"); I("s_add_u32 s80, s80, 1"); I(f"s_cmp_lt_u32 s80, {SPIN*4}"); I(f"s_cbranch_scc1 {lo}")
    a.label("L_qk")
    stamp(2)
    I("v_lshrrev_b32 v164, 3, v3"); I("v_lshlrev_b32 v164, 8, v164"); I("v_lshl_add_u32 v164, v2, 4, v164")
    I(f"ds_read_b128 {vr(Q)}, v164 offset:{QL}"); I(f"ds_read_b128 {vr(Q+4)}, v164 offset:{QL+64}")
    for c in range(4):
        I(f"s_waitcnt lgkmcnt({1 if c<3 else 0})")
        qb=Q+4*(c%2)
        for t in range(4):
            src = "0" if c==0 else vr(SB+4*t)
            I(f"v_mfma_f32_16x16x32_bf16 {vr(SB+4*t)}, {vr(qb)}, {vr(KB+(4*t+c)*4)}, {src}")
        if c<2: I(f"ds_read_b128 {vr(qb)}, v164 offset:{QL+(c+2)*64}")
    S=[SB,SB+4,SB+8,SB+12]
    I("v_lshrrev_b32 v6, 1, v2"); I("v_lshlrev_b32 v0, 8, v6"); I("v_lshlrev_b32 v6, 3, v6")
    I("s_lshl_b32 s7, s83, 4"); I("v_add_u32 v4, s7, v6")
    I("s_lshl_b32 s9, s83, 9"); I(f"s_add_u32 s9, s9, {SCR}")
    I("v_lshl_add_u32 v0, v3, 2, v0"); I("v_add_u32 v0, s9, v0")
    I("v_add_u32 v164, s9, v164")
    for x in S: rnd(x,x)
    for x in S: I(f"v_mul_f32 v{x}, {SCALE:#x}, v{x}")
    for x in S: rnd(x,x)
    M=SB+2; M2=SB+3; M3=SB+1
    I(f"v_max3_f32 v{M}, v{S[0]}, v{S[1]}, v{S[2]}"); I(f"v_max_f32 v{M}, v{M}, v{S[3]}")
    for k in (8,4,2,1): ror("v_max_f32",[M],k)
    I(f"s_mov_b32 s7, {LOG2E:#x}")
    I(f"v_mul_f32 v{M3}, 0xbfb8aa3b, v{M}")
    for x in S: I(f"v_fma_f32 v{x}, v{x}, s7, v{M3}")
    for x in S: I(f"v_exp_f32 v{x}, v{x}")
    I(f"v_add_f32 v{M2}, v{S[0]}, v{S[1]}"); I(f"v_add_f32 v{M3}, v{S[2]}, v{S[3]}")
    for x in S: dup(x,x)
    I(f"v_add_f32 v{M2}, v{M2}, v{M3}")
    for t,x in enumerate(S): I(f"ds_write_b32 v0, v{x} offset:{64*t}")
    for k in (8,4,2,1): ror("v_add_f32",[M2],k)
    for t in range(4): I(f"ds_read_b128 {vr(SB+4*t) if t else vr(Q)}, v164 offset:{64*t}")
    I(f"ds_write_b64 v4, v[{M}:{M2}] offset:{WML}")
    I("v_mov_b32 v6, 1"); I("v_mov_b32 v0, 0")
    setexec(1,0)
    I(f"ds_add_u32 v0, v6 offset:{CNT}")
    fullexec()
    for c in cps:
        I(f"s_cmp_eq_u32 s8, {c+1}"); I(f"s_cbranch_scc1 L_rest_{c+1}")
    I("s_branch L_rest_16")
    for idx in range((min(cps)+1) if cps else 16,16):
        if idx-1 in cps: a.label(f"L_rest_{idx}")
        t,r=divmod(idx,4)
        I(f"buffer_load_dwordx4 {vr(VB+idx*4)}, v5, s[52:55], {soff[t]} offen offset:{r*256} {ldflag}")
    a.label("L_rest_16")
    I("s_waitcnt lgkmcnt(0)")
    for r in range(4): I(f"v_mov_b32 v{SB+r}, v{Q+r}")
    stamp(3)
    A0,A1=Q,Q+4
    I("v_lshrrev_b32 v4, 1, v2"); I("v_lshlrev_b32 v4, 9, v4"); I("v_lshl_add_u32 v4, v3, 5, v4")
    I("v_and_b32 v5, 1, v2"); I("v_lshl_add_u32 v4, v5, 4, v4")
    I("s_lshl_b32 s7, s83, 10"); I("v_add_u32 v4, s7, v4")
    for idx in range(16):
        A=A0 if idx%2==0 else A1
        for r in range(4): I(f"v_and_b32 v{A+r}, v{SB+idx}, v{MK+r}")
        I(f"s_waitcnt vmcnt({15-idx if idx<=10 else 5})")
        src="0" if idx==0 else vr(ACC)
        I(f"v_mfma_f32_16x16x32_bf16 {vr(ACC)}, {vr(A)}, {vr(VB+4*idx)}, {src}")
        if idx>=10:
            k=idx-10
            I(f"s_add_u32 m0, s13, {k*1024}"); I("s_nop 0")
            sr=60 if k%3==2 else 56
            I(f"buffer_load_dwordx4 v{165+k%3}, s[{sr}:{sr+3}], s{88+k} offen lds {wflag}".replace(" lds nt"," nt lds"))
    I(f"ds_write_b128 v4, {vr(ACC)} offset:{OBUF}")
    I("s_waitcnt lgkmcnt(0)")
    stamp(4)
    dstamp(4,False,8)
    I("s_barrier")
    if notail: finish()
    I("s_cmp_eq_u32 s81, 2"); I("s_cbranch_scc1 L_mlp_tail")
    I("s_cmp_eq_u32 s81, 1"); I("s_cbranch_scc1 L_wo_tail")
    finish()

    a.label("L_wo_tail")
    O1,O2,M1,T=72,76,80,88
    I("v_lshrrev_b32 v6, 2, v3"); I("v_lshl_add_u32 v4, v2, 3, v6"); I("s_movk_i32 s7, 192"); I("v_mul_u32_u24 v4, s7, v4")
    I("v_and_b32 v6, 3, v3"); I("v_lshl_add_u32 v4, v6, 3, v4"); I("v_add_u32 v86, s13, v4")
    I("v_bfe_u32 v6, v1, 1, 3"); I("s_lshl_b32 s7, s5, 4"); I("v_add_u32 v4, s7, v6"); I("v_mul_u32_u24 v4, s86, v4")
    I("v_and_b32 v5, 1, v1"); I("v_lshlrev_b32 v5, 4, v5"); I("v_lshl_add_u32 v5, v2, 5, v5")
    I("s_lshl_b32 s7, s83, 7"); I("v_add3_u32 v84, v4, v5, s7")
    I("s_lshr_b32 s7, s83, 2"); I("s_lshl_b32 s7, s7, 6"); I("v_lshl_add_u32 v85, v6, 2, s7")
    I(f"s_mov_b32 s84, {8*STRIDE}")
    I("s_waitcnt vmcnt(0)"); stamp(12)
    for c in range(6):
        I(f"ds_read_b64_tr_b16 v[{KB+4*c}:{KB+4*c+1}], v86 offset:{c*32}")
        I(f"ds_read_b64_tr_b16 v[{KB+4*c+2}:{KB+4*c+3}], v86 offset:{c*32+768}")
    I("s_barrier")
    I(f"ds_read_b32 v{M1}, v85 offset:{WGT}"); I(f"ds_read_b32 v{M1+1}, v85 offset:{WGT+32}")
    poll([f"buffer_load_dwordx4 {vr(O1)}, v84, s[44:47], 0 offen offset:{P3} sc1",
          f"buffer_load_dwordx4 {vr(O2)}, v84, s[44:47], s84 offen offset:{P3} sc1"],
         sent=list(range(72,80)), name="o", tmp=87)
    stamp(5)
    def red8(op,regs):
        for v in regs: dpp(op,v,v,v,"quad_perm:[2,3,0,1]")
        for v in regs: dpp(op,v,v,v,"row_ror:4")
        for v in regs: dpp(op,v,v,v,"row_ror:8")
    I("s_waitcnt lgkmcnt(0)")
    for r in range(4): I(f"v_mul_f32 v{O1+r}, v{M1}, v{O1+r}")
    for r in range(4): I(f"v_fmac_f32 v{O1+r}, v{M1+1}, v{O2+r}")
    red8("v_add_f32",[O1,O1+1,O1+2,O1+3])
    I(f"v_cvt_pk_bf16_f32 v{T}, v{O1}, v{O1+1}"); I(f"v_cvt_pk_bf16_f32 v{T+1}, v{O1+2}, v{O1+3}")
    AO=T+8
    I(f"v_mov_b32_dpp v{AO}, v{T} quad_perm:[0,0,2,2] row_mask:0xf bank_mask:0xf"); I(f"v_mov_b32_dpp v{AO+1}, v{T+1} quad_perm:[0,0,2,2] row_mask:0xf bank_mask:0xf")
    I(f"v_mov_b32_dpp v{AO+2}, v{T} quad_perm:[1,1,3,3] row_mask:0xf bank_mask:0xf"); I(f"v_mov_b32_dpp v{AO+3}, v{T+1} quad_perm:[1,1,3,3] row_mask:0xf bank_mask:0xf")
    D=100
    for c in range(6): I(f"v_mfma_f32_16x16x32_bf16 {vr(D+4*c)}, {vr(AO)}, {vr(KB+4*c)}, 0")
    I("v_lshlrev_b32 v4, 2, v1")
    I("s_lshl_b32 s7, s83, 9"); I("v_add_u32 v5, s7, v4")
    def sel4(dst,D0):
        I(f"v_cndmask_b32 v{dst}, v{D0}, v{D0+4}, s[72:73]")
        I(f"v_cndmask_b32 v{dst}, v{dst}, v{D0+8}, s[74:75]")
        I(f"v_cndmask_b32 v{dst}, v{dst}, v{D0+12}, s[76:77]")
    sel4(T,D)
    I(f"v_cndmask_b32 v{T+1}, v{D+16}, v{D+20}, s[72:73]")
    I(f"ds_write_b32 v5, v{T} offset:{RED}"); I(f"ds_write_b32 v5, v{T+1} offset:{RED+256}")
    I("s_waitcnt lgkmcnt(0)")
    I("s_barrier")
    I("s_cmp_lt_u32 s83, 2"); sk=L("wo_done"); I(f"s_cbranch_scc0 {sk}")
    I("s_lshl_b32 s7, s83, 8"); I("v_add_u32 v4, s7, v4")
    for k in range(4): I(f"ds_read2st64_b32 v[{T+2*k}:{T+2*k+1}], v4 offset0:{RED//256+4*k} offset1:{RED//256+4*k+2}")
    I("s_mul_i32 s7, s14, 384"); I(f"s_add_u32 s7, s7, {P4A:#x}")
    I("s_cmp_eq_u32 s83, 0"); I("s_cselect_b32 exec_hi, -1, 0")
    I("s_waitcnt lgkmcnt(0)")
    I(f"v_add_f32 v{T}, v{T}, v{T+1}"); I(f"v_add_f32 v{T+2}, v{T+2}, v{T+3}"); I(f"v_add_f32 v{T+4}, v{T+4}, v{T+5}"); I(f"v_add_f32 v{T+6}, v{T+6}, v{T+7}")
    I(f"v_add_f32 v{T}, v{T}, v{T+2}"); I(f"v_add_f32 v{T+4}, v{T+4}, v{T+6}"); I(f"v_add_f32 v{T}, v{T}, v{T+4}")
    I(f"buffer_store_dword v{T}, v4, s[44:47], s7 offen sc1")
    stamp(6)
    dstamp(6,False,1,0)
    a.label(sk)
    finish()

    a.label("L_mlp_tail")
    I("s_lshl_b32 s13, s3, 13"); I(f"s_add_u32 s13, s13, {WAREA}")
    I("v_lshrrev_b32 v4, 2, v1"); I("s_movk_i32 s7, 0x2400"); I("v_mul_u32_u24 v4, s7, v4"); I("v_and_b32 v5, 3, v1"); I("v_lshl_add_u32 v96, v5, 4, v4")
    I("s_mul_i32 s7, s3, 589824"); I("s_lshl_b32 s8, s82, 6"); I("s_add_u32 s7, s7, s8")
    srd_rem(56,28,7,5308416)
    I("v_lshrrev_b32 v4, 3, v1"); I("s_movk_i32 s7, 0x480"); I("v_mul_u32_u24 v4, s7, v4"); I("v_and_b32 v5, 7, v1"); I("v_lshl_add_u32 v97, v5, 4, v4")
    I("s_mul_i32 s7, s82, 36864"); I("s_lshl_b32 s8, s3, 7"); I("s_add_u32 s7, s7, s8")
    srd_rem(60,30,7,5308416)
    def dma_w1():
        for i,off in enumerate((0,1024,3072,4096)):
            I(f"s_add_u32 m0, s13, {off}"); I(f"s_mov_b32 s84, {i*147456}")
            I(f"buffer_load_dwordx4 v96, s[56:59], s84 offen lds {wflag}".replace(" lds nt"," nt lds"))
    def dma_w2(lst):
        for i,off in lst:
            I(f"s_add_u32 m0, s13, {off}"); I(f"s_mov_b32 s84, {i*9216}")
            I(f"buffer_load_dwordx4 v97, s[60:63], s84 offen lds {wflag}".replace(" lds nt"," nt lds"))
    def mlp_dma():
        sk1=L("w1done")
        if gate not in (3,4):
            I("s_cmp_lg_u32 s3, 0"); I(f"s_cbranch_scc1 {sk1}")
        dma_w1()
        if gate!=5: dma_w2(((0,2048),(1,5120)))
        a.label(sk1)
        if gate!=5: dma_w2(((2,6144),(3,7168)))
    if gate in (0,5): mlp_dma()
    XV,GA,SBv,CBv,GBv=72,73,74,75,76
    I("v_lshlrev_b32 v77, 2, v1")
    I("s_lshl_b32 s7, s3, 7"); I("v_lshl_add_u32 v4, v1, 1, s7")
    srd(64,16,None,1152)
    I(f"buffer_load_ushort v{XV}, v4, s[64:67], 0 offen")
    for k,base in enumerate((1152,1728,2304,2880)):
        I(f"s_lshl_b32 s7, s3, 6"); I(f"s_add_u32 s7, s7, {base-1152}")
        I("s_lshr_b32 s8, s7, 7"); I("s_lshl_b32 s8, s8, 9")
        I("s_and_b32 s7, s7, 127"); I("s_lshl_b32 s7, s7, 2"); I("s_add_u32 s8, s8, s7"); I(f"s_add_u32 s{88+k}, s8, {P1BA:#x}")
    I("s_lshl_b32 s7, s3, 8"); I(f"s_add_u32 s15, s7, {P4A:#x}")
    G=80
    T=100
    I("v_lshrrev_b32 v4, 2, v3"); I("v_lshl_add_u32 v4, v2, 3, v4")
    I("v_and_b32 v5, 3, v3"); I("v_lshlrev_b32 v5, 3, v5")
    I("v_lshl_add_u32 v98, v4, 6, v5"); I("v_add_u32 v98, s13, v98")
    I("v_lshrrev_b32 v4, 2, v3"); I("v_lshl_add_u32 v99, v4, 7, v5"); I("v_lshl_add_u32 v99, v2, 10, v99")
    I("v_cmp_eq_u32 vcc, 0, v2"); I("v_mov_b32 v4, 4096"); I("v_mov_b32 v5, 2048"); I("v_cndmask_b32 v4, v4, v5, vcc"); I("v_add3_u32 v99, v99, v4, s13")
    B1,B2=8,24
    def trreads():
        for kk in range(2):
            for c in range(2):
                b=B1+4*(2*kk+c)
                I(f"ds_read_b64_tr_b16 v[{b}:{b+1}], v98 offset:{kk*3072+c*32}")
                I(f"ds_read_b64_tr_b16 v[{b+2}:{b+3}], v98 offset:{kk*3072+c*32+256}")
        for c in range(4):
            b=B2+4*c
            I(f"ds_read_b64_tr_b16 v[{b}:{b+1}], v99 offset:{c*32}")
            I(f"ds_read_b64_tr_b16 v[{b+2}:{b+3}], v99 offset:{c*32+512}")
    poll([f"buffer_load_dword v{GA+k}, v77, s[44:47], s{88+k} offen sc1" for k in range(4)], sent=list(range(GA,GA+4)), name="s", tmp=T)
    if gate==0: trreads()
    I(f"v_lshlrev_b32 v{XV}, 16, v{XV}")
    I(f"v_add_f32 v{CBv}, 1.0, v{CBv}"); rnd(CBv,CBv)
    if gate in (2,4):
        I("s_cmp_eq_u32 s3, 0"); ng_=L("nog"); I(f"s_cbranch_scc0 {ng_}")
        I(f"s_lshl_b32 s12, s5, 7"); I(f"s_add_u32 s12, s12, {F4A:#x}"); I("v_mov_b32 v4, 0")
        setexec(1,0)
        poll([f"buffer_load_dword v{T}, v4, s[44:47], s12 offen sc1","s_sleep 2"], tags=[T], name="c3", tmp=T+1)
        fullexec()
        a.label(ng_)
        I("s_barrier")
        mlp_dma()
    I("s_cmp_eq_u32 s3, 0"); nc_=L("nocan"); I(f"s_cbranch_scc0 {nc_}")
    I("v_lshlrev_b32 v4, 7, v1"); I(f"s_mov_b32 s12, {F4A:#x}")
    setexec(0xffff,0)
    poll([f"buffer_load_dword v{T}, v4, s[44:47], s12 offen sc1","s_sleep 1"], tags=[T], name="c4", tmp=T+1)
    fullexec()
    a.label(nc_)
    I("s_waitcnt lgkmcnt(0)")
    I("s_barrier")
    if gate in (1,3): mlp_dma()
    if gate==5: dma_w2(((0,2048),(1,5120),(2,6144),(3,7168)))
    lds_=["s_mov_b32 s84, s15"]
    for k in range(16):
        lds_.append(f"buffer_load_dword v{G+k}, v77, s[44:47], s84 offen sc1")
        if k<15: lds_.append(f"s_add_u32 s84, s84, 2304")
    poll(lds_, sent=list(range(G,G+16)), name="x", tmp=T, mid=(trreads if gate else None))
    stamp(9)
    if pad and padat=='mg': I("s_memrealtime s[42:43]")
    dstamp(7,False,1)
    if stamps: I(f"v_writelane_b32 v{STV}, s80, 14")
    for k in (0,2,4,6,8,10,12,14): I(f"v_add_f32 v{G+k}, v{G+k}, v{G+k+1}")
    for k in (0,4,8,12): I(f"v_add_f32 v{G+k}, v{G+k}, v{G+k+2}")
    I(f"v_add_f32 v{G}, v{G}, v{G+4}"); I(f"v_add_f32 v{G+8}, v{G+8}, v{G+12}")
    I(f"v_add_f32 v{G}, v{G}, v{G+8}")
    rnd(G,G); I(f"v_mul_f32 v{G}, v{G}, v{GA}"); rnd(G,G); I(f"v_add_f32 v{G}, v{G}, v{XV}")
    X1=G+1; rnd(X1,G)
    S,S2=T,T+1
    I(f"v_mov_b32 v{S}, v{X1}"); I(f"v_mul_f32 v{S2}, v{X1}, v{X1}")
    for k in (8,4,2,1): ror("v_add_f32",[S,S2],k)
    for v_ in (S,S2): I(f"v_add_f32_dpp v{v_}, v{v_}, v{v_} row_bcast:15 row_mask:0xa bank_mask:0xf")
    for v_ in (S,S2): I(f"v_add_f32_dpp v{v_}, v{v_}, v{v_} row_bcast:31 row_mask:0xc bank_mask:0xf")
    I("v_mov_b32 v4, 0")
    setexec(0,0x80000000)
    I(f"ds_add_f32 v4, v{S} offset:{STAT}"); I(f"ds_add_f32 v4, v{S2} offset:{STAT+4}")
    fullexec()
    I("s_lshl_b32 s9, s3, 9"); I(f"s_add_u32 s9, s9, {SCR}")
    I("v_lshl_add_u32 v5, v1, 1, s9")
    I("v_lshl_add_u32 v6, v2, 4, s9")
    I("s_waitcnt lgkmcnt(0)")
    I("s_barrier")
    I(f"ds_read_b64 v[{S}:{S+1}], v4 offset:{STAT}")
    I("s_waitcnt lgkmcnt(0)")
    ln_stats(S,S2,T+2,T+3)
    H=G+2
    I(f"v_sub_f32 v{H}, v{X1}, v{T+2}"); rnd(H,H); I(f"v_mul_f32 v{H}, v{H}, v{T+3}"); rnd(H,H)
    I(f"v_mul_f32 v{H}, v{H}, v{CBv}"); rnd(H,H); I(f"v_add_f32 v{H}, v{H}, v{SBv}")
    I(f"v_cvt_pk_bf16_f32 v{H}, v{H}, v{H}")
    I(f"ds_write_b16 v5, v{H}")
    AH=T+4
    I(f"ds_read_b128 {vr(AH)}, v6"); I(f"ds_read_b128 {vr(AH+4)}, v6 offset:64")
    D=T+12
    I("s_waitcnt lgkmcnt(1)")
    I(f"v_mfma_f32_16x16x32_bf16 {vr(D)}, {vr(AH)}, {vr(B1)}, 0"); I(f"v_mfma_f32_16x16x32_bf16 {vr(D+4)}, {vr(AH)}, {vr(B1+4)}, 0")
    I("s_waitcnt lgkmcnt(0)")
    I(f"v_mfma_f32_16x16x32_bf16 {vr(D)}, {vr(AH+4)}, {vr(B1+8)}, {vr(D)}"); I(f"v_mfma_f32_16x16x32_bf16 {vr(D+4)}, {vr(AH+4)}, {vr(B1+12)}, {vr(D+4)}")
    I(f"v_cndmask_b32 v{T}, v{D}, v{D+4}, s[72:73]")
    I("s_lshl_b32 s7, s3, 8"); I("v_add_u32 v4, s7, v77")
    I(f"ds_write_b32 v4, v{T} offset:{RED}")
    I("s_waitcnt lgkmcnt(0)")
    I("s_barrier")
    for k in range(4): I(f"ds_read2st64_b32 v[{T+2*k}:{T+2*k+1}], v77 offset0:{RED//256+2*k} offset1:{RED//256+2*k+1}")
    I(f"ds_read_b32 v{T+8}, v77 offset:{RED+8*256}")
    I("s_waitcnt lgkmcnt(0)")
    I(f"v_add_f32 v{T}, v{T}, v{T+1}"); I(f"v_add_f32 v{T+2}, v{T+2}, v{T+3}"); I(f"v_add_f32 v{T+4}, v{T+4}, v{T+5}"); I(f"v_add_f32 v{T+6}, v{T+6}, v{T+7}")
    I(f"v_add_f32 v{T}, v{T}, v{T+2}"); I(f"v_add_f32 v{T+4}, v{T+4}, v{T+6}"); I(f"v_add_f32 v{T}, v{T}, v{T+8}"); I(f"v_add_f32 v{T}, v{T}, v{T+4}")
    rnd(T,T); silu([T],[T+1])
    I(f"v_cvt_pk_bf16_f32 v{T}, v{T}, v{T}")
    I(f"ds_write_b16 v5, v{T} offset:256")
    I(f"ds_read_b128 {vr(AH)}, v6 offset:256")
    I("s_waitcnt lgkmcnt(0)")
    for c in range(4): I(f"v_mfma_f32_16x16x32_bf16 {vr(D+4*c)}, {vr(AH)}, {vr(B2+4*c)}, 0")
    I("s_lshl_b32 s7, s3, 8"); I("s_mul_i32 s8, s82, 2304"); I("s_add_u32 s7, s7, s8"); I(f"s_add_u32 s7, s7, {P5A:#x}")
    sel4(T,D)
    I(f"buffer_store_dword v{T}, v77, s[44:47], s7 offen sc1")
    stamp(10)
    if pad and padat=='mp': I("s_memrealtime s[42:43]")
    dstamp(8,False,1)
    I("s_cmp_lt_u32 s82, 9"); sk=L("mlp_done"); I(f"s_cbranch_scc0 {sk}")
    a.C("final reducers: CU u<9 handles column block u; wave wv gathers partials 16wv+pp+4k")
    F=84
    I(f"s_mul_i32 s7, s3, {16*2304}"); I("s_lshl_b32 s8, s82, 8"); I("s_add_u32 s12, s7, s8"); I(f"s_add_u32 s12, s12, {P5A:#x}")
    lds_=["s_mov_b32 s84, s12"]
    for k in range(16):
        lds_.append(f"buffer_load_dword v{F+k}, v77, s[44:47], s84 offen sc1")
        if k<15: lds_.append(f"s_add_u32 s84, s84, 2304")
    poll(lds_, sent=list(range(F,F+16)), name="f", tmp=T)
    stamp(11)
    dstamp(10,False,1)
    for k in (0,2,4,6,8,10,12,14): I(f"v_add_f32 v{F+k}, v{F+k}, v{F+k+1}")
    for k in (0,4,8,12): I(f"v_add_f32 v{F+k}, v{F+k}, v{F+k+2}")
    I(f"v_add_f32 v{F}, v{F}, v{F+4}"); I(f"v_add_f32 v{F+8}, v{F+8}, v{F+12}"); I(f"v_add_f32 v{F}, v{F}, v{F+8}")
    I("s_lshl_b32 s7, s3, 8"); I("v_add_u32 v4, s7, v77")
    I(f"ds_write_b32 v4, v{F} offset:{RED+2304}")
    I("s_waitcnt lgkmcnt(0)")
    I("s_barrier")
    I("s_cmp_eq_u32 s3, s82"); I(f"s_cbranch_scc0 {sk}")
    FB=(RED+2304)//256
    for k in range(4): I(f"ds_read2st64_b32 v[{T+2*k}:{T+2*k+1}], v77 offset0:{FB+2*k} offset1:{FB+2*k+1}")
    I(f"ds_read_b32 v{T+8}, v77 offset:{RED+2304+8*256}")
    I("s_lshl_b32 s7, s82, 7"); I("v_lshl_add_u32 v4, v1, 1, s7")
    srd(64,36,None,1152)
    I("s_waitcnt lgkmcnt(0)")
    I(f"v_add_f32 v{T}, v{T}, v{T+1}"); I(f"v_add_f32 v{T+2}, v{T+2}, v{T+3}"); I(f"v_add_f32 v{T+4}, v{T+4}, v{T+5}"); I(f"v_add_f32 v{T+6}, v{T+6}, v{T+7}")
    I(f"v_add_f32 v{T}, v{T}, v{T+2}"); I(f"v_add_f32 v{T+4}, v{T+4}, v{T+6}"); I(f"v_add_f32 v{T}, v{T}, v{T+8}"); I(f"v_add_f32 v{T}, v{T}, v{T+4}")
    rnd(T,T); I(f"v_mul_f32 v{T}, v{T}, v{GBv}"); rnd(T,T); I(f"v_add_f32 v{T}, v{T}, v{X1}")
    I(f"v_cvt_pk_bf16_f32 v{T}, v{T}, v{T}")
    I(f"buffer_store_short v{T}, v4, s[64:67], 0 offen")
    dstamp(9,False,0)
    I("s_cmp_eq_u32 s82, 0"); I(f"s_cbranch_scc0 {sk}")
    if pad:
        pl=L("pad"); a.label(pl)
        I("s_memrealtime s[96:97]"); I("s_waitcnt lgkmcnt(0)"); I("s_sub_u32 s96, s96, s42"); I(f"s_cmp_lt_u32 s96, {pad}"); I(f"s_cbranch_scc1 {pl}")
    I("v_mov_b32 v4, s95"); I("v_lshlrev_b32 v5, 2, v1"); I(f"s_mov_b32 s7, {EPOCH_OFF:#x}")
    setexec(0xffffffff,0)
    I("buffer_store_dword v4, v5, s[44:47], s7 offen sc1")
    a.label(sk)
    finish()

    a.label("L_clean")
    code_touch(8)
    I("v_mov_b32 v156, 0"); I("v_mov_b32 v157, 0"); I("v_mov_b32 v158, 0"); I("v_mov_b32 v159, 0")
    I("v_lshlrev_b32 v5, 4, v1")
    I("v_lshlrev_b32 v4, 2, v1"); I(f"ds_write_b32 v4, v156 offset:{QFLAG}")
    I("s_waitcnt lgkmcnt(0)")
    stamp(0)
    epoch_load()
    ws_setup()
    if tlbw:
        I("s_mov_b32 s7, 82944"); I("v_mul_u32_u24 v20, s7, v1")
        srd(48,28,None,5308416); srd(52,30,None,5308416); srd(56,24,None,4718592)
        I("buffer_load_dword v21, v20, s[48:51], 0 offen"); I("buffer_load_dword v22, v20, s[52:55], 0 offen"); I("buffer_load_dword v23, v20, s[56:59], 0 offen")
    I("v_mov_b32 v156, -1"); I("v_mov_b32 v157, -1"); I("v_mov_b32 v158, -1"); I("v_mov_b32 v159, -1")
    if noclear: I("s_branch L_skipclr")
    I(f"buffer_store_dwordx4 v[156:159], v5, s[44:47], s85 offen offset:{P2} sc1")
    setexec(0xffffffff,0xff)
    I(f"buffer_store_dwordx4 v[156:159], v5, s[44:47], s85 offen offset:{P2+1024} sc1")
    fullexec()
    I("s_cmp_eq_u32 s81, 2"); nc=L("noclr"); I(f"s_cbranch_scc0 {nc}")
    I("s_mul_i32 s7, s82, 2304"); I(f"s_add_u32 s7, s7, {P5A:#x}")
    for k in range(2): I(f"buffer_store_dwordx4 v[156:159], v5, s[44:47], s7 offen offset:{1024*k} sc1")
    setexec(0xffff,0)
    I(f"buffer_store_dwordx4 v[156:159], v5, s[44:47], s7 offen offset:2048 sc1")
    fullexec()
    a.label(nc)
    I("s_cmp_eq_u32 s81, 1"); nc2=L("noclr2"); I(f"s_cbranch_scc0 {nc2}")
    I("s_mul_i32 s7, s14, 384"); I(f"s_add_u32 s7, s7, {P4A:#x}")
    setexec(0xffffff,0)
    I(f"buffer_store_dwordx4 v[156:159], v5, s[44:47], s7 offen sc1")
    fullexec()
    a.label(nc2)
    I("s_sub_u32 s8, 6, s6"); I("s_lshl_b32 s8, s8, 4"); I("s_add_u32 s8, s8, s5"); I("s_cmp_lt_u32 s8, 18"); I("s_cbranch_scc0 L_skipclr")
    I("s_lshl_b32 s7, s8, 9"); I(f"s_add_u32 s7, s7, {P1BA:#x}")
    setexec(0xffffffff,0)
    I(f"buffer_store_dwordx4 v[156:159], v5, s[44:47], s7 offen sc1")
    fullexec()
    a.label("L_skipclr")
    (I("s_barrier") if not noB0 else None)
    I("s_waitcnt vmcnt(0) lgkmcnt(0)")
    tag()
    I("v_mov_b32 v4, s95"); I("v_lshlrev_b32 v5, 2, v1")
    setexec(0xffffffff,0)
    I(f"buffer_store_dword v4, v5, s[44:47], s85 offen offset:{FL} sc1")
    stamp(1)
    I("s_cmp_eq_u32 s6, 6"); na=L("noagg"); I(f"s_cbranch_scc0 {na}")
    fullexec()
    I("s_lshl_b32 s7, s5, 4"); I("v_add_u32 v4, s7, v1"); I("v_mul_u32_u24 v4, s86, v4")
    setexec(0xffff,0)
    poll([f"buffer_load_dword v8, v4, s[44:47], 0 offen offset:{FL} sc1","s_sleep 8"],tags=[8],name="agg",tmp=9)
    fullexec()
    I("v_mov_b32 v4, s95"); I(f"s_lshl_b32 s7, s5, 7"); I(f"s_add_u32 s7, s7, {GCLR_OFF:#x}")
    setexec(0xffffffff,0)
    I(f"buffer_store_dword v4, v5, s[44:47], s7 offen sc1")
    a.label(na)
    finish()

    a.label("L_mod")
    TILE,XF,CV,XR,AV,A0,A1,ACC,GB,T=8,80,88,90,92,110,114,118,122,154
    I("s_setprio 2")
    I("s_waitcnt lgkmcnt(0)")
    stamp(0)
    epoch_load()
    srd(64,32,None,1152)
    I("s_and_b32 s7, s4, 7"); I("s_mul_i32 s7, s7, 144")
    I("v_lshlrev_b32 v4, 3, v1")
    I(f"buffer_load_dwordx2 v[{CV}:{CV+1}], v4, s[64:67], s7 offen")
    I("s_cmp_lt_u32 s4, 216"); nomod=L("nomod"); I(f"s_cbranch_scc0 {nomod}")
    I("s_and_b32 s7, s4, 7"); I("s_mul_i32 s7, s7, 497664")
    I("s_lshr_b32 s10, s4, 3"); I("s_lshl_b32 s10, s10, 8"); I("s_add_u32 s7, s7, s10")
    srd_rem(52,34,7,3981312)
    I("s_movk_i32 s7, 0x1b00"); I("v_mul_u32_u24 v4, s7, v2"); I("v_lshl_add_u32 v4, v3, 4, v4")
    for i in range(0 if notiles else 18):
        I(f"s_mov_b32 s84, {i*27648}")
        I(f"buffer_load_dwordx4 {vr(TILE+4*i)}, v4, s[52:55], s84 offen {wflag}")
    (I("s_barrier") if not noB0 else None)
    ws_setup(); diag_consts()
    I("s_waitcnt vmcnt(18)")
    for k in range(2): unpack2(T+2*k,T+2*k+1,CV+k)
    silu([T,T+1,T+2,T+3],[T+4,T+5,T+6,T+7])
    for r in range(4): dup(T+r,T+r)
    I(f"ds_write_b128 v164, {vr(T)} offset:{TL}")
    I("s_waitcnt vmcnt(0) lgkmcnt(0)")
    tag()
    stamp(1)
    matvec18(TILE,AV,A0,A1,ACC,TL)
    I(f"v_permlane32_swap_b32 v{ACC}, v{ACC+2}"); I(f"v_permlane32_swap_b32 v{ACC+1}, v{ACC+3}")
    I(f"v_mov_b32 v{A0}, v{ACC}"); I(f"v_mov_b32 v{A0+1}, s95"); I(f"v_mov_b32 v{A0+2}, v{ACC+1}"); I(f"v_mov_b32 v{A0+3}, s95")
    I(f"buffer_store_dwordx4 {vr(A0)}, v164, s[44:47], s85 offen offset:{P1} sc1")
    stamp(2)
    dstamp(11)
    finish()
    a.label(nomod)
    (I("s_barrier") if not noB0 else None)
    finish()

    a.label("L_ctrl")
    if pad and padat=='start': I("s_memrealtime s[42:43]")
    I("s_setprio 3")
    I("s_waitcnt lgkmcnt(0)")
    stamp(0)
    epoch_load()
    srd(48,16,None,1152)
    I("s_lshr_b32 s87, s6, 1"); I("s_mul_i32 s87, s87, 72")
    I("s_lshl_b32 s7, s87, 1")
    I("v_lshlrev_b32 v4, 3, v1")
    I(f"buffer_load_dwordx2 v[{XR}:{XR+1}], v4, s[48:51], s7 offen")
    I("v_lshlrev_b32 v5, 5, v1")
    I(f"buffer_load_dwordx4 {vr(XF)}, v5, s[48:51], 0 offen")
    I(f"buffer_load_dwordx4 {vr(XF+4)}, v5, s[48:51], 0 offen offset:16")
    I("s_lshl_b32 s7, s87, 13"); I("s_lshl_b32 s10, s5, 9"); I("s_add_u32 s7, s7, s10")
    I("s_and_b32 s10, s6, 1"); I("s_lshl_b32 s10, s10, 8"); I("s_add_u32 s7, s7, s10")
    srd_rem(52,22,7,4718592)
    I("v_lshlrev_b32 v4, 13, v2"); I("v_lshl_add_u32 v4, v3, 4, v4")
    for i in range(0 if notiles else 18):
        I(f"s_mov_b32 s84, {i*32768:#x}")
        I(f"buffer_load_dwordx4 {vr(TILE+4*i)}, v4, s[52:55], s84 offen {wflag}")
    (I("s_barrier") if not noB0 else None)
    ws_setup(); diag_consts()
    I("s_waitcnt vmcnt(18) lgkmcnt(0)")
    tag()
    stamp(1)
    S,S2=T,T+1
    I(f"v_mov_b32 v{S}, 0"); I(f"v_mov_b32 v{S2}, 0")
    for k in range(8):
        unpack2(T+2,T+3,XF+k)
        I(f"v_add_f32 v{S}, v{S}, v{T+2}"); I(f"v_fmac_f32 v{S2}, v{T+2}, v{T+2}")
        I(f"v_add_f32 v{S}, v{S}, v{T+3}"); I(f"v_fmac_f32 v{S2}, v{T+3}, v{T+3}")
    for k in (8,4,2,1): ror("v_add_f32",[S,S2],k)
    xswap("v_add_f32",[S,S2],[T+2,T+3],16); xswap("v_add_f32",[S,S2],[T+2,T+3],32)
    MB,INV=XF,XF+1
    ln_stats(S,S2,MB,INV)
    GA=92
    if nochain: I("s_branch L_skipchain")
    I("v_and_b32 v4, 31, v1"); I("v_lshl_add_u32 v4, v4, 2, s87")
    I("v_cmp_lt_u32 vcc, 31, v1"); I("v_mov_b32 v5, 576"); I("v_cndmask_b32 v5, 0, v5, vcc"); I("v_add_u32 v4, v4, v5")
    I("v_lshrrev_b32 v5, 7, v4"); I("v_lshlrev_b32 v5, 3, v5"); I("v_mul_u32_u24 v5, s86, v5")
    I("v_bfe_u32 v156, v4, 3, 4"); I("v_bfe_u32 v157, v4, 2, 1"); I("v_lshl_add_u32 v156, v157, 4, v156")
    I("v_lshl_add_u32 v4, v156, 4, v5")
    I("s_lshl_b32 s7, s5, 4"); I("v_add_u32 v158, s7, v1"); I("v_mul_u32_u24 v158, s86, v158")
    I("v_mov_b32 v159, s95")
    def soffs(n,step,base=88):
        res=["0"]
        for k in range(1,n):
            I(f"s_mov_b32 s{base+k-1}, {k*step}"); res.append(f"s{base+k-1}")
        return res
    so=soffs(8,STRIDE)
    def p1loads():
        l=[]
        for k in range(8):
            l.append(f"buffer_load_dwordx4 {vr(GA+8*k)}, v4, s[44:47], {so[k]} offen offset:{P1} sc1")
            l.append(f"buffer_load_dwordx4 {vr(GA+8*k+4)}, v4, s[44:47], {so[k]} offen offset:{P1+512} sc1")
        return l
    p1tags=[GA+8*k+o for k in range(8) for o in (1,3,5,7)]
    def p1sum(D):
        for r,o in enumerate((0,2,4,6)): I(f"v_add_f32 v{D+r}, v{GA+o}, v{GA+8+o}")
        for k in range(2,8):
            for r,o in enumerate((0,2,4,6)): I(f"v_add_f32 v{D+r}, v{D+r}, v{GA+8*k+o}")
    def sleep(nn):
        while nn>0:
            k=min(nn,120); I(f"s_sleep {k}"); nn-=k
    sleep(sl1)
    setexec(0x3ffff,0x3ffff)
    poll(p1loads()+["s_mov_b32 exec_lo, 0xffff","s_mov_b32 exec_hi, 0",f"buffer_load_dword v159, v158, s[44:47], 0 offen offset:{FL} sc1","s_mov_b32 exec_lo, 0x3ffff","s_mov_b32 exec_hi, 0x3ffff"],
         tags=p1tags+[159], name="m", tmp=160)
    fullexec()
    stamp(4)
    if pad and padat=='p1': I("s_memrealtime s[42:43]")
    p1sum(156)
    for r in range(4): rnd(GB+r,156+r)
    for r in range(4): I(f"v_mov_b32 v{GB+4+r}, v{GB+r}")
    for r in range(4): I(f"v_permlane32_swap_b32 v{GB+r}, v{GB+4+r}")
    H=GB+8; Tt=GB+12
    unpack2(H,H+1,XR); unpack2(H+2,H+3,XR+1)
    for r in range(4): I(f"v_sub_f32 v{H+r}, v{H+r}, v{MB}")
    for r in range(4): I(f"v_add_f32 v{Tt+r}, 1.0, v{GB+4+r}")
    for r in range(4): rnd(H+r,H+r)
    for r in range(4): rnd(Tt+r,Tt+r)
    for r in range(4): I(f"v_mul_f32 v{H+r}, v{H+r}, v{INV}")
    for r in range(4): rnd(H+r,H+r)
    for r in range(4): I(f"v_mul_f32 v{H+r}, v{H+r}, v{Tt+r}")
    for r in range(4): rnd(H+r,H+r)
    for r in range(4): I(f"v_add_f32 v{H+r}, v{H+r}, v{GB+r}")
    for r in range(4): dup(H+r,H+r)
    I(f"ds_write_b128 v164, {vr(H)} offset:{TL2}")
    I("s_waitcnt lgkmcnt(0)")
    matvec18(TILE,AV,A0,A1,ACC,TL2)
    I("v_lshlrev_b32 v4, 5, v3"); I("v_lshl_add_u32 v4, v2, 4, v4")
    setexec(0xffffffff,0)
    I(f"buffer_store_dwordx4 {vr(ACC)}, v4, s[44:47], s85 offen offset:{P2} sc1")
    fullexec()
    stamp(5)
    nr=L("nored")
    I("s_sub_u32 s13, 6, s6"); I("s_lshl_b32 s13, s13, 4"); I("s_add_u32 s13, s13, s5"); I("s_cmp_lt_u32 s13, 18"); I(f"s_cbranch_scc0 {nr}")
    I("s_add_u32 s7, s13, 9"); I(f"s_mul_i32 s7, s7, {8*STRIDE}")
    I("v_and_b32 v4, 1, v1"); I("v_lshrrev_b32 v5, 1, v1"); I("v_lshl_add_u32 v4, v4, 4, v5"); I("v_lshl_add_u32 v4, v4, 4, s7")
    setexec(0xffffffff,0)
    poll(p1loads(), tags=p1tags, name="b", tmp=160)
    p1sum(156)
    for r in range(4): rnd(156+r,156+r)
    I("s_lshl_b32 s7, s13, 9"); I(f"s_add_u32 s7, s7, {P1BA:#x}")
    I(f"buffer_store_dwordx4 v[156:159], v164, s[44:47], s7 offen sc1")
    fullexec()
    a.label(nr)
    I("v_lshrrev_b32 v4, 5, v1"); I("s_lshl_b32 s7, s5, 4"); I("v_add_u32 v4, s7, v4"); I("v_mul_u32_u24 v4, s86, v4")
    I("v_and_b32 v5, 31, v1"); I("v_lshl_add_u32 v4, v5, 4, v4")
    I("v_lshlrev_b32 v158, 7, v1"); I("v_mov_b32 v159, s95"); I(f"s_mov_b32 s12, {GCLR_OFF:#x}")
    so=soffs(8,2*STRIDE)
    sleep(sl2)
    poll([f"buffer_load_dwordx4 {vr(GB+4*k)}, v4, s[44:47], {so[k]} offen offset:{P2} sc1" for k in range(8)]+
         ["s_mov_b32 exec_lo, 0xffff","s_mov_b32 exec_hi, 0","buffer_load_dword v159, v158, s[44:47], s12 offen sc1","s_mov_b64 exec, -1"],
         sent=list(range(GB,GB+32)), tags=[159], name="q", tmp=160)
    for k in (0,2,4,6):
        for r in range(4): I(f"v_add_f32 v{GB+4*k+r}, v{GB+4*k+r}, v{GB+4*k+4+r}")
    for k in (0,4):
        for r in range(4): I(f"v_add_f32 v{GB+4*k+r}, v{GB+4*k+r}, v{GB+4*k+8+r}")
    for r in range(4): I(f"v_add_f32 v{GB+r}, v{GB+r}, v{GB+16+r}")
    I(f"v_cvt_pk_bf16_f32 v{GB+4}, v{GB}, v{GB+1}"); I(f"v_cvt_pk_bf16_f32 v{GB+5}, v{GB+2}, v{GB+3}")
    I("v_lshlrev_b32 v4, 3, v1")
    I(f"ds_write_b64 v4, v[{GB+4}:{GB+5}] offset:{QL}")
    a.label("L_skipchain")
    I("v_mov_b32 v4, 0"); I("v_mov_b32 v5, 1")
    I(f"ds_write_b32 v4, v5 offset:{QFLAG}")
    stamp(6)
    dstamp(2)
    if pad and padat=='q': I("s_memrealtime s[42:43]")
    code_touch(8)
    I("s_mov_b32 s72, 0xffff0000"); I("s_mov_b32 s73, 0"); I("s_mov_b32 s74, 0"); I("s_mov_b32 s75, 0xffff"); I("s_mov_b32 s76, 0"); I("s_mov_b32 s77, 0xffff0000")
    I("v_lshlrev_b32 v152, 4, v1")
    I("v_lshrrev_b32 v5, 5, v1"); I("v_lshlrev_b32 v5, 3, v5")
    I("s_mov_b32 s80, 0")
    lo=L("cw"); dn=L("cwd"); a.label(lo)
    I(f"ds_read_b32 v6, v4 offset:{CNT}"); I("s_waitcnt lgkmcnt(0)")
    I("v_readfirstlane_b32 s7, v6"); I("s_cmp_eq_u32 s7, 8"); I(f"s_cbranch_scc1 {dn}")
    I("s_sleep 1"); I("s_add_u32 s80, s80, 1"); I(f"s_cmp_lt_u32 s80, {SPIN*4}"); I(f"s_cbranch_scc1 {lo}")
    a.label(dn)
    WB=80
    for w in range(8): I(f"ds_read_b64 v[{WB+2*w}:{WB+2*w+1}], v5 offset:{WML+16*w}")
    I("s_waitcnt lgkmcnt(0)")
    R=96
    I(f"v_max3_f32 v{R}, v{WB}, v{WB+2}, v{WB+4}"); I(f"v_max3_f32 v{R}, v{R}, v{WB+6}, v{WB+8}")
    I(f"v_max3_f32 v{R}, v{R}, v{WB+10}, v{WB+12}"); I(f"v_max_f32 v{R}, v{R}, v{WB+14}")
    for w in range(8): I(f"v_sub_f32 v{WB+2*w}, v{WB+2*w}, v{R}")
    for w in range(8): I(f"v_mul_f32 v{WB+2*w}, {LOG2E:#x}, v{WB+2*w}")
    for w in range(8): I(f"v_exp_f32 v{WB+2*w}, v{WB+2*w}")
    I(f"v_mul_f32 v{R+1}, v{WB}, v{WB+1}")
    for w in range(1,8): I(f"v_fmac_f32 v{R+1}, v{WB+2*w}, v{WB+2*w+1}")
    I("v_and_b32 v6, 7, v1"); I("v_lshl_add_u32 v6, v6, 4, v5")
    setexec(0xff,0xff)
    I(f"buffer_store_dwordx2 v[{R}:{R+1}], v6, s[44:47], s85 offen offset:{ML} sc1")
    fullexec()
    I("s_barrier")
    stamp(7)
    O=104
    for k in range(8): I(f"ds_read_b128 {vr(O+4*k)}, v152 offset:{OBUF+1024*k}")
    for k in range(8):
        I(f"s_waitcnt lgkmcnt({7-k})")
        for r in range(4):
            if k==0: I(f"v_mul_f32 v{O+r}, v{WB}, v{O+r}")
            else: I(f"v_fmac_f32 v{O+r}, v{WB+2*k}, v{O+4*k+r}")
    I(f"buffer_store_dwordx4 {vr(O)}, v152, s[44:47], s85 offen offset:{P3} sc1")
    stamp(8)
    if pad and padat=='p3': I("s_memrealtime s[42:43]")
    dstamp(5)
    if notail: finish()
    I("s_cmp_eq_u32 s81, 2"); I("s_cbranch_scc1 L_mlp_tail")
    I("s_cmp_eq_u32 s81, 1"); cw=L("cwo"); I(f"s_cbranch_scc1 {cw}")
    finish()
    a.label(cw)
    a.C("wo role control: canary on the 16 ML lines, compute normalised split weights")
    I("s_lshl_b32 s7, s5, 4"); I("v_add_u32 v4, s7, v1"); I("v_mul_u32_u24 v4, s86, v4")
    setexec(0xffff,0)
    poll([f"buffer_load_dwordx4 {vr(80)}, v4, s[44:47], 0 offen offset:{ML} sc1"], sent=[80,81,82,83], name="ml", tmp=84)
    I("s_cmp_eq_u32 s6, 0"); nf=L("nof4"); I(f"s_cbranch_scc0 {nf}")
    fullexec()
    I("v_mov_b32 v5, s95"); I("v_lshlrev_b32 v6, 2, v1"); I("s_lshl_b32 s7, s5, 7"); I(f"s_add_u32 s7, s7, {F4A:#x}")
    setexec(0xffffffff,0)
    I("buffer_store_dword v5, v6, s[44:47], s7 offen sc1")
    setexec(0xffff,0)
    a.label(nf)
    I("v_mov_b32 v84, v80"); I("v_mov_b32 v85, v82")
    for k in (8,4,2,1): ror("v_max_f32",[84,85],k)
    I("v_sub_f32 v80, v80, v84"); I("v_sub_f32 v82, v82, v85")
    I(f"v_mul_f32 v80, {LOG2E:#x}, v80"); I(f"v_mul_f32 v82, {LOG2E:#x}, v82")
    I("v_exp_f32 v80, v80"); I("v_exp_f32 v82, v82")
    I("v_mul_f32 v84, v80, v81"); I("v_mul_f32 v85, v82, v83")
    for k in (8,4,2,1): ror("v_add_f32",[84,85],k)
    I("v_rcp_f32 v84, v84"); I("v_rcp_f32 v85, v85")
    I("v_mul_f32 v80, v80, v84"); I("v_mul_f32 v82, v82, v85")
    I("v_lshlrev_b32 v4, 2, v1")
    I(f"ds_write_b32 v4, v80 offset:{WGT}"); I(f"ds_write_b32 v4, v82 offset:{WGT+64}")
    I("s_waitcnt lgkmcnt(0)")
    fullexec()
    I("s_barrier")
    finish()
    a.label("L_end")
    I("s_endpgm")

    body=a.finish()
    out=HEADER
    out+=f"; @launch grid=(256,1,1) block=(704,1,1) lds={LDS_BYTES}\n"
    out+='.amdgcn_target "amdgcn-amd-amdhsa--gfx950"\n.text\n'
    out+=f".globl {NAME}_kernel\n.p2align 8\n.type {NAME}_kernel,@function\n"
    out+=body
    out+=f""".section .rodata,"a"
.p2align 6
.amdhsa_kernel {NAME}_kernel
  .amdhsa_next_free_vgpr 168
  .amdhsa_next_free_sgpr 100
  .amdhsa_accum_offset 168
  .amdhsa_group_segment_fixed_size 0
  .amdhsa_float_denorm_mode_32 3
  .amdhsa_kernarg_size 104
  .amdhsa_user_sgpr_count 2
  .amdhsa_user_sgpr_kernarg_segment_ptr 1
  .amdhsa_system_sgpr_workgroup_id_x 1
.end_amdhsa_kernel
"""
    return out

if __name__=="__main__":
    import argparse
    p=argparse.ArgumentParser()
    p.add_argument("-o",default="cdna_kernels/"+NAME+".s")
    p.add_argument("--W",type=int,default=4); p.add_argument("--W0",type=int,default=4); p.add_argument("--n0",type=int,default=0); p.add_argument("--Wwo",type=int,default=5)
    p.add_argument("--ld",default=""); p.add_argument("--wf",default=""); p.add_argument("--stamps",action="store_true")
    p.add_argument("--sl1",type=int,default=140); p.add_argument("--sl2",type=int,default=40); p.add_argument("--norot",action="store_true"); p.add_argument("--woearly",action="store_true"); p.add_argument("--W2",type=int,default=4); p.add_argument("--Ww",type=int,default=3); p.add_argument("--psleep",type=int,default=0); p.add_argument("--nowt",action="store_true"); p.add_argument("--notail",action="store_true"); p.add_argument("--gate",type=int,default=1); p.add_argument("--notlbw",action="store_true"); p.add_argument("--notiles",action="store_true"); p.add_argument("--nochain",action="store_true"); p.add_argument("--noclear",action="store_true"); p.add_argument("--noB0",action="store_true"); p.add_argument("--dbg",action="store_true"); p.add_argument("--pad",type=int,default=0); p.add_argument("--padat",default="start"); p.add_argument("--cps",default="3,7,11")
    x=p.parse_args()
    open(x.o,"w").write(gen(W=x.W,W0=x.W0,n0=x.n0,Wwo=x.Wwo,ldflag=x.ld,wflag=x.wf,stamps=x.stamps,sl1=x.sl1,sl2=x.sl2,rot=not x.norot,wolate=not x.woearly,W2=x.W2,Ww=x.Ww,psleep=x.psleep,nowt=x.nowt,notail=x.notail,gate=x.gate,tlbw=not x.notlbw,notiles=x.notiles,nochain=x.nochain,noclear=x.noclear,noB0=x.noB0,dbg=x.dbg,pad=x.pad,padat=x.padat,cps=tuple(int(t) for t in x.cps.split(',') if t)))
```
